```python
import torch

def _softmax(x, axis=-1):
    return torch.softmax(x, dim=axis)
def _gelu(x):
    return torch.nn.functional.gelu(x, approximate="tanh")
def _silu(x):
    return torch.nn.functional.silu(x)
def _sigmoid(x):
    return torch.sigmoid(x)
def _layernorm(x, axis=-1, eps=1e-5):
    m = x.mean(dim=axis, keepdim=True)
    v = x.var(dim=axis, keepdim=True, unbiased=False)
    return (x - m) / torch.sqrt(v + eps)
def _scatter_add(tgt, idx, src, axis=0):
    return tgt.clone().index_add_(axis, idx, src)
def _segment_sum(src, seg, n):
    out = torch.zeros((n,) + src.shape[1:], dtype=src.dtype)
    return out.index_add_(0, seg, src)
def _pad(x, pw):
    flat = tuple(v for pair in reversed(pw) for v in pair)
    return torch.nn.functional.pad(x, flat)

kernel_name = 'gated_mix__sliding_block__linear_attn_block__prompt'

def setup_inputs():

    _w = (lambda a: (lambda t: t.to(torch.bfloat16) if t.is_floating_point() else t)(torch.as_tensor(a)))
    def _A_setup():
        B, S, D = 1, 2048, 640
        return {
            "x": _w((lambda *s: torch.randn(*s, dtype=torch.bfloat16) * 0.05)(B, S, D)),
            "wqkv": _w((lambda *s: torch.randn(*s, dtype=torch.bfloat16) * 0.8)(D, 3 * D)),
            "wo": _w((lambda *s: torch.randn(*s, dtype=torch.bfloat16) * 0.05)(D, D)),
        }
    _A_in = _A_setup()

    def _B_setup():
        B, S, D = 1, 2048, 640
        return {
            "x": _w((lambda *s: torch.randn(*s, dtype=torch.bfloat16) * 0.05)(B, S, D)),
            "wqkv": _w((lambda *s: torch.randn(*s, dtype=torch.bfloat16) * 1.6)(D, 3 * D)),
            "wo": _w((lambda *s: torch.randn(*s, dtype=torch.bfloat16) * 0.4)(D, D)),
        }
    _B_in = _B_setup()

    return {
        "A_x": _A_in["x"],
        "A_wqkv": _A_in["wqkv"],
        "A_wo": _A_in["wo"],
        "B_x": _B_in["x"],
        "B_wqkv": _B_in["wqkv"],
        "B_wo": _B_in["wo"],
        "gate_w": _w((lambda *s: torch.randn(*s, dtype=torch.bfloat16) * 0.05)(640) * 16.0),
    }

def reference(A_x, A_wqkv, A_wo, B_x, B_wqkv, B_wo, gate_w):
    def _A_ref(x, wqkv, wo):
        B, S, D = x.shape
        H = 32; Dh = D // H; W = 256
        qkv = (lambda x, *d: x.permute(*d))((x @ wqkv).reshape(B, S, 3, H, Dh), 2, 0, 3, 1, 4)
        q, k, v = qkv[0], qkv[1], qkv[2]
        scores = torch.einsum("bhqd,bhkd->bhqk", q, k) * (Dh ** -0.5)
        idx = torch.arange(S)
        mask = (idx[:, None] - idx[None, :] >= 0) & (idx[:, None] - idx[None, :] < W)
        scores = torch.where(mask[None, None], scores, -1e9)
        p = _softmax(scores, axis=-1)
        o = torch.einsum("bhqk,bhkd->bhqd", p, v)
        return (lambda x, *d: x.permute(*d))(o, 0, 2, 1, 3).reshape(B, S, D) @ wo

    def _B_ref(x, wqkv, wo):
        B, S, D = x.shape
        H = 32; Dh = D // H
        qkv = (lambda x, *d: x.permute(*d))((x @ wqkv).reshape(B, S, 3, H, Dh), 2, 0, 3, 1, 4)
        q, k, v = qkv[0], qkv[1], qkv[2]
        phi = lambda t: torch.where(t > 0, t + 1, torch.exp(t)) + 1e-6
        pq, pk = phi(q), phi(k)
        kv = torch.einsum("bhsd,bhse->bhde", pk, v)
        z = torch.einsum("bhsd->bhd", pk)
        num = torch.einsum("bhqd,bhde->bhqe", pq, kv)
        den = torch.einsum("bhqd,bhd->bhq", pq, z)[..., None] + 1e-6
        o = num / den
        return (lambda x, *d: x.permute(*d))(o, 0, 2, 1, 3).reshape(B, S, D) @ wo

    x = A_x
    g = _sigmoid((x * gate_w).sum(-1, keepdims=True))
    a = _A_ref(x, A_wqkv, A_wo)
    b = _B_ref(x, B_wqkv, B_wo)
    return g * a + (1 - g) * b
```

```python
import re

REG_RE = re.compile(r'^(-|abs\()?\s*([vsa])(\d+|\[(\d+):(\d+)\])\)?$')

TRANS = ('v_exp_f32', 'v_log_f32', 'v_rcp_f32', 'v_rsq_f32', 'v_sqrt_f32', 'v_sin_f32', 'v_cos_f32')


def parse_reg(tok):
    tok = tok.strip()
    if tok in ('vcc', 'exec', 'm0', 'scc'):
        return [(tok, 0)]
    if tok in ('vcc_lo', 'vcc_hi'):
        return [('vcc', 0)]
    if tok in ('exec_lo', 'exec_hi'):
        return [('exec', 0)]
    t = tok
    if t.startswith('-'):
        t = t[1:]
    if t.startswith('abs(') and t.endswith(')'):
        t = t[4:-1]
    if t.startswith('|') and t.endswith('|'):
        t = t[1:-1]
    m = re.match(r'^([vsa])(\d+)$', t)
    if m:
        return [(m.group(1), int(m.group(2)))]
    m = re.match(r'^([vsa])\[(\d+):(\d+)\]$', t)
    if m:
        return [(m.group(1), i) for i in range(int(m.group(2)), int(m.group(3)) + 1)]
    return []


def split_ops(s):
    out, depth, cur = [], 0, ''
    for ch in s:
        if ch in '[(':
            depth += 1
        if ch in '])':
            depth -= 1
        if ch == ',' and depth == 0:
            out.append(cur.strip())
            cur = ''
        else:
            cur += ch
    if cur.strip():
        out.append(cur.strip())
    return out


class Ins:
    __slots__ = ('text', 'op', 'kind', 'wr', 'rd', 'srcc', 'ab', 'passes', 'ws', 'trans', 'wide_store', 'lds_dma',
                 'sdata')

    def __init__(self, text):
        self.text = text
        body = text.split(';')[0].strip()
        parts = body.split(None, 1)
        self.op = op = parts[0]
        rest = parts[1] if len(parts) > 1 else ''
        ops = split_ops(rest)
        mods = []
        if ops:
            last = ops[-1].split()
            ops[-1] = last[0] if last else ''
            mods = last[1:]
        self.wr, self.rd, self.srcc, self.ab = set(), set(), set(), set()
        self.passes = 0
        self.ws = 1
        self.trans = False
        self.wide_store = False
        self.lds_dma = False
        self.sdata = set()
        R = lambda t: set(parse_reg(t))
        if op == 's_nop':
            self.kind = 'nop'
            self.ws = int(ops[0], 0) + 1
        elif op.startswith('v_mfma'):
            self.kind = 'mfma'
            self.wr = R(ops[0])
            self.ab = R(ops[1]) | R(ops[2])
            self.srcc = R(ops[3])
            self.rd = self.ab | self.srcc
            self.passes = 8 if '32x32' in op else 4
        elif op.startswith('v_cmp'):
            self.kind = 'valu'
            self.wr = R(ops[0])
            for o in ops[1:]:
                self.rd |= R(o)
            if op.startswith('v_cmpx'):
                raise ValueError('v_cmpx not supported')
        elif op.startswith('v_permlane') or op.startswith('v_swap'):
            self.kind = 'valu'
            self.wr = R(ops[0]) | R(ops[1])
            self.rd = set(self.wr)
        elif op.startswith('v_'):
            self.kind = 'valu'
            self.wr = R(ops[0])
            srcs = ops[1:]
            if '_co_' in op:
                self.wr |= R(ops[1])
                srcs = ops[2:]
            for o in srcs:
                self.rd |= R(o)
            if op.startswith(('v_fmac', 'v_mac', 'v_pk_fmac', 'v_writelane', 'v_dot2c')):
                self.rd |= R(ops[0])
            if op.startswith('v_cndmask') and len(ops) == 3:
                self.rd |= {('vcc', 0)}
            base = op.replace('_e32', '').replace('_e64', '')
            self.trans = base in TRANS
        elif op.startswith('ds_read') or op.startswith('ds_bpermute') or op.startswith('ds_permute') \
                or op.startswith('ds_swizzle'):
            self.kind = 'ds'
            self.wr = R(ops[0])
            for o in ops[1:]:
                self.rd |= R(o)
        elif op.startswith('ds_'):
            self.kind = 'ds'
            for o in ops:
                self.rd |= R(o)
        elif op.startswith(('buffer_load', 'global_load', 'flat_load')):
            self.kind = 'vmem'
            if 'lds' in mods or '_lds_' in op:
                self.lds_dma = True
                for o in ops:
                    self.rd |= R(o)
                self.rd |= {('m0', 0)}
            else:
                self.wr = R(ops[0])
                for o in ops[1:]:
                    self.rd |= R(o)
        elif op.startswith(('buffer_store', 'global_store', 'buffer_atomic', 'global_atomic')):
            self.kind = 'vmem'
            for o in ops:
                self.rd |= R(o)
            if op.startswith('buffer_'):
                self.sdata = R(ops[0])
            else:
                self.sdata = R(ops[1])
            if 'atomic' in op and 'sc0' in mods:
                if op.startswith('buffer_'):
                    self.wr = R(ops[0])
                else:
                    self.wr = R(ops[0])
                    self.sdata = R(ops[2])
            self.wide_store = len(self.sdata) >= 3
        elif op.startswith('buffer_') :
            self.kind = 'vmem'
        elif op.startswith('s_load') or op.startswith('s_memtime') or op.startswith('s_memrealtime') \
                or op.startswith('s_atomic') or op.startswith('s_buffer_load'):
            self.kind = 'smem'
            self.wr = R(ops[0])
            for o in ops[1:]:
                self.rd |= R(o)
        elif op.startswith('s_'):
            self.kind = 'salu'
            if op.startswith(('s_cmp', 's_waitcnt', 's_barrier', 's_branch', 's_cbranch', 's_endpgm', 's_setprio',
                              's_sleep', 's_bitcmp', 's_sethalt', 's_setreg')):
                for o in ops:
                    self.rd |= R(o)
            else:
                if ops:
                    self.wr = R(ops[0])
                for o in ops[1:]:
                    self.rd |= R(o)
                if 'saveexec' in op:
                    self.wr |= {('exec', 0)}
        else:
            raise ValueError('unknown instruction: ' + text)


def need_between(p, c):
    n = 0
    vreg = lambda s: {r for r in s if r[0] in 'va'}
    sreg = lambda s: {r for r in s if r[0] in ('s', 'vcc')}
    if p.kind == 'valu':
        pw = vreg(p.wr)
        if c.kind == 'mfma' and pw & c.rd:
            n = max(n, 2)
        if c.kind == 'valu':
            if p.trans and not c.trans and pw & c.rd:
                n = max(n, 1)
            if c.op.startswith(('v_readfirstlane', 'v_readlane')) and pw & c.rd:
                n = max(n, 1)
            if c.op.startswith('v_permlane') and pw & c.rd:
                n = max(n, 2)
            if ('dpp' in c.text or 'row_' in c.text or 'quad_perm' in c.text) and pw & c.rd:
                n = max(n, 2)
            if ('op_sel' in p.text or 'sdwa' in p.text or 'dst_sel' in p.text) and pw & (c.rd | c.wr):
                n = max(n, 1)
        ps = sreg(p.wr)
        if ps:
            if c.kind == 'valu' and ps & c.rd:
                n = max(n, 4 if c.op.startswith(('v_readlane', 'v_writelane', 'v_div_fmas')) else 2)
            if c.kind == 'vmem' and ps & c.rd:
                n = max(n, 5)
            if c.kind in ('salu', 'smem') and ps & c.rd:
                n = max(n, 2)
    if p.kind == 'mfma':
        big = p.passes == 8
        if c.kind == 'mfma':
            if p.wr & c.ab:
                n = max(n, 12 if big else 8)
            if p.wr & c.srcc:
                if p.wr == c.srcc and p.passes == c.passes:
                    pass
                else:
                    n = max(n, 10 if big else 6)
            if p.wr & c.wr and not (p.wr & c.srcc):
                n = max(n, 12 if big else 8)
        elif c.kind in ('valu', 'vmem', 'ds'):
            if p.wr & (c.rd | c.wr):
                n = max(n, 12 if big else 8)
            if c.kind == 'valu' and p.srcc & c.wr:
                n = max(n, 7 if big else 3)
    if p.kind == 'salu' and ('m0', 0) in p.wr and c.lds_dma:
        n = max(n, 1)
    if p.kind == 'vmem' and p.wide_store and p.sdata & c.wr:
        n = max(n, 2 if c.kind in ('valu', 'mfma') else 1)
    return n


class Asm:
    def __init__(self):
        self.items = []
        self.nops_inserted = []

    def __call__(self, text):
        for line in text.strip().split('\n'):
            line = line.strip()
            if not line or line.startswith(';'):
                if line:
                    self.items.append(('t', '    ' + line))
                continue
            if line.endswith(':'):
                self.items.append(('l', line[:-1]))
            elif line.startswith('.'):
                self.items.append(('t', line))
            else:
                self.items.append(('i', Ins(line)))

    def raw(self, text):
        self.items.append(('t', text))

    def label(self, name):
        self.items.append(('l', name))

    def barrier_hazards(self):
        self.items.append(('r', None))

    def finish(self):
        out = []
        hist = []
        for kind, it in self.items:
            if kind == 'r':
                hist = []
                continue
            if kind != 'i':
                out.append((kind, it))
                continue
            need = 0
            dist = 0
            for p in reversed(hist):
                req = need_between(p, it)
                if req > dist:
                    need = max(need, req - dist)
                dist += p.ws
                if dist > 24:
                    break
            while need > 0:
                k = min(need, 16)
                nop = Ins('s_nop %d' % (k - 1))
                out.append(('i', nop))
                hist.append(nop)
                self.nops_inserted.append((it.text, k))
                need -= k
            out.append((kind, it))
            hist.append(it)
            if len(hist) > 40:
                hist = hist[-40:]
        self.final = out
        self.check_backedges()
        lines = []
        for kind, it in out:
            if kind == 'i':
                lines.append('    ' + it.text)
            elif kind == 'l':
                lines.append(it + ':')
            else:
                lines.append(it)
        return '\n'.join(lines) + '\n'

    def check_backedges(self):
        pos = {}
        for i, (k, it) in enumerate(self.final):
            if k == 'l':
                pos[it] = i
        for i, (k, it) in enumerate(self.final):
            if k == 'i' and it.op.startswith(('s_branch', 's_cbranch')):
                tgt = it.text.split()[1]
                if tgt not in pos:
                    continue
                before = [x for kk, x in self.final[max(0, i - 40):i + 1] if kk == 'i']
                after = [x for kk, x in self.final[pos[tgt]:pos[tgt] + 60] if kk == 'i'][:30]
                d_after = 0
                for c in after:
                    dist = d_after
                    for p in reversed(before):
                        req = need_between(p, c)
                        if req > dist:
                            raise RuntimeError('hazard across branch to %s: [%s] -> [%s] needs %d has %d'
                                               % (tgt, p.text, c.text, req, dist))
                        dist += p.ws
                        if dist > 24:
                            break
                    d_after += c.ws
                    if d_after > 24:
                        break
```

```python
import sys, os, math, struct
sys.path.insert(0, os.path.dirname(os.path.abspath(__file__)))
from asmdsl import Asm

NAME = 'gated_mix__sliding_block__linear_attn_block__prompt'
S, D, H, DH = 2048, 640, 32, 20

QA = 0
KA = QA + H * S * 40
VTA = KA + H * S * 40
PQB = VTA + 640 * S * 2
KVP = PQB + H * S * 40
GG = KVP + 16 * 32 * 1680
OF = GG + 8192
WOF = OF + S * 1280 * 2
WS_END = WOF + 1280 * 640 * 2
WS_SIZE = 268435456


def f32(x):
    return '0x%08x' % struct.unpack('<I', struct.pack('<f', x))[0]


LOG2E = 1.4426950408889634
SRD3 = '0x00020000'


def vr(a, n=1):
    return 'v%d' % a if n == 1 else 'v[%d:%d]' % (a, a + n - 1)


def sr(a, n=1):
    return 's%d' % a if n == 1 else 's[%d:%d]' % (a, a + n - 1)


def make_srd(a, d, ptr, size):
    a('s_mov_b32 s%d, s%d' % (d, ptr))
    a('s_and_b32 s%d, s%d, 0xffff' % (d + 1, ptr + 1))
    a('s_mov_b32 s%d, %d' % (d + 2, size))
    a('s_mov_b32 s%d, %s' % (d + 3, SRD3))


def make_srd_off(a, d, ptr, off, size):
    a('s_add_u32 s%d, s%d, %d' % (d, ptr, off))
    a('s_addc_u32 s%d, s%d, 0' % (d + 1, ptr + 1))
    a('s_and_b32 s%d, s%d, 0xffff' % (d + 1, d + 1))
    a('s_mov_b32 s%d, %d' % (d + 2, size))
    a('s_mov_b32 s%d, %s' % (d + 3, SRD3))


def kernel_header(a, name):
    a.raw('.globl %s' % name)
    a.raw('.p2align 8')
    a.raw('.type %s,@function' % name)
    a.label(name)
    a.barrier_hazards()


def kernel_desc(name, vgpr, sgpr=102, accum=None):
    if accum is None:
        accum = (vgpr + 3) // 4 * 4
    return f'''.p2align 6
.amdhsa_kernel {name}
  .amdhsa_next_free_vgpr {vgpr}
  .amdhsa_next_free_sgpr {sgpr}
  .amdhsa_accum_offset {accum}
  .amdhsa_group_segment_fixed_size 0
  .amdhsa_kernarg_size 80
  .amdhsa_user_sgpr_count 2
  .amdhsa_user_sgpr_kernarg_segment_ptr 1
  .amdhsa_system_sgpr_workgroup_id_x 1
.end_amdhsa_kernel
'''


K1_SLOT = 47104
K1_WOFF = 16384
K1_GATE = 3 * K1_SLOT
K1_WOSCR = K1_GATE + 2048
K1_LDS = K1_WOSCR + 8192


def gen_k1(a):
    name = 'k1_qkv_kernel'
    kernel_header(a, name)
    a('s_cmp_ge_u32 s2, 256')
    a('s_cbranch_scc1 K1_END')
    a('s_load_dwordx16 s[4:19], s[0:1], 0')
    a('s_load_dwordx4 s[20:23], s[0:1], 64')
    a('v_lshrrev_b32 v1, 6, v0')
    a('v_and_b32 v2, 63, v0')
    a('v_readfirstlane_b32 s24, v1')
    a('s_and_b32 s25, s2, 7')
    a('s_lshr_b32 s26, s2, 3')
    a('s_and_b32 s27, s25, 3')
    a('s_lshl_b32 s27, s27, 2')
    a('s_and_b32 s28, s26, 3')
    a('s_add_u32 s27, s27, s28')
    a('s_lshr_b32 s28, s25, 2')
    a('s_lshl_b32 s28, s28, 3')
    a('s_lshr_b32 s29, s26, 2')
    a('s_add_u32 s28, s28, s29')
    a('s_lshr_b32 s29, s27, 3')
    a('s_and_b32 s30, s27, 7')
    a('s_cmp_ge_u32 s24, 4')
    a('s_cbranch_scc0 K1_CONS')

    a('s_sub_u32 s31, s24, 4')
    a('v_lshrrev_b32 v3, 3, v2')
    a('v_and_b32 v4, 7, v2')
    a('v_lshrrev_b32 v5, 1, v3')
    a('v_xor_b32 v4, v4, v5')
    a('v_lshlrev_b32 v4, 4, v4')
    a('v_mul_u32_u24 v3, 1280, v3')
    a('v_add_u32 v10, v3, v4')
    a('v_xor_b32 v11, 64, v10')
    a('v_add_u32 v11, 10240, v11')
    a('v_add_u32 v12, 20480, v10')
    a('v_add_u32 v13, 20480, v11')
    a('v_cmp_lt_u32 vcc, 29, v2')
    a('v_cndmask_b32 v3, 0, 1, vcc')
    a('v_mul_u32_u24 v4, 30, v3')
    a('v_sub_u32 v4, v2, v4')
    a('v_mul_u32_u24 v5, 26, v4')
    a('v_lshrrev_b32 v5, 8, v5')
    a('v_mul_u32_u24 v6, 10, v5')
    a('v_sub_u32 v6, v4, v6')
    a('v_mul_u32_u24 v3, 3840, v3')
    a('v_mul_u32_u24 v5, 1280, v5')
    a('v_lshlrev_b32 v6, 4, v6')
    a('v_add3_u32 v14, v3, v5, v6')
    for ii in range(1, 8):
        koff = 8 * ((ii >> 1) & 1) + 4 * ((ii >> 2) & 1) + 2 * (ii & 1)
        a('v_add_u32 v%d, %d, v14' % (14 + ii, koff * 3840))
    a('v_lshrrev_b32 v3, 2, v2')
    a('v_mul_u32_u24 v3, 1280, v3')
    a('v_and_b32 v4, 3, v2')
    a('v_lshlrev_b32 v4, 4, v4')
    a('v_add_u32 v22, v3, v4')
    a('v_lshlrev_b32 v23, 4, v2')
    a('s_lshl_b32 s32, s28, 7')
    a('s_lshl_b32 s33, s31, 5')
    a('s_add_u32 s32, s32, s33')
    a('s_mul_i32 s32, s32, 1280')
    a('s_mul_i32 s33, s31, %d' % (16 * 3840))
    a('s_mul_i32 s34, s30, 160')
    a('s_add_u32 s33, s33, s34')
    a('s_lshl_b32 s34, s31, 12')
    a('s_mul_i32 s35, s31, 7680')
    a('s_add_u32 s35, s35, %d' % K1_WOFF)
    a('s_mul_i32 s36, s2, 52429')
    a('s_lshr_b32 s36, s36, 18')
    a('s_mul_i32 s37, s36, 5')
    a('s_sub_u32 s37, s2, s37')
    a('s_waitcnt lgkmcnt(0)')
    make_srd(a, 40, 4, S * D * 2)
    a('s_cmp_eq_u32 s29, 0')
    a('s_cselect_b32 s44, s6, s12')
    a('s_cselect_b32 s45, s7, s13')
    a('s_and_b32 s45, s45, 0xffff')
    a('s_mov_b32 s46, %d' % (D * 3 * D * 2))
    a('s_mov_b32 s47, %s' % SRD3)

    def issue_stage(slot_sgpr):
        a('s_add_u32 s38, %s, s34' % slot_sgpr)
        a('s_add_u32 s39, %s, s35' % slot_sgpr)
        for ii in range(4):
            a('s_add_u32 m0, s38, %d' % (ii * 1024))
            a('buffer_load_dwordx4 v%d, s[40:43], s32 offen lds' % (10 + ii))
        a('s_mov_b64 exec, s[48:49]')
        for ii in range(8):
            a('s_add_u32 m0, s39, %d' % (ii * 960))
            a('buffer_load_dwordx4 v%d, s[44:47], s33 offen lds' % (14 + ii))
        a('s_mov_b64 exec, -1')
        a('s_add_u32 s32, s32, 128')
        a('s_add_u32 s33, s33, %d' % (64 * 3840))

    a('s_mov_b32 s48, -1')
    a('s_mov_b32 s49, 0x0fffffff')
    a('s_mov_b32 s50, 0')
    issue_stage('s50')
    a('s_cmp_lg_u32 s31, 0')
    a('s_cbranch_scc1 K1_L_NOGATE')
    make_srd(a, 52, 16, 1280)
    a('s_mov_b32 m0, %d' % K1_GATE)
    a('buffer_load_dwordx4 v23, s[52:55], 0 offen lds')
    a('s_mov_b32 m0, %d' % (K1_GATE + 1024))
    a('s_mov_b32 s56, 1024')
    a('buffer_load_dwordx4 v23, s[52:55], s56 offen lds')
    a.label('K1_L_NOGATE')
    a('s_cmp_ge_u32 s2, 200')
    a('s_cbranch_scc1 K1_L_NOWO')
    a('s_cmp_lt_u32 s36, 20')
    a('s_cselect_b32 s52, s8, s14')
    a('s_cselect_b32 s53, s9, s15')
    a('s_cselect_b32 s57, 0, 20')
    a('s_and_b32 s53, s53, 0xffff')
    a('s_mov_b32 s54, %d' % (D * D * 2))
    a('s_mov_b32 s55, %s' % SRD3)
    a('s_sub_u32 s57, s36, s57')
    a('s_mul_i32 s57, s57, %d' % (32 * 1280))
    a('s_lshl_b32 s56, s37, 8')
    a('s_add_u32 s57, s57, s56')
    a('s_lshl_b32 s56, s31, 6')
    a('s_add_u32 s57, s57, s56')
    a('s_lshl_b32 s56, s31, 11')
    a('s_add_u32 s56, s56, %d' % K1_WOSCR)
    a('s_mov_b32 m0, s56')
    a('buffer_load_dwordx4 v22, s[52:55], s57 offen lds')
    a('s_add_u32 m0, s56, 1024')
    a('s_add_u32 s57, s57, %d' % (16 * 1280))
    a('buffer_load_dwordx4 v22, s[52:55], s57 offen lds')
    a.label('K1_L_NOWO')
    a('s_mov_b32 s50, %d' % K1_SLOT)
    issue_stage('s50')
    a('s_mov_b32 s50, %d' % (2 * K1_SLOT))
    issue_stage('s50')
    a('s_waitcnt vmcnt(24)')
    a('s_barrier')
    a('s_mov_b32 s50, 0')
    a('s_mov_b32 s51, 1')
    a.label('K1_L_LOOP')
    a('s_waitcnt vmcnt(12)')
    a('s_barrier')
    issue_stage('s50')
    a('s_add_u32 s50, s50, %d' % K1_SLOT)
    a('s_cmp_eq_u32 s50, %d' % (3 * K1_SLOT))
    a('s_cselect_b32 s50, 0, s50')
    a('s_add_u32 s51, s51, 1')
    a('s_cmp_lt_u32 s51, 8')
    a('s_cbranch_scc1 K1_L_LOOP')
    a('s_waitcnt vmcnt(12)')
    a('s_barrier')
    a('s_waitcnt vmcnt(0)')
    a('s_barrier')
    a('s_barrier')
    a('s_cmp_ge_u32 s2, 200')
    a('s_cbranch_scc1 K1_END')
    a('v_lshrrev_b32 v3, 4, v2')
    a('v_lshlrev_b32 v3, 9, v3')
    a('v_bfe_u32 v4, v2, 2, 2')
    a('v_lshlrev_b32 v4, 6, v4')
    a('v_and_b32 v5, 3, v2')
    a('v_lshlrev_b32 v5, 3, v5')
    a('v_add3_u32 v3, v3, v4, v5')
    a('v_add_u32 v3, s56, v3')
    for tt in range(2):
        for j4 in range(2):
            a('ds_read_b64_tr_b16 v[%d:%d], v3 offset:%d' % (24 + tt * 4 + j4 * 2, 25 + tt * 4 + j4 * 2,
                                                            j4 * 256 + tt * 32))
    make_srd(a, 52, 22, WS_SIZE)
    a('s_lshl_b32 s57, s37, 3')
    a('s_lshl_b32 s58, s31, 1')
    a('s_add_u32 s57, s57, s58')
    a('s_mul_i32 s57, s57, 40')
    a('s_add_u32 s57, s57, s36')
    a('s_lshl_b32 s57, s57, 10')
    a('s_add_u32 s57, s57, %d' % WOF)
    a('s_add_u32 s58, s57, %d' % (40 * 1024))
    a('s_waitcnt lgkmcnt(0)')
    a('buffer_store_dwordx4 v[24:27], v23, s[52:55], s57 offen')
    a('buffer_store_dwordx4 v[28:31], v23, s[52:55], s58 offen')
    a('s_branch K1_END')

    a.label('K1_CONS')
    a.barrier_hazards()
    F0, F1, ACC = 16, 64, 112
    a('s_lshr_b32 s31, s24, 1')
    a('s_and_b32 s32, s24, 1')
    a('v_and_b32 v3, 15, v2')
    a('v_lshrrev_b32 v4, 4, v2')
    a('v_bfe_u32 v5, v2, 2, 2')
    a('v_and_b32 v6, 3, v2')
    a('v_lshrrev_b32 v7, 1, v3')
    a('v_xor_b32 v7, v4, v7')
    a('v_lshlrev_b32 v7, 4, v7')
    a('v_lshl_add_u32 v8, v3, 7, v7')
    a('s_lshl_b32 s33, s31, 13')
    a('v_add_u32 v8, s33, v8')
    a('v_xor_b32 v9, 64, v8')
    a('v_lshrrev_b32 v7, 1, v4')
    a('v_lshlrev_b32 v7, 4, v7')
    a('v_and_b32 v1, 1, v4')
    a('v_lshl_add_u32 v7, v1, 2, v7')
    a('v_add_u32 v7, v7, v5')
    a('v_mul_u32_u24 v7, 480, v7')
    a('v_add_u32 v7, %d, v7' % K1_WOFF)
    a('v_mul_u32_u24 v1, 40, v6')
    a('v_add_u32 v10, v7, v1')
    a('v_lshl_add_u32 v11, v6, 3, v7')
    a('v_lshlrev_b32 v7, 4, v4')
    a('v_add_u32 v7, %d, v7' % K1_GATE)
    for r in range(128):
        a('v_mov_b32 v%d, 0' % (ACC + r))
    for i in range(4):
        a('v_mov_b32 v%d, v%d' % (12 + i, 8 + i))
    a('s_mov_b32 s34, 0')
    a('s_mov_b32 s35, 0')
    a('s_waitcnt lgkmcnt(0)')
    make_srd(a, 40, 22, WS_SIZE)
    a('s_lshl_b32 s36, s29, 1')
    a('s_add_u32 s36, s36, s32')
    a('s_cmp_eq_u32 s36, 1')
    a('s_cbranch_scc1 K1_V1')
    a('s_cmp_eq_u32 s36, 2')
    a('s_cbranch_scc1 K1_V2')
    a('s_cmp_eq_u32 s36, 3')
    a('s_cbranch_scc1 K1_V3')

    def tl_p1(sec, ct):
        return ('w', sec, ct, 'A', 8 * ct, 'WX')

    def tl_p2(sec, ct):
        return ('w', sec, ct, 'B', 32 * ct, 'XW')

    def tl_p3(sec, ct):
        return ('w', sec, ct, 'B', 40 * ct, 'XW') if ct < 4 else ('w', sec, ct, 'A', 32, 'XW')

    variants = [
        [tl_p1(0, c) for c in range(5)] + [tl_p1(1, c) for c in range(3)],
        [tl_p1(1, 3), tl_p1(1, 4)] + [tl_p2(2, c) for c in range(5)] + [('gate',)],
        [tl_p1(0, c) for c in range(5)] + [tl_p3(1, c) for c in range(3)],
        [tl_p3(1, 3), tl_p3(1, 4)] + [tl_p3(2, c) for c in range(5)],
    ]

    def reads(tiles, F, u):
        L = []
        for rt in range(4):
            L.append('ds_read_b128 %s, v%d offset:%d' % (vr(F + 4 * rt, 4), 12 + u, rt * 2048))
        for t, tile in enumerate(tiles):
            b = F + 16 + 4 * t
            if tile[0] == 'gate':
                L.append('ds_read_b128 %s, v7 offset:%d' % (vr(b, 4), u * 64))
            else:
                _, sec, ct, pat, tcol, _o = tile
                for j4 in range(2):
                    off = (32 * u + 8 * j4) * 480 + sec * 160 + tcol
                    L.append('ds_read_b64_tr_b16 %s, v%d offset:%d' % (vr(b + 2 * j4, 2), 14 if pat == 'A' else 15, off))
        return L

    def mfmas(tiles, F):
        L = []
        for t, tile in enumerate(tiles):
            for rt in range(4):
                acc = vr(ACC + (t * 4 + rt) * 4, 4)
                xf = vr(F + 4 * rt, 4)
                wf = vr(F + 16 + 4 * t, 4)
                o = 'WX' if tile[0] == 'gate' else tile[5]
                if o == 'WX':
                    L.append('v_mfma_f32_16x16x32_bf16 %s, %s, %s, %s' % (acc, wf, xf, acc))
                else:
                    L.append('v_mfma_f32_16x16x32_bf16 %s, %s, %s, %s' % (acc, xf, wf, acc))
        return L

    def interleave(ms, rs):
        i = 0
        for m in ms:
            a(m)
            if i < len(rs):
                a(rs[i])
                i += 1
        while i < len(rs):
            a(rs[i])
            i += 1

    def accr(t, rt, r=0):
        return ACC + (t * 4 + rt) * 4 + r

    def phi(reg, tmp):
        a('v_mul_f32 v%d, s60, v%d' % (tmp, reg))
        a('v_exp_f32 v%d, v%d' % (tmp, tmp))
        a('v_add_f32 v%d, 1.0, v%d' % (reg, reg))
        a('v_med3_f32 v%d, v%d, v%d, 1.0' % (reg, tmp, reg))
        a('v_add_f32 v%d, s61, v%d' % (reg, reg))

    def phi_many(regs, tmpbase):
        for i in range(0, len(regs), 8):
            grp = regs[i:i + 8]
            for j, r in enumerate(grp):
                a('v_mul_f32 v%d, s60, v%d' % (tmpbase + j, r))
            for j, r in enumerate(grp):
                a('v_exp_f32 v%d, v%d' % (tmpbase + j, tmpbase + j))
            for j, r in enumerate(grp):
                a('v_add_f32 v%d, 1.0, v%d' % (r, r))
            for j, r in enumerate(grp):
                a('v_med3_f32 v%d, v%d, v%d, 1.0' % (r, tmpbase + j, r))
            for j, r in enumerate(grp):
                a('v_add_f32 v%d, s61, v%d' % (r, r))

    def store_rowmajor(tile_ids, dim0, region, stage):
        a('s_add_u32 s38, s37, %d' % region)
        n = len(tile_ids)
        for rt in range(4):
            st = stage + (rt & 1) * 12
            for idx, t in enumerate(tile_ids):
                a('v_cvt_pk_bf16_f32 v%d, v%d, v%d' % (st + 2 * idx, accr(t, rt, 0), accr(t, rt, 1)))
                a('v_cvt_pk_bf16_f32 v%d, v%d, v%d' % (st + 2 * idx + 1, accr(t, rt, 2), accr(t, rt, 3)))
            d = 0
            while d < 2 * n:
                w = 4 if 2 * n - d >= 4 else 2
                a('buffer_store_dwordx%d %s, v1, s[40:43], s38 offen offset:%d'
                  % (w, vr(st + d, w), rt * 640 + dim0 * 2 + d * 4))
                d += w

    for vi, tiles in enumerate(variants):
        br, ni = vi >> 1, vi & 1
        a.label('K1_V%d' % vi)
        a.barrier_hazards()
        a('s_barrier')
        for r in reads(tiles, F0, 0):
            a(r)
        a('s_waitcnt lgkmcnt(0)')
        a.label('K1_V%d_LOOP' % vi)
        interleave(mfmas(tiles, F0), reads(tiles, F1, 1))
        a('s_add_u32 s34, s34, %d' % K1_SLOT)
        a('s_cmp_eq_u32 s34, %d' % (3 * K1_SLOT))
        a('s_cselect_b32 s34, 0, s34')
        for i in range(4):
            a('v_add_u32 v%d, s34, v%d' % (12 + i, 8 + i))
        if tiles[-1][0] == 'gate':
            a('v_add_u32 v7, 128, v7')
        a('s_waitcnt lgkmcnt(0)')
        a('s_barrier')
        interleave(mfmas(tiles, F1), reads(tiles, F0, 0))
        a('s_add_u32 s35, s35, 1')
        a('s_cmp_lt_u32 s35, 10')
        a('s_waitcnt lgkmcnt(0)')
        a('s_cbranch_scc1 K1_V%d_LOOP' % vi)
        a('v_lshl_add_u32 v1, v4, 11, v3')
        a('v_mul_u32_u24 v1, 40, v1')
        a('s_lshl_b32 s37, s30, 13')
        a('s_lshl_b32 s38, s28, 7')
        a('s_add_u32 s37, s37, s38')
        a('s_lshl_b32 s38, s31, 6')
        a('s_add_u32 s37, s37, s38')
        a('s_mul_i32 s37, s37, 40')
        a('s_mov_b32 s60, %s' % f32(LOG2E))
        a('s_mov_b32 s61, %s' % f32(1e-6))
        ST = 16
        if vi == 0:
            store_rowmajor([0, 1, 2, 3, 4], 0, QA, ST)
            store_rowmajor([5, 6, 7], 0, KA, ST + 24)
        elif vi == 1:
            store_rowmajor([0, 1], 12, KA, ST)
            a('v_lshlrev_b32 v1, 12, v3')
            a('v_lshl_add_u32 v1, v4, 4, v1')
            a('s_mul_i32 s37, s30, %d' % (80 * 4096))
            a('s_lshl_b32 s38, s28, 8')
            a('s_add_u32 s37, s37, s38')
            a('s_lshl_b32 s38, s31, 7')
            a('s_add_u32 s37, s37, s38')
            a('s_add_u32 s37, s37, %d' % VTA)
            for ct in range(5):
                t = 2 + ct
                for rp in range(2):
                    st = ST + 24 + ((ct * 2 + rp) & 3) * 4
                    for h2 in range(2):
                        rt = rp * 2 + h2
                        a('v_cvt_pk_bf16_f32 v%d, v%d, v%d' % (st + 2 * h2, accr(t, rt, 0), accr(t, rt, 1)))
                        a('v_cvt_pk_bf16_f32 v%d, v%d, v%d' % (st + 2 * h2 + 1, accr(t, rt, 2), accr(t, rt, 3)))
                    a('buffer_store_dwordx4 %s, v1, s[40:43], s37 offen offset:%d' % (vr(st, 4), rp * 64))
                a('s_add_u32 s37, s37, %d' % (16 * 4096))
            a('s_cmp_lg_u32 s30, 0')
            a('s_cbranch_scc1 K1_END')
            a('v_lshlrev_b32 v1, 2, v3')
            a('s_lshl_b32 s37, s28, 9')
            a('s_lshl_b32 s38, s31, 8')
            a('s_add_u32 s37, s37, s38')
            a('s_add_u32 s37, s37, %d' % GG)
            a('s_mov_b32 s60, %s' % f32(-LOG2E))
            for rt in range(4):
                r = accr(7, rt, 0)
                a('v_mul_f32 v%d, s60, v%d' % (r, r))
                a('v_exp_f32 v%d, v%d' % (r, r))
                a('v_add_f32 v%d, 1.0, v%d' % (r, r))
                a('v_rcp_f32 v%d, v%d' % (r, r))
            a('s_mov_b64 exec, 0xffff')
            for rt in range(4):
                a('buffer_store_dword v%d, v1, s[40:43], s37 offen offset:%d' % (accr(7, rt, 0), rt * 64))
            a('s_mov_b64 exec, -1')
        else:
            SCR = K1_SLOT
            if ni == 0:
                phi_many([accr(t, rt, r) for t in range(8) for rt in range(4) for r in range(4)], 64)
                store_rowmajor([0, 1, 2, 3, 4], 0, PQB, ST)
                fr = [(5, 0), (6, 1), (7, 2)]
            else:
                phi_many([accr(t, rt, r) for t in range(2) for rt in range(4) for r in range(4)], 64)
                fr = [(0, 3), (1, 4)] + [(2 + c, 5 + c) for c in range(5)]
            a('v_lshlrev_b32 v1, 4, v2')
            a('s_lshl_b32 s38, s31, 11')
            a('s_add_u32 s38, s38, %d' % SCR)
            a('v_add_u32 v1, s38, v1')
            for n_, (t, T) in enumerate(fr):
                for rp in range(2):
                    st = 80 + ((n_ * 2 + rp) & 3) * 4
                    for h2 in range(2):
                        rt = rp * 2 + h2
                        a('v_cvt_pk_bf16_f32 v%d, v%d, v%d' % (st + 2 * h2, accr(t, rt, 0), accr(t, rt, 1)))
                        a('v_cvt_pk_bf16_f32 v%d, v%d, v%d' % (st + 2 * h2 + 1, accr(t, rt, 2), accr(t, rt, 3)))
                    a('ds_write_b128 v1, %s offset:%d' % (vr(st, 4), T * 4096 + rp * 1024))
            a('s_branch K1_BKV')
        a('s_branch K1_END')

    a.label('K1_BKV')
    a.barrier_hazards()
    a('s_waitcnt lgkmcnt(0)')
    a('s_barrier')
    SCR = K1_SLOT
    a('v_lshlrev_b32 v1, 4, v2')
    a('v_add_u32 v1, %d, v1' % SCR)
    a('s_lshl_b32 s38, s24, 12')
    a('v_add_u32 v7, s38, v1')
    for G in range(4):
        a('ds_read_b128 %s, v7 offset:%d' % (vr(16 + 4 * G, 4), G * 1024))
        a('ds_read_b128 %s, v1 offset:%d' % (vr(32 + 4 * G, 4), 4 * 4096 + G * 1024))
        a('ds_read_b128 %s, v7 offset:%d' % (vr(48 + 4 * G, 4), 5 * 4096 + G * 1024))
        a('ds_read_b128 %s, v1 offset:%d' % (vr(64 + 4 * G, 4), 9 * 4096 + G * 1024))
    for i in range(4):
        a('v_mov_b32 v%d, 0x3f803f80' % (80 + i))
    a('s_lshl_b32 s37, s28, 5')
    a('s_lshl_b32 s38, s30, 2')
    a('s_add_u32 s37, s37, s38')
    a('s_add_u32 s37, s37, s24')
    a('s_mul_i32 s37, s37, 1680')
    a('s_add_u32 s37, s37, %d' % KVP)
    a('v_mul_u32_u24 v8, 80, v3')
    a('v_lshl_add_u32 v9, v4, 4, v8')
    a('s_lshl_b32 s38, s24, 2')
    a('v_subrev_u32 v10, s38, v3')
    a('v_cmp_gt_u32 s[50:51], 4, v10')
    a('v_cmp_eq_u32 s[52:53], s24, v4')
    a('v_cmp_eq_u32 s[54:55], 0, v3')
    a('v_mul_u32_u24 v10, 80, v10')
    a('v_add_u32 v10, 1280, v10')
    a('v_lshl_add_u32 v11, v4, 4, v10')
    a('v_lshlrev_b32 v12, 4, v4')
    a('s_and_b64 s[56:57], s[50:51], s[52:53]')
    a('s_and_b64 s[58:59], s[54:55], s[52:53]')
    a('s_waitcnt lgkmcnt(0)')
    Dr = [112 + 4 * i for i in range(6)]
    for G in range(4):
        c = lambda i: ('0' if G == 0 else vr(Dr[i], 4))
        kw, k4, vw, v4_ = vr(16 + 4 * G, 4), vr(32 + 4 * G, 4), vr(48 + 4 * G, 4), vr(64 + 4 * G, 4)
        a('v_mfma_f32_16x16x32_bf16 %s, %s, %s, %s' % (vr(Dr[0], 4), kw, vw, c(0)))
        a('v_mfma_f32_16x16x32_bf16 %s, %s, %s, %s' % (vr(Dr[1], 4), kw, v4_, c(1)))
        a('v_mfma_f32_16x16x32_bf16 %s, %s, %s, %s' % (vr(Dr[2], 4), k4, vw, c(2)))
        a('v_mfma_f32_16x16x32_bf16 %s, %s, %s, %s' % (vr(Dr[3], 4), k4, v4_, c(3)))
        a('v_mfma_f32_16x16x32_bf16 %s, %s, v[80:83], %s' % (vr(Dr[4], 4), kw, c(4)))
        a('v_mfma_f32_16x16x32_bf16 %s, %s, v[80:83], %s' % (vr(Dr[5], 4), k4, c(5)))
    a('buffer_store_dwordx4 %s, v9, s[40:43], s37 offen' % vr(Dr[0], 4))
    a('s_mov_b64 exec, s[50:51]')
    a('buffer_store_dwordx4 %s, v11, s[40:43], s37 offen' % vr(Dr[1], 4))
    a('s_mov_b64 exec, s[52:53]')
    a('buffer_store_dwordx4 %s, v8, s[40:43], s37 offen offset:64' % vr(Dr[2], 4))
    a('s_mov_b64 exec, s[56:57]')
    a('buffer_store_dwordx4 %s, v10, s[40:43], s37 offen offset:64' % vr(Dr[3], 4))
    a('s_mov_b64 exec, s[54:55]')
    a('buffer_store_dwordx4 %s, v12, s[40:43], s37 offen offset:1600' % vr(Dr[4], 4))
    a('s_mov_b64 exec, s[58:59]')
    a('buffer_store_dwordx4 %s, v8, s[40:43], s37 offen offset:1664' % vr(Dr[5], 4))
    a.label('K1_END')
    a('s_endpgm')
    return name


K2_KIMG = 15360
K2_VP = 784
K2_VIMG = 20 * K2_VP
K2_ONES = 2 * 784
K2_KV = 21 * 64 + 64
K2_V0 = K2_KIMG
K2_O1 = K2_V0 + K2_VIMG
K2_O2 = K2_O1 + 784
K2_O2 += ((28 - 21) * 16)
K2_KV0 = K2_O2 + 784
K2_HEAD = (K2_KV0 + 2048 + 255) // 256 * 256
K2_LDS = 2 * K2_HEAD


def gen_k2(a):
    name = 'k2_attn_kernel'
    kernel_header(a, name)
    a('s_cmp_ge_u32 s2, 256')
    a('s_cbranch_scc1 K2_END')
    a('s_load_dwordx2 s[22:23], s[0:1], 72')
    a('v_lshrrev_b32 v1, 6, v0')
    a('v_and_b32 v2, 63, v0')
    a('v_readfirstlane_b32 s24, v1')
    a('s_and_b32 s25, s2, 7')
    a('s_lshr_b32 s26, s2, 3')
    a('s_lshl_b32 s27, s25, 1')
    a('s_and_b32 s28, s26, 1')
    a('s_add_u32 s27, s27, s28')
    a('s_lshr_b32 s28, s26, 1')
    a('s_lshr_b32 s29, s24, 2')
    a('s_and_b32 s30, s24, 3')
    a('s_lshl_b32 s31, s27, 1')
    a('s_add_u32 s31, s31, s29')
    a('s_mul_i32 s32, s29, %d' % K2_HEAD)
    a('s_lshl_b32 s33, s28, 7')
    a('s_sub_i32 s34, s33, 256')
    a('v_and_b32 v3, 31, v2')
    a('v_lshrrev_b32 v4, 5, v2')
    a('v_lshlrev_b32 v5, 4, v2')
    a('s_mul_i32 s35, s34, 40')
    a('s_lshl_b32 s36, s30, 10')
    a('s_add_i32 s35, s35, s36')
    a('v_add_u32 v6, s35, v5')
    for i in range(4):
        if i:
            a('v_add_u32 v%d, %d, v6' % (10 + i, i * 4096))
            a('v_max_i32 v%d, 0, v%d' % (10 + i, 10 + i))
        else:
            a('v_max_i32 v10, 0, v6')
    a('s_mul_i32 s36, s31, %d' % (S * 40))
    a('s_lshl_b32 s37, s34, 1')
    a('v_add_u32 v14, s37, v5')
    a('v_max_i32 v14, 0, v14')
    a('s_waitcnt lgkmcnt(0)')
    make_srd_off(a, 40, 22, KA, H * S * 40)
    make_srd_off(a, 44, 22, VTA, 640 * S * 2)
    make_srd_off(a, 48, 22, QA, H * S * 40)
    make_srd_off(a, 52, 22, PQB, H * S * 40)
    make_srd(a, 56, 22, WS_SIZE)
    a('s_lshl_b32 s37, s30, 10')
    a('s_add_u32 s37, s37, s32')
    for i in range(4):
        if i == 3:
            a('s_cmp_eq_u32 s30, 3')
            a('s_cbranch_scc1 K2_SKIPK')
        a('s_add_u32 m0, s37, %d' % (i * 4096))
        a('buffer_load_dwordx4 v%d, s[40:43], s36 offen lds' % (10 + i))
    a.label('K2_SKIPK')
    a('s_lshl_b32 s37, s30, 5')
    a('s_add_u32 s37, s37, s33')
    a('s_mul_i32 s38, s37, 40')
    a('s_add_u32 s38, s38, s36')
    a('v_mul_u32_u24 v7, 40, v3')
    a('v_lshl_add_u32 v8, v4, 4, v7')
    a('buffer_load_dwordx4 v[16:19], v8, s[48:51], s38 offen')
    a('buffer_load_dwordx2 v[20:21], v7, s[48:51], s38 offen offset:32')
    a('s_mul_i32 s39, s31, 20')
    a('s_mul_i32 s60, s30, 5')
    a('s_add_u32 s39, s39, s60')
    a('s_lshl_b32 s39, s39, 12')
    a('s_mul_i32 s60, s30, %d' % (5 * K2_VP))
    a('s_add_u32 s60, s60, s32')
    a('s_add_u32 s60, s60, %d' % K2_V0)
    a('s_mov_b32 exec_hi, 0xffff')
    for i in range(5):
        a('s_add_u32 m0, s60, %d' % (i * K2_VP))
        a('buffer_load_dwordx4 v14, s[44:47], s39 offen lds')
        if i < 4:
            a('s_add_u32 s39, s39, 4096')
    a('s_mov_b32 exec_hi, -1')
    a('v_and_b32 v9, 15, v2')
    a('v_mul_u32_u24 v9, 40, v9')
    a('v_lshrrev_b32 v15, 4, v2')
    a('v_lshl_add_u32 v9, v15, 4, v9')
    a('buffer_load_dwordx4 v[24:27], v9, s[52:55], s38 offen')
    a('buffer_load_dwordx4 v[28:31], v9, s[52:55], s38 offen offset:640')
    a('s_lshl_b32 s39, s30, 9')
    a('v_lshlrev_b32 v22, 3, v2')
    a('v_add_u32 v22, s39, v22')
    a('v_cmp_gt_u32 vcc, 1680, v22')
    a('v_cndmask_b32 v23, -1, v22, vcc')
    a('s_mul_i32 s39, s31, 1680')
    make_srd_off(a, 60, 22, KVP, 16 * 32 * 1680)
    for rb in range(16):
        a('buffer_load_dwordx2 v[%d:%d], v23, s[60:63], s39 offen' % (32 + 2 * rb, 33 + 2 * rb))
        if rb < 15:
            a('s_add_u32 s39, s39, %d' % (32 * 1680))
    a('v_mov_b32 v64, 0x3f803f80')
    a('v_mov_b32 v65, 0x3f803f80')
    a('v_add_u32 v66, s32, v22')
    a('v_cmp_gt_u32 vcc, 784, v22')
    a('s_and_saveexec_b64 s[64:65], vcc')
    a('ds_write_b64 v66, v[64:65] offset:%d' % K2_O1)
    a('ds_write_b64 v66, v[64:65] offset:%d' % K2_O2)
    a('s_mov_b64 exec, s[64:65]')
    a('v_mov_b32 v64, 0')
    a('v_mov_b32 v65, 0')
    a('ds_write_b64 v66, v[64:65] offset:%d' % K2_KV0)
    a('v_lshlrev_b32 v67, 2, v4')
    a('v_sub_u32 v67, v3, v67')
    for r in range(16):
        c = 16 * ((r >> 2) & 1) + 8 * (r >> 3) + (r & 3)
        a('v_cmp_gt_i32 s[%d:%d], %d, v67' % (66 + 2 * r, 67 + 2 * r, c))
    a('v_mov_b32 v64, 0xffff')
    a('v_mov_b32 v65, 0xffff0000')
    for i in range(8):
        a('v_cndmask_b32 v%d, 0, v64, s[%d:%d]' % (68 + i, 66 + 4 * i, 67 + 4 * i))
        a('v_cndmask_b32 v76, 0, v65, s[%d:%d]' % (68 + 4 * i, 69 + 4 * i))
        a('v_or_b32 v%d, v%d, v76' % (68 + i, 68 + i))
    a('v_and_b32 v64, 7, v3')
    a('v_bfe_u32 v65, v3, 3, 1')
    a('v_lshl_add_u32 v64, v65, 4, v64')
    a('v_bfe_u32 v65, v3, 4, 1')
    a('v_lshl_add_u32 v64, v65, 3, v64')
    a('v_mul_u32_u24 v64, 40, v64')
    a('s_mul_i32 s39, s30, 1280')
    a('s_add_u32 s39, s39, s32')
    a('v_add_u32 v64, s39, v64')
    a('v_lshl_add_u32 v65, v4, 4, v64')
    a('v_mul_u32_u24 v66, %d, v3' % K2_VP)
    a('v_add_u32 v66, %d, v66' % K2_V0)
    a('v_cmp_lt_u32 vcc, 19, v3')
    a('v_mov_b32 v76, %d' % K2_O1)
    a('v_cndmask_b32 v66, v66, v76, vcc')
    a('v_cmp_lt_u32 vcc, 27, v3')
    a('v_mov_b32 v76, %d' % K2_O2)
    a('v_cndmask_b32 v66, v66, v76, vcc')
    a('v_lshl_add_u32 v66, v4, 4, v66')
    a('s_lshl_b32 s39, s30, 6')
    a('s_add_u32 s39, s39, s32')
    a('v_add_u32 v66, s39, v66')
    for b in (86, 87, 94, 95, 22 + 0 * 0):
        pass
    a('v_mov_b32 v86, 0')
    a('v_mov_b32 v87, 0')
    a('v_mov_b32 v94, 0')
    a('v_mov_b32 v95, 0')
    a('s_waitcnt vmcnt(23) lgkmcnt(0)')
    a('s_barrier')
    a('v_cmp_eq_u32 vcc, 0, v4')
    a('v_cndmask_b32 v20, 0, v20, vcc')
    a('v_cndmask_b32 v21, 0, v21, vcc')
    a('v_mov_b32 v77, v22')
    a('v_mov_b32 v22, 0')
    a('v_mov_b32 v23, 0')
    SC = 112
    KF = [80, 88]

    def kreads(t):
        b = KF[t & 1]
        a('ds_read_b64 v[%d:%d], v65 offset:%d' % (b, b + 1, t * 1280))
        a('ds_read_b64 v[%d:%d], v65 offset:%d' % (b + 2, b + 3, t * 1280 + 8))
        a('ds_read_b64 v[%d:%d], v64 offset:%d' % (b + 4, b + 5, t * 1280 + 32))

    kreads(0)
    for t in range(9):
        if t < 8:
            kreads(t + 1)
            a('s_waitcnt lgkmcnt(3)')
        else:
            a('s_waitcnt lgkmcnt(0)')
        b = KF[t & 1]
        d = vr(SC + 16 * t, 16)
        a('v_mfma_f32_32x32x16_bf16 %s, %s, v[16:19], 0' % (d, vr(b, 4)))
        a('v_mfma_f32_32x32x16_bf16 %s, %s, v[20:23], %s' % (d, vr(b + 4, 4), d))
    a('s_waitcnt vmcnt(0)')
    for rb in range(1, 16):
        a('v_add_f32 v32, v32, v%d' % (32 + 2 * rb))
        a('v_add_f32 v33, v33, v%d' % (33 + 2 * rb))
    a('v_cvt_pk_bf16_f32 v32, v32, v33')
    a('v_lshrrev_b32 v33, 3, v77')
    a('v_mul_u32_u24 v34, 205, v33')
    a('v_lshrrev_b32 v34, 11, v34')
    a('v_mul_u32_u24 v35, 10, v34')
    a('v_sub_u32 v35, v33, v35')
    a('v_lshlrev_b32 v35, 2, v35')
    a('v_lshl_add_u32 v35, v34, 6, v35')
    a('v_add_u32 v35, s32, v35')
    a('v_cmp_gt_u32 vcc, 210, v33')
    a('s_and_saveexec_b64 s[64:65], vcc')
    a('ds_write_b32 v35, v32 offset:%d' % K2_KV0)
    a('s_mov_b64 exec, s[64:65]')
    a('s_lshl_b32 s39, s28, 2')
    a('s_add_u32 s39, s39, s30')
    a('s_cmp_ge_u32 s39, 8')
    a('s_cbranch_scc1 K2_NOINV')
    for t in range(8):
        for r in range(16):
            a('v_mov_b32 v%d, 0xff800000' % (SC + 16 * t + r))
        if t < 7:
            a('s_cmp_ge_u32 s39, %d' % (7 - t))
            a('s_cbranch_scc1 K2_NOINV')
    a.label('K2_NOINV')
    for r in range(16):
        a('v_cndmask_b32 v%d, v%d, v%d, s[%d:%d]' % (SC + r, SC + 128 + r, SC + r, 66 + 2 * r, 67 + 2 * r))
    a('v_max3_f32 v32, v%d, v%d, v%d' % (SC, SC + 1, SC + 2))
    a('v_max3_f32 v33, v%d, v%d, v%d' % (SC + 3, SC + 4, SC + 5))
    a('v_max3_f32 v34, v%d, v%d, v%d' % (SC + 6, SC + 7, SC + 8))
    a('v_max3_f32 v35, v%d, v%d, v%d' % (SC + 9, SC + 10, SC + 11))
    i = 12
    k = 0
    while i < 128:
        a('v_max3_f32 v%d, v%d, v%d, v%d' % (32 + k, 32 + k, SC + i, SC + i + 1))
        i += 2
        k = (k + 1) & 3
    a('v_max3_f32 v32, v32, v33, v34')
    a('v_max_f32 v32, v32, v35')
    a('v_mov_b32 v33, v32')
    a('v_permlane32_swap_b32 v32, v33')
    a('v_max_f32 v32, v32, v33')
    CS = (DH ** -0.5) * LOG2E
    a('s_mov_b32 s39, %s' % f32(CS))
    a('v_mul_f32 v32, s39, v32')
    a('s_waitcnt lgkmcnt(0)')
    a('s_barrier')
    OA = 96
    VF = [32 + 8, 32 + 12, 32 + 16, 32 + 20]

    def vread(idx):
        t, j = idx >> 1, idx & 1
        a('ds_read_b128 %s, v66 offset:%d' % (vr(VF[idx & 3], 4), t * 64 + j * 32))

    def softmax_tile(t):
        b = SC + 16 * t
        for r in range(16):
            a('v_fma_f32 v%d, v%d, s39, -v32' % (b + r, b + r))
        for r in range(16):
            a('v_exp_f32 v%d, v%d' % (b + r, b + r))
        for i in range(8):
            a('v_cvt_pk_bf16_f32 v%d, v%d, v%d' % (b + i, b + 2 * i, b + 2 * i + 1))

    order = [1, 2, 3, 4, 5, 6, 7, 0, 8]
    first = True
    for n_, t in enumerate(order):
        vread(2 * t)
        vread(2 * t + 1)
        if t == 0:
            softmax_tile(0)
            for i in range(8):
                a('v_bfi_b32 v%d, v%d, 0, v%d' % (SC + 128 + i, 68 + i, SC + i))
                a('v_and_b32 v%d, v%d, v%d' % (SC + i, 68 + i, SC + i))
        elif t != 8:
            softmax_tile(t)
        a('s_waitcnt lgkmcnt(0)')
        for j in range(2):
            c = '0' if first else vr(OA, 16)
            a('v_mfma_f32_32x32x16_bf16 %s, %s, %s, %s' % (vr(OA, 16), vr(VF[(2 * t + j) & 3], 4),
                                                          vr(SC + 16 * t + 4 * j, 4), c))
            first = False
    a('v_and_b32 v33, 15, v2')
    a('v_lshlrev_b32 v34, 4, v15')
    a('v_add_u32 v34, s32, v34')
    a('v_lshl_add_u32 v35, v33, 6, v34')
    a('ds_read_b128 v[40:43], v35 offset:%d' % K2_KV0)
    a('ds_read_b128 v[44:47], v35 offset:%d' % (K2_KV0 + 1024))
    a('ds_read_b128 v[48:51], v34 offset:%d' % (K2_KV0 + 1280))
    a('v_rcp_f32 v36, v%d' % (OA + 12))
    a('s_waitcnt lgkmcnt(0)')
    for rt in range(2):
        pq = vr(24 + 4 * rt, 4)
        a('v_mfma_f32_16x16x32_bf16 %s, v[40:43], %s, 0' % (vr(SC + 12 * rt, 4), pq))
        a('v_mfma_f32_16x16x32_bf16 %s, v[44:47], %s, 0' % (vr(SC + 12 * rt + 4, 4), pq))
        a('v_mfma_f32_16x16x32_bf16 %s, v[48:51], %s, 0' % (vr(SC + 12 * rt + 8, 4), pq))
    for r in range(12):
        a('v_mul_f32 v%d, v%d, v36' % (OA + r, OA + r))
    for i in range(6):
        a('v_cvt_pk_bf16_f32 v%d, v%d, v%d' % (52 + i, OA + 2 * i, OA + 2 * i + 1))
    a('s_lshr_b32 s38, s37, 4')
    a('s_mul_i32 s38, s38, 40960')
    a('s_add_u32 s38, s38, %d' % OF)
    a('v_bfe_u32 v37, v3, 4, 1')
    a('v_mul_u32_u24 v37, 40960, v37')
    a('v_lshl_add_u32 v37, v33, 4, v37')
    a('s_mul_i32 s39, s31, 20')
    a('v_lshlrev_b32 v38, 2, v4')
    a('v_add_u32 v38, s39, v38')

    def oaddr(dst, kk, base):
        a('v_lshrrev_b32 v%d, 3, v%d' % (dst, kk))
        a('v_lshl_add_u32 v%d, v%d, 8, v%d' % (dst, dst, base))
        a('v_and_b32 v39, 4, v%d' % kk)
        a('v_lshl_add_u32 v%d, v39, 1, v%d' % (dst, dst))

    oaddr(58, 38, 37)
    a('buffer_store_dwordx2 v[52:53], v58, s[56:59], s38 offen')
    a('buffer_store_dwordx2 v[54:55], v58, s[56:59], s38 offen offset:256')
    a('s_mov_b32 exec_hi, 0')
    a('buffer_store_dwordx2 v[56:57], v58, s[56:59], s38 offen offset:512')
    a('s_mov_b32 exec_hi, -1')
    a('s_add_u32 s39, s39, 640')
    a('v_lshlrev_b32 v38, 2, v15')
    a('v_add_u32 v38, s39, v38')
    a('v_lshlrev_b32 v37, 4, v33')
    oaddr(58, 38, 37)
    a('s_mov_b32 s39, %s' % f32(1e-6))
    for rt in range(2):
        b = SC + 12 * rt
        a('v_add_f32 v36, s39, v%d' % (b + 8))
        a('v_rcp_f32 v36, v36')
        for r in range(8):
            a('v_mul_f32 v%d, v%d, v36' % (b + r, b + r))
        for i in range(4):
            a('v_cvt_pk_bf16_f32 v%d, v%d, v%d' % (40 + 4 * rt + i, b + 2 * i, b + 2 * i + 1))
    a('s_add_u32 s39, s38, 40960')
    a('buffer_store_dwordx2 v[40:41], v58, s[56:59], s38 offen')
    a('buffer_store_dwordx2 v[44:45], v58, s[56:59], s39 offen')
    a('s_mov_b64 exec, 0xffff')
    a('buffer_store_dwordx2 v[42:43], v58, s[56:59], s38 offen offset:512')
    a('buffer_store_dwordx2 v[46:47], v58, s[56:59], s39 offen offset:512')
    a.label('K2_END')
    a('s_endpgm')
    return name


K3_LDS = 4 * 3 * 5 * 1024


def gen_k3(a):
    name = 'k3_out_kernel'
    kernel_header(a, name)
    a('s_cmp_ge_u32 s2, 256')
    a('s_cbranch_scc1 K3_END')
    a('s_load_dwordx2 s[18:19], s[0:1], 56')
    a('s_load_dwordx2 s[22:23], s[0:1], 72')
    a('v_lshrrev_b32 v1, 6, v0')
    a('v_and_b32 v2, 63, v0')
    a('v_readfirstlane_b32 s24, v1')
    a('s_and_b32 s25, s2, 7')
    a('s_lshr_b32 s26, s2, 3')
    a('s_and_b32 s27, s25, 1')
    a('s_lshl_b32 s27, s27, 2')
    a('s_and_b32 s28, s26, 3')
    a('s_add_u32 s27, s27, s28')
    a('s_lshr_b32 s28, s25, 1')
    a('s_lshl_b32 s28, s28, 3')
    a('s_lshr_b32 s29, s26, 2')
    a('s_add_u32 s28, s28, s29')
    a('v_lshlrev_b32 v3, 4, v2')
    a('s_mul_i32 s30, s28, %d' % (160 * 1024))
    a('s_mul_i32 s31, s24, 10240')
    a('s_add_u32 s30, s30, s31')
    a('s_add_u32 s30, s30, %d' % OF)
    a('s_mul_i32 s32, s27, %d' % (200 * 1024))
    a('s_add_u32 s32, s32, s31')
    a('s_add_u32 s32, s32, %d' % WOF)
    for i in range(1, 5):
        a('v_add_u32 v%d, %d, v3' % (3 + i, i * 40960))
    a('v_and_b32 v8, 15, v2')
    a('v_lshrrev_b32 v9, 4, v2')
    a('v_lshlrev_b32 v10, 2, v8')
    a('s_lshl_b32 s33, s28, 8')
    a('s_add_u32 s33, s33, %d' % GG)
    a('s_waitcnt lgkmcnt(0)')
    make_srd(a, 40, 22, WS_SIZE)
    make_srd(a, 44, 18, S * D * 2)
    ACC = 16
    FR = 96
    NST = 4

    def loads(ks):
        b = FR + (ks % NST) * 36
        for rt in range(4):
            a('buffer_load_dwordx4 %s, v%d, s[40:43], s30 offen offset:%d' % (vr(b + 4 * rt, 4), 3 + rt, (ks & 3) * 1024))
        for ct in range(5):
            a('buffer_load_dwordx4 %s, v%d, s[40:43], s32 offen offset:%d' % (vr(b + 16 + 4 * ct, 4), 3 + ct, (ks & 3) * 1024))
        if (ks & 3) == 3:
            a('s_add_u32 s30, s30, 4096')
            a('s_add_u32 s32, s32, 4096')

    for rt in range(4):
        a('buffer_load_dword v%d, v10, s[40:43], s33 offen offset:%d' % (12 + rt, rt * 64))
    for ks in range(NST):
        loads(ks)
    for ks in range(10):
        rem = min(NST - 1, 9 - ks)
        a('s_waitcnt vmcnt(%d)' % (9 * rem))
        b = FR + (ks % NST) * 36
        for ct in range(5):
            for rt in range(4):
                acc = vr(ACC + (rt * 5 + ct) * 4, 4)
                a('v_mfma_f32_16x16x32_bf16 %s, %s, %s, %s' % (acc, vr(b + 16 + 4 * ct, 4), vr(b + 4 * rt, 4),
                                                              '0' if ks == 0 else acc))
        if ks + NST < 10:
            loads(ks + NST)
    a('s_cmp_lt_u32 s24, 2')
    a('s_cbranch_scc1 K3_NOINV')
    for rt in range(4):
        a('v_sub_f32 v%d, 1.0, v%d' % (12 + rt, 12 + rt))
    a.label('K3_NOINV')
    for rt in range(4):
        for i in range(20):
            r = ACC + rt * 20 + i
            a('v_mul_f32 v%d, v%d, v%d' % (r, r, 12 + rt))
    a('s_mul_i32 s34, s24, 5120')
    a('v_add_u32 v11, s34, v3')
    a('v_add_u32 v1, 40960, v11')
    for rt in range(4):
        a('s_cmp_eq_u32 s24, %d' % rt)
        a('s_cbranch_scc1 K3_SKIPW%d' % rt)
        for ct in range(5):
            a('ds_write_b128 v%d, %s offset:%d' % (11 if rt < 2 else 1, vr(ACC + (rt * 5 + ct) * 4, 4),
                                                  (rt & 1) * 20480 + ct * 1024))
        a.label('K3_SKIPW%d' % rt)
    for rt in range(4):
        a('s_cmp_lg_u32 s24, %d' % rt)
        a('s_cbranch_scc1 K3_SKIPM%d' % rt)
        for i in range(20):
            a('v_mov_b32 v%d, v%d' % (96 + i, ACC + rt * 20 + i))
        a.label('K3_SKIPM%d' % rt)
    a('s_mul_i32 s34, s24, 20480')
    a('v_add_u32 v11, s34, v3')
    a('s_waitcnt lgkmcnt(0)')
    a('s_barrier')
    for k in range(1, 4):
        a('s_add_u32 s35, s24, %d' % k)
        a('s_and_b32 s35, s35, 3')
        a('s_mul_i32 s35, s35, 5120')
        a('v_add_u32 v1, s35, v11')
        for ct in range(5):
            a('ds_read_b128 %s, v1 offset:%d' % (vr(96 + 20 * k + 4 * ct, 4), ct * 1024))
    a('s_waitcnt lgkmcnt(0)')
    for k in range(1, 4):
        for i in range(20):
            a('v_add_f32 v%d, v%d, v%d' % (96 + i, 96 + i, 96 + 20 * k + i))
    for i in range(10):
        a('v_cvt_pk_bf16_f32 v%d, v%d, v%d' % (16 + i, 96 + 2 * i, 96 + 2 * i + 1))
    a('v_mul_u32_u24 v1, 1280, v8')
    a('v_lshl_add_u32 v1, v9, 3, v1')
    a('s_lshl_b32 s34, s28, 6')
    a('s_lshl_b32 s35, s24, 4')
    a('s_add_u32 s34, s34, s35')
    a('s_mul_i32 s34, s34, 1280')
    a('s_mul_i32 s35, s27, 160')
    a('s_add_u32 s34, s34, s35')
    for ct in range(5):
        a('buffer_store_dwordx2 %s, v1, s[44:47], s34 offen offset:%d' % (vr(16 + 2 * ct, 2), ct * 32))
    a.label('K3_END')
    a('s_endpgm')
    return name


K3_LDS = 16 * 5120


def main():
    a = Asm()
    hdr = open('cdna_kernels/%s.s.ref' % NAME).read().split('\n')
    head = [l for l in hdr if l.startswith(';') and '@launch' not in l and 'Override launch' not in l
            and 'grid=ceil' not in l]
    head = head[:12]
    lines = head + [
        '; @launch kernel=k1_qkv_kernel grid=(256,1,1) block=(512,1,1) lds=%d' % K1_LDS,
        '; @launch kernel=k2_attn_kernel grid=(256,1,1) block=(512,1,1) lds=%d' % K2_LDS,
        '; @launch kernel=k3_out_kernel grid=(256,1,1) block=(256,1,1) lds=%d' % K3_LDS,
        '.amdgcn_target "amdgcn-amd-amdhsa--gfx950"',
        '.text',
    ]
    n1 = gen_k1(a)
    n2 = gen_k2(a)
    n3 = gen_k3(a)
    body = a.finish()
    out = '\n'.join(lines) + '\n' + body
    out += '.section .rodata,"a"\n'
    out += kernel_desc(n1, 256) + kernel_desc(n2, 256) + kernel_desc(n3, 256)
    path = sys.argv[1] if len(sys.argv) > 1 else 'cdna_kernels/%s.s' % NAME
    open(path, 'w').write(out)
    print('wrote', path, len(out), 'bytes; nops inserted:', len(a.nops_inserted))
    if '-v' in sys.argv:
        for t, k in a.nops_inserted:
            print('  nop %d before %s' % (k, t))


if __name__ == '__main__':
    main()
```

```python
import sys, os, math, struct
sys.path.insert(0, os.path.dirname(os.path.abspath(__file__)))
from asmdsl import Asm

NAME = 'gated_mix__sliding_block__linear_attn_block__prompt'
S, D, H, DH = 2048, 640, 32, 20

QA = 0
KA = QA + H * S * 40
VTA = KA + H * S * 40
PQB = VTA + 640 * S * 2
KVP = PQB + H * S * 40
GG = KVP + 16 * 32 * 1680
OF = GG + 8192
WOF = OF + S * 1280 * 2
WS_END = WOF + 1280 * 640 * 2
WS_SIZE = 268435456


def f32(x):
    return '0x%08x' % struct.unpack('<I', struct.pack('<f', x))[0]


LOG2E = 1.4426950408889634
SRD3 = '0x00020000'


def vr(a, n=1):
    return 'v%d' % a if n == 1 else 'v[%d:%d]' % (a, a + n - 1)


def sr(a, n=1):
    return 's%d' % a if n == 1 else 's[%d:%d]' % (a, a + n - 1)


def make_srd(a, d, ptr, size):
    a('s_mov_b32 s%d, s%d' % (d, ptr))
    a('s_and_b32 s%d, s%d, 0xffff' % (d + 1, ptr + 1))
    a('s_mov_b32 s%d, %d' % (d + 2, size))
    a('s_mov_b32 s%d, %s' % (d + 3, SRD3))


def make_srd_off(a, d, ptr, off, size):
    a('s_add_u32 s%d, s%d, %d' % (d, ptr, off))
    a('s_addc_u32 s%d, s%d, 0' % (d + 1, ptr + 1))
    a('s_and_b32 s%d, s%d, 0xffff' % (d + 1, d + 1))
    a('s_mov_b32 s%d, %d' % (d + 2, size))
    a('s_mov_b32 s%d, %s' % (d + 3, SRD3))


DIAG = '--diag' in sys.argv
DIAG_OFF = 32 << 20


def stamp(a, idx, base=70):
    if DIAG:
        a('s_memtime s[100:101]')
        a('s_waitcnt lgkmcnt(0)')
        a('s_mov_b32 s%d, s100' % (base + idx))


def stamp_flush(a, n, kern, wave_sgpr, ws_srd, base=70, tmpv=1):
    if DIAG:
        a('s_mov_b64 exec, -1')
        a('s_lshl_b32 s100, s2, 3')
        a('s_add_u32 s100, s100, s%d' % wave_sgpr)
        a('s_lshl_b32 s100, s100, 7')
        a('s_add_u32 s100, s100, %d' % (DIAG_OFF + kern * (1 << 20)))
        a('v_mov_b32 v%d, 0' % tmpv)
        a('s_mov_b64 exec, 1')
        for i in range(n):
            a('v_mov_b32 v%d, s%d' % (tmpv + 1, base + i))
            a('buffer_store_dword v%d, v%d, s[%d:%d], s100 offen offset:%d' % (tmpv + 1, tmpv, ws_srd, ws_srd + 3, 4 * i))
            a('s_nop 1')


def stamp_init(a, kern, wave_sgpr, tv):
    if DIAG:
        a('s_lshl_b32 s99, s2, 3')
        a('s_add_u32 s99, s99, s%d' % wave_sgpr)
        a('s_lshl_b32 s99, s99, 7')
        a('s_add_u32 s99, s99, %d' % (DIAG_OFF + kern * (1 << 20)))
        a('v_mov_b32 v%d, 0' % tv)


def stamp_mem(a, ws_srd, tv, src=None):
    if DIAG:
        if src is None:
            a('s_memtime s[100:101]')
            a('s_waitcnt lgkmcnt(0)')
            src = 100
        a('v_mov_b32 v%d, s%d' % (tv + 1, src))
        a('buffer_store_dword v%d, v%d, s[%d:%d], s99 offen' % (tv + 1, tv, ws_srd, ws_srd + 3))
        a('s_add_u32 s99, s99, 4')


def stampv(a, idx, sv, real=False):
    if DIAG:
        a('%s s[100:101]' % ('s_memrealtime' if real else 's_memtime'))
        a('s_waitcnt lgkmcnt(0)')
        a('v_writelane_b32 v%d, s100, %d' % (sv, idx))


def stampv_flush(a, kern, wave_sgpr, ws_srd, sv, tv):
    if DIAG:
        a('s_mov_b64 exec, -1')
        a('s_lshl_b32 s100, s2, 3')
        a('s_add_u32 s100, s100, s%d' % wave_sgpr)
        a('s_lshl_b32 s100, s100, 7')
        a('s_add_u32 s100, s100, %d' % (DIAG_OFF + kern * (1 << 20)))
        a('v_and_b32 v%d, 63, v0' % tv)
        a('v_lshlrev_b32 v%d, 2, v%d' % (tv, tv))
        a('s_mov_b64 exec, 0xffffffff')
        a('buffer_store_dword v%d, v%d, s[%d:%d], s100 offen' % (sv, tv, ws_srd, ws_srd + 3))


def kernel_header(a, name):
    a.raw('.globl %s' % name)
    a.raw('.p2align 8')
    a.raw('.type %s,@function' % name)
    a.label(name)
    a.barrier_hazards()


def kernel_desc(name, vgpr, sgpr=102, accum=None):
    if accum is None:
        accum = (vgpr + 3) // 4 * 4
    return f'''.p2align 6
.amdhsa_kernel {name}
  .amdhsa_next_free_vgpr {vgpr}
  .amdhsa_next_free_sgpr {sgpr}
  .amdhsa_accum_offset {accum}
  .amdhsa_group_segment_fixed_size 0
  .amdhsa_kernarg_size 80
  .amdhsa_user_sgpr_count 2
  .amdhsa_user_sgpr_kernarg_segment_ptr 1
  .amdhsa_system_sgpr_workgroup_id_x 1
.end_amdhsa_kernel
'''


K1_SLOT = 47104
K1_WOFF = 16384
K1_GATE = 3 * K1_SLOT
K1_WOSCR = K1_GATE + 2048
K1_LDS = K1_WOSCR + 8192


def gen_k1(a):
    name = 'k1_qkv_kernel'
    kernel_header(a, name)
    a('s_cmp_ge_u32 s2, 256')
    a('s_cbranch_scc1 K1_END')
    if DIAG:
        a('s_memtime s[96:97]')
    a('s_load_dwordx16 s[4:19], s[0:1], 0')
    a('s_load_dwordx4 s[20:23], s[0:1], 64')
    a('v_lshrrev_b32 v1, 6, v0')
    a('v_and_b32 v2, 63, v0')
    a('v_readfirstlane_b32 s24, v1')
    a('s_and_b32 s25, s2, 7')
    a('s_lshr_b32 s26, s2, 3')
    a('s_and_b32 s27, s25, 3')
    a('s_lshl_b32 s27, s27, 2')
    a('s_and_b32 s28, s26, 3')
    a('s_add_u32 s27, s27, s28')
    a('s_lshr_b32 s28, s25, 2')
    a('s_lshl_b32 s28, s28, 3')
    a('s_lshr_b32 s29, s26, 2')
    a('s_add_u32 s28, s28, s29')
    a('s_lshr_b32 s29, s27, 3')
    a('s_and_b32 s30, s27, 7')
    a('s_cmp_ge_u32 s24, 4')
    a('s_cbranch_scc0 K1_CONS')

    a('s_sub_u32 s31, s24, 4')
    a('v_lshrrev_b32 v3, 3, v2')
    a('v_and_b32 v4, 7, v2')
    a('v_lshrrev_b32 v5, 1, v3')
    a('v_xor_b32 v4, v4, v5')
    a('v_lshlrev_b32 v4, 4, v4')
    a('v_mul_u32_u24 v3, 1280, v3')
    a('v_add_u32 v10, v3, v4')
    a('v_xor_b32 v11, 64, v10')
    a('v_add_u32 v11, 10240, v11')
    a('v_add_u32 v12, 20480, v10')
    a('v_add_u32 v13, 20480, v11')
    a('v_cmp_lt_u32 vcc, 29, v2')
    a('v_cndmask_b32 v3, 0, 1, vcc')
    a('v_mul_u32_u24 v4, 30, v3')
    a('v_sub_u32 v4, v2, v4')
    a('v_mul_u32_u24 v5, 26, v4')
    a('v_lshrrev_b32 v5, 8, v5')
    a('v_mul_u32_u24 v6, 10, v5')
    a('v_sub_u32 v6, v4, v6')
    a('v_mul_u32_u24 v3, 3840, v3')
    a('v_mul_u32_u24 v5, 1280, v5')
    a('v_lshlrev_b32 v6, 4, v6')
    a('v_add3_u32 v14, v3, v5, v6')
    for ii in range(1, 8):
        koff = 8 * ((ii >> 1) & 1) + 4 * ((ii >> 2) & 1) + 2 * (ii & 1)
        a('v_add_u32 v%d, %d, v14' % (14 + ii, koff * 3840))
    a('v_lshrrev_b32 v3, 2, v2')
    a('v_mul_u32_u24 v3, 1280, v3')
    a('v_and_b32 v4, 3, v2')
    a('v_lshlrev_b32 v4, 4, v4')
    a('v_add_u32 v22, v3, v4')
    a('v_lshlrev_b32 v23, 4, v2')
    a('s_lshl_b32 s32, s28, 7')
    a('s_lshl_b32 s33, s31, 5')
    a('s_add_u32 s32, s32, s33')
    a('s_mul_i32 s32, s32, 1280')
    a('s_mul_i32 s33, s31, %d' % (16 * 3840))
    a('s_mul_i32 s34, s30, 160')
    a('s_add_u32 s33, s33, s34')
    a('s_lshl_b32 s34, s31, 12')
    a('s_mul_i32 s35, s31, 7680')
    a('s_add_u32 s35, s35, %d' % K1_WOFF)
    a('s_mul_i32 s36, s2, 52429')
    a('s_lshr_b32 s36, s36, 18')
    a('s_mul_i32 s37, s36, 5')
    a('s_sub_u32 s37, s2, s37')
    a('s_waitcnt lgkmcnt(0)')
    make_srd(a, 40, 4, S * D * 2)
    a('s_cmp_eq_u32 s29, 0')
    a('s_cselect_b32 s44, s6, s12')
    a('s_cselect_b32 s45, s7, s13')
    a('s_and_b32 s45, s45, 0xffff')
    a('s_mov_b32 s46, %d' % (D * 3 * D * 2))
    a('s_mov_b32 s47, %s' % SRD3)

    def issue_stage(slot_sgpr):
        a('s_add_u32 s38, %s, s34' % slot_sgpr)
        a('s_add_u32 s39, %s, s35' % slot_sgpr)
        for ii in range(4):
            a('s_add_u32 m0, s38, %d' % (ii * 1024))
            a('buffer_load_dwordx4 v%d, s[40:43], s32 offen lds' % (10 + ii))
        a('s_mov_b64 exec, s[48:49]')
        for ii in range(8):
            a('s_add_u32 m0, s39, %d' % (ii * 960))
            a('buffer_load_dwordx4 v%d, s[44:47], s33 offen lds' % (14 + ii))
        a('s_mov_b64 exec, -1')
        a('s_add_u32 s32, s32, 128')
        a('s_add_u32 s33, s33, %d' % (64 * 3840))

    a('s_mov_b32 s48, -1')
    a('s_mov_b32 s49, 0x0fffffff')
    a('s_mov_b32 s50, 0')
    issue_stage('s50')
    a('s_cmp_lg_u32 s31, 0')
    a('s_cbranch_scc1 K1_L_NOGATE')
    make_srd(a, 52, 16, 1280)
    a('s_mov_b32 m0, %d' % K1_GATE)
    a('buffer_load_dwordx4 v23, s[52:55], 0 offen lds')
    a('s_mov_b32 m0, %d' % (K1_GATE + 1024))
    a('s_mov_b32 s56, 1024')
    a('buffer_load_dwordx4 v23, s[52:55], s56 offen lds')
    a.label('K1_L_NOGATE')
    a('s_cmp_ge_u32 s2, 200')
    a('s_cbranch_scc1 K1_L_NOWO')
    a('s_cmp_lt_u32 s36, 20')
    a('s_cselect_b32 s52, s8, s14')
    a('s_cselect_b32 s53, s9, s15')
    a('s_cselect_b32 s57, 0, 20')
    a('s_and_b32 s53, s53, 0xffff')
    a('s_mov_b32 s54, %d' % (D * D * 2))
    a('s_mov_b32 s55, %s' % SRD3)
    a('s_sub_u32 s57, s36, s57')
    a('s_mul_i32 s57, s57, %d' % (32 * 1280))
    a('s_lshl_b32 s56, s37, 8')
    a('s_add_u32 s57, s57, s56')
    a('s_lshl_b32 s56, s31, 6')
    a('s_add_u32 s57, s57, s56')
    a('s_lshl_b32 s56, s31, 11')
    a('s_add_u32 s56, s56, %d' % K1_WOSCR)
    a('s_mov_b32 m0, s56')
    a('buffer_load_dwordx4 v22, s[52:55], s57 offen lds')
    a('s_add_u32 m0, s56, 1024')
    a('s_add_u32 s57, s57, %d' % (16 * 1280))
    a('buffer_load_dwordx4 v22, s[52:55], s57 offen lds')
    a.label('K1_L_NOWO')
    a('s_mov_b32 s50, %d' % K1_SLOT)
    issue_stage('s50')
    a('s_mov_b32 s50, %d' % (2 * K1_SLOT))
    issue_stage('s50')
    stamp(a, 0)
    a('s_waitcnt vmcnt(24)')
    stamp(a, 1)
    a('s_barrier')
    stamp(a, 2)
    if DIAG:
        a('s_mov_b32 s80, 0')
        a('s_mov_b32 s81, 0')
        a('s_mov_b32 s82, 0')
    a('s_mov_b32 s50, 0')
    a('s_mov_b32 s51, 1')
    a.label('K1_L_LOOP')
    stamp(a, 3)
    a('s_waitcnt vmcnt(12)')
    stamp(a, 4)
    a('s_barrier')
    stamp(a, 5)
    issue_stage('s50')
    stamp(a, 6)
    if DIAG:
        a('s_sub_u32 s100, s74, s73')
        a('s_add_u32 s80, s80, s100')
        a('s_sub_u32 s100, s75, s74')
        a('s_add_u32 s81, s81, s100')
        a('s_sub_u32 s100, s76, s75')
        a('s_add_u32 s82, s82, s100')
    a('s_add_u32 s50, s50, %d' % K1_SLOT)
    a('s_cmp_eq_u32 s50, %d' % (3 * K1_SLOT))
    a('s_cselect_b32 s50, 0, s50')
    a('s_add_u32 s51, s51, 1')
    a('s_cmp_lt_u32 s51, 8')
    a('s_cbranch_scc1 K1_L_LOOP')
    a('s_waitcnt vmcnt(12)')
    a('s_barrier')
    a('s_waitcnt vmcnt(0)')
    a('s_barrier')
    a('s_barrier')
    if DIAG:
        stamp(a, 7)
        a('s_mov_b32 s78, s96')
        make_srd(a, 60, 22, WS_SIZE)
        stamp_flush(a, 13, 0, 24, 60, tmpv=40)
        a('s_mov_b64 exec, -1')
    a('s_cmp_ge_u32 s2, 200')
    a('s_cbranch_scc1 K1_END')
    a('v_lshrrev_b32 v3, 4, v2')
    a('v_lshlrev_b32 v3, 9, v3')
    a('v_bfe_u32 v4, v2, 2, 2')
    a('v_lshlrev_b32 v4, 6, v4')
    a('v_and_b32 v5, 3, v2')
    a('v_lshlrev_b32 v5, 3, v5')
    a('v_add3_u32 v3, v3, v4, v5')
    a('v_add_u32 v3, s56, v3')
    for tt in range(2):
        for j4 in range(2):
            a('ds_read_b64_tr_b16 v[%d:%d], v3 offset:%d' % (24 + tt * 4 + j4 * 2, 25 + tt * 4 + j4 * 2,
                                                            j4 * 256 + tt * 32))
    make_srd(a, 52, 22, WS_SIZE)
    a('s_lshl_b32 s57, s37, 3')
    a('s_lshl_b32 s58, s31, 1')
    a('s_add_u32 s57, s57, s58')
    a('s_mul_i32 s57, s57, 40')
    a('s_add_u32 s57, s57, s36')
    a('s_lshl_b32 s57, s57, 10')
    a('s_add_u32 s57, s57, %d' % WOF)
    a('s_add_u32 s58, s57, %d' % (40 * 1024))
    a('s_waitcnt lgkmcnt(0)')
    a('buffer_store_dwordx4 v[24:27], v23, s[52:55], s57 offen')
    a('buffer_store_dwordx4 v[28:31], v23, s[52:55], s58 offen')
    a('s_branch K1_END')

    a.label('K1_CONS')
    a.barrier_hazards()
    F0, F1, ACC = 16, 64, 112
    a('s_lshr_b32 s31, s24, 1')
    a('s_and_b32 s32, s24, 1')
    a('v_and_b32 v3, 15, v2')
    a('v_lshrrev_b32 v4, 4, v2')
    a('v_bfe_u32 v5, v2, 2, 2')
    a('v_and_b32 v6, 3, v2')
    a('v_lshrrev_b32 v7, 1, v3')
    a('v_xor_b32 v7, v4, v7')
    a('v_lshlrev_b32 v7, 4, v7')
    a('v_lshl_add_u32 v8, v3, 7, v7')
    a('s_lshl_b32 s33, s31, 13')
    a('v_add_u32 v8, s33, v8')
    a('v_xor_b32 v9, 64, v8')
    a('v_lshrrev_b32 v7, 1, v4')
    a('v_lshlrev_b32 v7, 4, v7')
    a('v_and_b32 v1, 1, v4')
    a('v_lshl_add_u32 v7, v1, 2, v7')
    a('v_add_u32 v7, v7, v5')
    a('v_mul_u32_u24 v7, 480, v7')
    a('v_add_u32 v7, %d, v7' % K1_WOFF)
    a('v_mul_u32_u24 v1, 40, v6')
    a('v_add_u32 v10, v7, v1')
    a('v_lshl_add_u32 v11, v6, 3, v7')
    a('v_lshlrev_b32 v7, 4, v4')
    a('v_add_u32 v7, %d, v7' % K1_GATE)
    for r in range(128):
        a('v_mov_b32 v%d, 0' % (ACC + r))
    for i in range(4):
        a('v_mov_b32 v%d, v%d' % (12 + i, 8 + i))
    a('s_mov_b32 s34, 0')
    a('s_mov_b32 s35, 0')
    a('s_waitcnt lgkmcnt(0)')
    make_srd(a, 40, 22, WS_SIZE)
    stamp_init(a, 0, 24, 254)
    stamp_mem(a, 40, 254, 96)
    stamp_mem(a, 40, 254)
    a('s_lshl_b32 s36, s29, 1')
    a('s_add_u32 s36, s36, s32')
    a('s_cmp_eq_u32 s36, 1')
    a('s_cbranch_scc1 K1_V1')
    a('s_cmp_eq_u32 s36, 2')
    a('s_cbranch_scc1 K1_V2')
    a('s_cmp_eq_u32 s36, 3')
    a('s_cbranch_scc1 K1_V3')

    def tl_p1(sec, ct):
        return ('w', sec, ct, 'A', 8 * ct, 'WX')

    def tl_p2(sec, ct):
        return ('w', sec, ct, 'B', 32 * ct, 'XW')

    def tl_p3(sec, ct):
        return ('w', sec, ct, 'B', 40 * ct, 'XW') if ct < 4 else ('w', sec, ct, 'A', 32, 'XW')

    variants = [
        [tl_p1(0, c) for c in range(5)] + [tl_p1(1, c) for c in range(3)],
        [tl_p1(1, 3), tl_p1(1, 4)] + [tl_p2(2, c) for c in range(5)] + [('gate',)],
        [tl_p1(0, c) for c in range(5)] + [tl_p3(1, c) for c in range(3)],
        [tl_p3(1, 3), tl_p3(1, 4)] + [tl_p3(2, c) for c in range(5)],
    ]

    def reads(tiles, F, u):
        L = []
        for rt in range(4):
            L.append('ds_read_b128 %s, v%d offset:%d' % (vr(F + 4 * rt, 4), 12 + u, rt * 2048))
        for t, tile in enumerate(tiles):
            b = F + 16 + 4 * t
            if tile[0] == 'gate':
                L.append('ds_read_b128 %s, v7 offset:%d' % (vr(b, 4), u * 64))
            else:
                _, sec, ct, pat, tcol, _o = tile
                for j4 in range(2):
                    off = (32 * u + 8 * j4) * 480 + sec * 160 + tcol
                    L.append('ds_read_b64_tr_b16 %s, v%d offset:%d' % (vr(b + 2 * j4, 2), 14 if pat == 'A' else 15, off))
        return L

    def mfmas(tiles, F):
        L = []
        for t, tile in enumerate(tiles):
            for rt in range(4):
                acc = vr(ACC + (t * 4 + rt) * 4, 4)
                xf = vr(F + 4 * rt, 4)
                wf = vr(F + 16 + 4 * t, 4)
                o = 'WX' if tile[0] == 'gate' else tile[5]
                if o == 'WX':
                    L.append('v_mfma_f32_16x16x32_bf16 %s, %s, %s, %s' % (acc, wf, xf, acc))
                else:
                    L.append('v_mfma_f32_16x16x32_bf16 %s, %s, %s, %s' % (acc, xf, wf, acc))
        return L

    def interleave(ms, rs):
        i = 0
        for m in ms:
            a(m)
            if i < len(rs):
                a(rs[i])
                i += 1
        while i < len(rs):
            a(rs[i])
            i += 1

    def accr(t, rt, r=0):
        return ACC + (t * 4 + rt) * 4 + r

    def phi(reg, tmp):
        a('v_mul_f32 v%d, s60, v%d' % (tmp, reg))
        a('v_exp_f32 v%d, v%d' % (tmp, tmp))
        a('v_add_f32 v%d, 1.0, v%d' % (reg, reg))
        a('v_med3_f32 v%d, v%d, v%d, 1.0' % (reg, tmp, reg))
        a('v_add_f32 v%d, s61, v%d' % (reg, reg))

    def phi_many(regs, tmpbase):
        for i in range(0, len(regs), 8):
            grp = regs[i:i + 8]
            for j, r in enumerate(grp):
                a('v_mul_f32 v%d, s60, v%d' % (tmpbase + j, r))
            for j, r in enumerate(grp):
                a('v_exp_f32 v%d, v%d' % (tmpbase + j, tmpbase + j))
            for j, r in enumerate(grp):
                a('v_add_f32 v%d, 1.0, v%d' % (r, r))
            for j, r in enumerate(grp):
                a('v_med3_f32 v%d, v%d, v%d, 1.0' % (r, tmpbase + j, r))
            for j, r in enumerate(grp):
                a('v_add_f32 v%d, s61, v%d' % (r, r))

    def store_rowmajor(tile_ids, dim0, region, stage):
        a('s_add_u32 s38, s37, %d' % region)
        n = len(tile_ids)
        for rt in range(4):
            st = stage + (rt & 1) * 12
            for idx, t in enumerate(tile_ids):
                a('v_cvt_pk_bf16_f32 v%d, v%d, v%d' % (st + 2 * idx, accr(t, rt, 0), accr(t, rt, 1)))
                a('v_cvt_pk_bf16_f32 v%d, v%d, v%d' % (st + 2 * idx + 1, accr(t, rt, 2), accr(t, rt, 3)))
            d = 0
            while d < 2 * n:
                w = 4 if 2 * n - d >= 4 else 2
                a('buffer_store_dwordx%d %s, v1, s[40:43], s38 offen offset:%d'
                  % (w, vr(st + d, w), rt * 640 + dim0 * 2 + d * 4))
                d += w

    for vi, tiles in enumerate(variants):
        br, ni = vi >> 1, vi & 1
        a.label('K1_V%d' % vi)
        a.barrier_hazards()
        a('s_barrier')
        stamp_mem(a, 40, 254)
        for r in reads(tiles, F0, 0):
            a(r)
        a('s_waitcnt lgkmcnt(0)')
        a.label('K1_V%d_LOOP' % vi)
        interleave(mfmas(tiles, F0), reads(tiles, F1, 1))
        a('s_add_u32 s34, s34, %d' % K1_SLOT)
        a('s_cmp_eq_u32 s34, %d' % (3 * K1_SLOT))
        a('s_cselect_b32 s34, 0, s34')
        for i in range(4):
            a('v_add_u32 v%d, s34, v%d' % (12 + i, 8 + i))
        if tiles[-1][0] == 'gate':
            a('v_add_u32 v7, 128, v7')
        a('s_waitcnt lgkmcnt(0)')
        stamp_mem(a, 40, 254)
        a('s_barrier')
        stamp_mem(a, 40, 254)
        interleave(mfmas(tiles, F1), reads(tiles, F0, 0))
        a('s_add_u32 s35, s35, 1')
        a('s_cmp_lt_u32 s35, 10')
        a('s_waitcnt lgkmcnt(0)')
        a('s_cbranch_scc1 K1_V%d_LOOP' % vi)
        stamp_mem(a, 40, 254)
        a('v_lshl_add_u32 v1, v4, 11, v3')
        a('v_mul_u32_u24 v1, 40, v1')
        a('s_lshl_b32 s37, s30, 13')
        a('s_lshl_b32 s38, s28, 7')
        a('s_add_u32 s37, s37, s38')
        a('s_lshl_b32 s38, s31, 6')
        a('s_add_u32 s37, s37, s38')
        a('s_mul_i32 s37, s37, 40')
        a('s_mov_b32 s60, %s' % f32(LOG2E))
        a('s_mov_b32 s61, %s' % f32(1e-6))
        ST = 16
        if vi == 0:
            store_rowmajor([0, 1, 2, 3, 4], 0, QA, ST)
            store_rowmajor([5, 6, 7], 0, KA, ST + 24)
        elif vi == 1:
            store_rowmajor([0, 1], 12, KA, ST)
            a('v_lshlrev_b32 v1, 12, v3')
            a('v_lshl_add_u32 v1, v4, 4, v1')
            a('s_mul_i32 s37, s30, %d' % (80 * 4096))
            a('s_lshl_b32 s38, s28, 8')
            a('s_add_u32 s37, s37, s38')
            a('s_lshl_b32 s38, s31, 7')
            a('s_add_u32 s37, s37, s38')
            a('s_add_u32 s37, s37, %d' % VTA)
            for ct in range(5):
                t = 2 + ct
                for rp in range(2):
                    st = ST + 24 + ((ct * 2 + rp) & 3) * 4
                    for h2 in range(2):
                        rt = rp * 2 + h2
                        a('v_cvt_pk_bf16_f32 v%d, v%d, v%d' % (st + 2 * h2, accr(t, rt, 0), accr(t, rt, 1)))
                        a('v_cvt_pk_bf16_f32 v%d, v%d, v%d' % (st + 2 * h2 + 1, accr(t, rt, 2), accr(t, rt, 3)))
                    a('buffer_store_dwordx4 %s, v1, s[40:43], s37 offen offset:%d' % (vr(st, 4), rp * 64))
                a('s_add_u32 s37, s37, %d' % (16 * 4096))
            stamp_mem(a, 40, 254)
            a('s_cmp_lg_u32 s30, 0')
            a('s_cbranch_scc1 K1_END')
            a('v_lshlrev_b32 v1, 2, v3')
            a('s_lshl_b32 s37, s28, 9')
            a('s_lshl_b32 s38, s31, 8')
            a('s_add_u32 s37, s37, s38')
            a('s_add_u32 s37, s37, %d' % GG)
            a('s_mov_b32 s60, %s' % f32(-LOG2E))
            for rt in range(4):
                r = accr(7, rt, 0)
                a('v_mul_f32 v%d, s60, v%d' % (r, r))
                a('v_exp_f32 v%d, v%d' % (r, r))
                a('v_add_f32 v%d, 1.0, v%d' % (r, r))
                a('v_rcp_f32 v%d, v%d' % (r, r))
            a('s_mov_b64 exec, 0xffff')
            for rt in range(4):
                a('buffer_store_dword v%d, v1, s[40:43], s37 offen offset:%d' % (accr(7, rt, 0), rt * 64))
            a('s_mov_b64 exec, -1')
        else:
            SCR = K1_SLOT
            if ni == 0:
                phi_many([accr(t, rt, r) for t in range(8) for rt in range(4) for r in range(4)], 64)
                store_rowmajor([0, 1, 2, 3, 4], 0, PQB, ST)
                fr = [(5, 0), (6, 1), (7, 2)]
            else:
                phi_many([accr(t, rt, r) for t in range(2) for rt in range(4) for r in range(4)], 64)
                fr = [(0, 3), (1, 4)] + [(2 + c, 5 + c) for c in range(5)]
            a('v_lshlrev_b32 v1, 4, v2')
            a('s_lshl_b32 s38, s31, 11')
            a('s_add_u32 s38, s38, %d' % SCR)
            a('v_add_u32 v1, s38, v1')
            for n_, (t, T) in enumerate(fr):
                for rp in range(2):
                    st = 80 + ((n_ * 2 + rp) & 3) * 4
                    for h2 in range(2):
                        rt = rp * 2 + h2
                        a('v_cvt_pk_bf16_f32 v%d, v%d, v%d' % (st + 2 * h2, accr(t, rt, 0), accr(t, rt, 1)))
                        a('v_cvt_pk_bf16_f32 v%d, v%d, v%d' % (st + 2 * h2 + 1, accr(t, rt, 2), accr(t, rt, 3)))
                    a('ds_write_b128 v1, %s offset:%d' % (vr(st, 4), T * 4096 + rp * 1024))
            stamp_mem(a, 40, 254)
            a('s_branch K1_BKV')
        if vi == 0:
            stamp_mem(a, 40, 254)
        a('s_branch K1_END')

    a.label('K1_BKV')
    a.barrier_hazards()
    a('s_waitcnt lgkmcnt(0)')
    a('s_barrier')
    SCR = K1_SLOT
    a('v_lshlrev_b32 v1, 4, v2')
    a('v_add_u32 v1, %d, v1' % SCR)
    a('s_lshl_b32 s38, s24, 12')
    a('v_add_u32 v7, s38, v1')
    for G in range(4):
        a('ds_read_b128 %s, v7 offset:%d' % (vr(16 + 4 * G, 4), G * 1024))
        a('ds_read_b128 %s, v1 offset:%d' % (vr(32 + 4 * G, 4), 4 * 4096 + G * 1024))
        a('ds_read_b128 %s, v7 offset:%d' % (vr(48 + 4 * G, 4), 5 * 4096 + G * 1024))
        a('ds_read_b128 %s, v1 offset:%d' % (vr(64 + 4 * G, 4), 9 * 4096 + G * 1024))
    for i in range(4):
        a('v_mov_b32 v%d, 0x3f803f80' % (80 + i))
    a('s_lshl_b32 s37, s28, 5')
    a('s_lshl_b32 s38, s30, 2')
    a('s_add_u32 s37, s37, s38')
    a('s_add_u32 s37, s37, s24')
    a('s_mul_i32 s37, s37, 1680')
    a('s_add_u32 s37, s37, %d' % KVP)
    a('v_mul_u32_u24 v8, 80, v3')
    a('v_lshl_add_u32 v9, v4, 4, v8')
    a('s_lshl_b32 s38, s24, 2')
    a('v_subrev_u32 v10, s38, v3')
    a('v_cmp_gt_u32 s[50:51], 4, v10')
    a('v_cmp_eq_u32 s[52:53], s24, v4')
    a('v_cmp_eq_u32 s[54:55], 0, v3')
    a('v_mul_u32_u24 v10, 80, v10')
    a('v_add_u32 v10, 1280, v10')
    a('v_lshl_add_u32 v11, v4, 4, v10')
    a('v_lshlrev_b32 v12, 4, v4')
    a('s_and_b64 s[56:57], s[50:51], s[52:53]')
    a('s_and_b64 s[58:59], s[54:55], s[52:53]')
    a('s_waitcnt lgkmcnt(0)')
    Dr = [112 + 4 * i for i in range(6)]
    for G in range(4):
        c = lambda i: ('0' if G == 0 else vr(Dr[i], 4))
        kw, k4, vw, v4_ = vr(16 + 4 * G, 4), vr(32 + 4 * G, 4), vr(48 + 4 * G, 4), vr(64 + 4 * G, 4)
        a('v_mfma_f32_16x16x32_bf16 %s, %s, %s, %s' % (vr(Dr[0], 4), kw, vw, c(0)))
        a('v_mfma_f32_16x16x32_bf16 %s, %s, %s, %s' % (vr(Dr[1], 4), kw, v4_, c(1)))
        a('v_mfma_f32_16x16x32_bf16 %s, %s, %s, %s' % (vr(Dr[2], 4), k4, vw, c(2)))
        a('v_mfma_f32_16x16x32_bf16 %s, %s, %s, %s' % (vr(Dr[3], 4), k4, v4_, c(3)))
        a('v_mfma_f32_16x16x32_bf16 %s, %s, v[80:83], %s' % (vr(Dr[4], 4), kw, c(4)))
        a('v_mfma_f32_16x16x32_bf16 %s, %s, v[80:83], %s' % (vr(Dr[5], 4), k4, c(5)))
    a('buffer_store_dwordx4 %s, v9, s[40:43], s37 offen' % vr(Dr[0], 4))
    a('s_mov_b64 exec, s[50:51]')
    a('buffer_store_dwordx4 %s, v11, s[40:43], s37 offen' % vr(Dr[1], 4))
    a('s_mov_b64 exec, s[52:53]')
    a('buffer_store_dwordx4 %s, v8, s[40:43], s37 offen offset:64' % vr(Dr[2], 4))
    a('s_mov_b64 exec, s[56:57]')
    a('buffer_store_dwordx4 %s, v10, s[40:43], s37 offen offset:64' % vr(Dr[3], 4))
    a('s_mov_b64 exec, s[54:55]')
    a('buffer_store_dwordx4 %s, v12, s[40:43], s37 offen offset:1600' % vr(Dr[4], 4))
    a('s_mov_b64 exec, s[58:59]')
    a('buffer_store_dwordx4 %s, v8, s[40:43], s37 offen offset:1664' % vr(Dr[5], 4))
    a('s_mov_b64 exec, -1')
    stamp_mem(a, 40, 254)
    a.label('K1_END')
    a('s_endpgm')
    return name


K2_KIMG = 15360
K2_VP = 784
K2_VIMG = 20 * K2_VP
K2_ONES = 2 * 784
K2_KV = 21 * 64 + 64
K2_V0 = K2_KIMG
K2_O1 = K2_V0 + K2_VIMG
K2_O2 = K2_O1 + 784
K2_O2 += ((28 - 21) * 16)
K2_KV0 = K2_O2 + 784
K2_HEAD = (K2_KV0 + 2048 + 255) // 256 * 256
K2_LDS = 2 * K2_HEAD


def gen_k2(a):
    name = 'k2_attn_kernel'
    kernel_header(a, name)
    a('s_cmp_ge_u32 s2, 256')
    a('s_cbranch_scc1 K2_END')
    stampv(a, 0, 79)
    stampv(a, 30, 79, True)
    a('s_load_dwordx2 s[22:23], s[0:1], 72')
    a('v_lshrrev_b32 v1, 6, v0')
    a('v_and_b32 v2, 63, v0')
    a('v_readfirstlane_b32 s24, v1')
    a('s_and_b32 s25, s2, 7')
    a('s_lshr_b32 s26, s2, 3')
    a('s_lshl_b32 s27, s25, 1')
    a('s_and_b32 s28, s26, 1')
    a('s_add_u32 s27, s27, s28')
    a('s_lshr_b32 s28, s26, 1')
    a('s_lshr_b32 s29, s24, 2')
    a('s_and_b32 s30, s24, 3')
    a('s_lshl_b32 s31, s27, 1')
    a('s_add_u32 s31, s31, s29')
    a('s_mul_i32 s32, s29, %d' % K2_HEAD)
    a('s_lshl_b32 s33, s28, 7')
    a('s_sub_i32 s34, s33, 256')
    a('v_and_b32 v3, 31, v2')
    a('v_lshrrev_b32 v4, 5, v2')
    a('v_lshlrev_b32 v5, 4, v2')
    a('s_mul_i32 s35, s34, 40')
    a('s_lshl_b32 s36, s30, 10')
    a('s_add_i32 s35, s35, s36')
    a('v_add_u32 v6, s35, v5')
    for i in range(4):
        if i:
            a('v_add_u32 v%d, %d, v6' % (10 + i, i * 4096))
            a('v_max_i32 v%d, 0, v%d' % (10 + i, 10 + i))
        else:
            a('v_max_i32 v10, 0, v6')
    a('s_mul_i32 s36, s31, %d' % (S * 40))
    a('s_lshl_b32 s37, s34, 1')
    a('v_add_u32 v14, s37, v5')
    a('v_max_i32 v14, 0, v14')
    a('s_waitcnt lgkmcnt(0)')
    stampv(a, 1, 79)
    make_srd_off(a, 40, 22, KA, H * S * 40)
    make_srd_off(a, 44, 22, VTA, 640 * S * 2)
    make_srd_off(a, 48, 22, QA, H * S * 40)
    make_srd_off(a, 52, 22, PQB, H * S * 40)
    make_srd(a, 56, 22, WS_SIZE)
    a('s_lshl_b32 s37, s30, 10')
    a('s_add_u32 s37, s37, s32')
    for i in range(4):
        if i == 3:
            a('s_cmp_eq_u32 s30, 3')
            a('s_cbranch_scc1 K2_SKIPK')
        a('s_add_u32 m0, s37, %d' % (i * 4096))
        a('buffer_load_dwordx4 v%d, s[40:43], s36 offen lds' % (10 + i))
    a.label('K2_SKIPK')
    a('s_lshl_b32 s37, s30, 5')
    a('s_add_u32 s37, s37, s33')
    a('s_mul_i32 s38, s37, 40')
    a('s_add_u32 s38, s38, s36')
    a('v_mul_u32_u24 v7, 40, v3')
    a('v_lshl_add_u32 v8, v4, 4, v7')
    a('buffer_load_dwordx4 v[16:19], v8, s[48:51], s38 offen')
    a('buffer_load_dwordx2 v[20:21], v7, s[48:51], s38 offen offset:32')
    a('s_mul_i32 s39, s31, 20')
    a('s_mul_i32 s60, s30, 5')
    a('s_add_u32 s39, s39, s60')
    a('s_lshl_b32 s39, s39, 12')
    a('s_mul_i32 s60, s30, %d' % (5 * K2_VP))
    a('s_add_u32 s60, s60, s32')
    a('s_add_u32 s60, s60, %d' % K2_V0)
    a('s_mov_b32 exec_hi, 0xffff')
    for i in range(5):
        a('s_add_u32 m0, s60, %d' % (i * K2_VP))
        a('buffer_load_dwordx4 v14, s[44:47], s39 offen lds')
        if i < 4:
            a('s_add_u32 s39, s39, 4096')
    a('s_mov_b32 exec_hi, -1')
    a('v_and_b32 v9, 15, v2')
    a('v_mul_u32_u24 v9, 40, v9')
    a('v_lshrrev_b32 v15, 4, v2')
    a('v_lshl_add_u32 v9, v15, 4, v9')
    a('buffer_load_dwordx4 v[24:27], v9, s[52:55], s38 offen')
    a('buffer_load_dwordx4 v[28:31], v9, s[52:55], s38 offen offset:640')
    a('s_lshl_b32 s39, s30, 9')
    a('v_lshlrev_b32 v22, 3, v2')
    a('v_add_u32 v22, s39, v22')
    a('v_cmp_gt_u32 vcc, 1680, v22')
    a('v_cndmask_b32 v23, -1, v22, vcc')
    a('s_mul_i32 s39, s31, 1680')
    make_srd_off(a, 60, 22, KVP, 16 * 32 * 1680)
    for rb in range(16):
        a('buffer_load_dwordx2 v[%d:%d], v23, s[60:63], s39 offen' % (32 + 2 * rb, 33 + 2 * rb))
        if rb < 15:
            a('s_add_u32 s39, s39, %d' % (32 * 1680))
    stampv(a, 2, 79)
    a('v_mov_b32 v64, 0x3f803f80')
    a('v_mov_b32 v65, 0x3f803f80')
    a('v_add_u32 v66, s32, v22')
    a('v_cmp_gt_u32 vcc, 784, v22')
    a('s_and_saveexec_b64 s[64:65], vcc')
    a('ds_write_b64 v66, v[64:65] offset:%d' % K2_O1)
    a('ds_write_b64 v66, v[64:65] offset:%d' % K2_O2)
    a('s_mov_b64 exec, s[64:65]')
    a('v_mov_b32 v64, 0')
    a('v_mov_b32 v65, 0')
    a('ds_write_b64 v66, v[64:65] offset:%d' % K2_KV0)
    a('v_lshlrev_b32 v67, 2, v4')
    a('v_sub_u32 v67, v3, v67')
    for r in range(16):
        c = 16 * ((r >> 2) & 1) + 8 * (r >> 3) + (r & 3)
        a('v_cmp_gt_i32 s[%d:%d], %d, v67' % (66 + 2 * r, 67 + 2 * r, c))
    a('v_mov_b32 v64, 0xffff')
    a('v_mov_b32 v65, 0xffff0000')
    for i in range(8):
        a('v_cndmask_b32 v%d, 0, v64, s[%d:%d]' % (68 + i, 66 + 4 * i, 67 + 4 * i))
        a('v_cndmask_b32 v76, 0, v65, s[%d:%d]' % (68 + 4 * i, 69 + 4 * i))
        a('v_or_b32 v%d, v%d, v76' % (68 + i, 68 + i))
    a('v_and_b32 v64, 7, v3')
    a('v_bfe_u32 v65, v3, 3, 1')
    a('v_lshl_add_u32 v64, v65, 4, v64')
    a('v_bfe_u32 v65, v3, 4, 1')
    a('v_lshl_add_u32 v64, v65, 3, v64')
    a('v_mul_u32_u24 v64, 40, v64')
    a('s_mul_i32 s39, s30, 1280')
    a('s_add_u32 s39, s39, s32')
    a('v_add_u32 v64, s39, v64')
    a('v_lshl_add_u32 v65, v4, 4, v64')
    a('v_mul_u32_u24 v66, %d, v3' % K2_VP)
    a('v_add_u32 v66, %d, v66' % K2_V0)
    a('v_cmp_lt_u32 vcc, 19, v3')
    a('v_mov_b32 v76, %d' % K2_O1)
    a('v_cndmask_b32 v66, v66, v76, vcc')
    a('v_cmp_lt_u32 vcc, 27, v3')
    a('v_mov_b32 v76, %d' % K2_O2)
    a('v_cndmask_b32 v66, v66, v76, vcc')
    a('v_lshl_add_u32 v66, v4, 4, v66')
    a('s_lshl_b32 s39, s30, 6')
    a('s_add_u32 s39, s39, s32')
    a('v_add_u32 v66, s39, v66')
    for b in (86, 87, 94, 95, 22 + 0 * 0):
        pass
    a('v_mov_b32 v86, 0')
    a('v_mov_b32 v87, 0')
    a('v_mov_b32 v94, 0')
    a('v_mov_b32 v95, 0')
    stampv(a, 3, 79)
    a('s_waitcnt vmcnt(23) lgkmcnt(0)')
    stampv(a, 4, 79)
    a('s_barrier')
    stampv(a, 5, 79)
    a('v_cmp_eq_u32 vcc, 0, v4')
    a('v_cndmask_b32 v20, 0, v20, vcc')
    a('v_cndmask_b32 v21, 0, v21, vcc')
    a('v_mov_b32 v77, v22')
    a('v_mov_b32 v22, 0')
    a('v_mov_b32 v23, 0')
    SC = 112
    KF = [80, 88]

    def kreads(t):
        b = KF[t & 1]
        a('ds_read_b64 v[%d:%d], v65 offset:%d' % (b, b + 1, t * 1280))
        a('ds_read_b64 v[%d:%d], v65 offset:%d' % (b + 2, b + 3, t * 1280 + 8))
        a('ds_read_b64 v[%d:%d], v64 offset:%d' % (b + 4, b + 5, t * 1280 + 32))

    kreads(0)
    for t in range(9):
        if t < 8:
            kreads(t + 1)
            a('s_waitcnt lgkmcnt(3)')
        else:
            a('s_waitcnt lgkmcnt(0)')
        b = KF[t & 1]
        d = vr(SC + 16 * t, 16)
        a('v_mfma_f32_32x32x16_bf16 %s, %s, v[16:19], 0' % (d, vr(b, 4)))
        a('v_mfma_f32_32x32x16_bf16 %s, %s, v[20:23], %s' % (d, vr(b + 4, 4), d))
    stampv(a, 6, 79)
    a('s_waitcnt vmcnt(0)')
    stampv(a, 7, 79)
    for rb in range(1, 16):
        a('v_add_f32 v32, v32, v%d' % (32 + 2 * rb))
        a('v_add_f32 v33, v33, v%d' % (33 + 2 * rb))
    a('v_cvt_pk_bf16_f32 v32, v32, v33')
    a('v_lshrrev_b32 v33, 3, v77')
    a('v_mul_u32_u24 v34, 205, v33')
    a('v_lshrrev_b32 v34, 11, v34')
    a('v_mul_u32_u24 v35, 10, v34')
    a('v_sub_u32 v35, v33, v35')
    a('v_lshlrev_b32 v35, 2, v35')
    a('v_lshl_add_u32 v35, v34, 6, v35')
    a('v_add_u32 v35, s32, v35')
    a('v_cmp_gt_u32 vcc, 210, v33')
    a('s_and_saveexec_b64 s[64:65], vcc')
    a('ds_write_b32 v35, v32 offset:%d' % K2_KV0)
    a('s_mov_b64 exec, s[64:65]')
    a('s_lshl_b32 s39, s28, 2')
    a('s_add_u32 s39, s39, s30')
    a('s_cmp_ge_u32 s39, 8')
    a('s_cbranch_scc1 K2_NOINV')
    for t in range(8):
        for r in range(16):
            a('v_mov_b32 v%d, 0xff800000' % (SC + 16 * t + r))
        if t < 7:
            a('s_cmp_ge_u32 s39, %d' % (7 - t))
            a('s_cbranch_scc1 K2_NOINV')
    a.label('K2_NOINV')
    for r in range(16):
        a('v_cndmask_b32 v%d, v%d, v%d, s[%d:%d]' % (SC + r, SC + 128 + r, SC + r, 66 + 2 * r, 67 + 2 * r))
    a('v_max3_f32 v32, v%d, v%d, v%d' % (SC, SC + 1, SC + 2))
    a('v_max3_f32 v33, v%d, v%d, v%d' % (SC + 3, SC + 4, SC + 5))
    a('v_max3_f32 v34, v%d, v%d, v%d' % (SC + 6, SC + 7, SC + 8))
    a('v_max3_f32 v35, v%d, v%d, v%d' % (SC + 9, SC + 10, SC + 11))
    i = 12
    k = 0
    while i < 128:
        a('v_max3_f32 v%d, v%d, v%d, v%d' % (32 + k, 32 + k, SC + i, SC + i + 1))
        i += 2
        k = (k + 1) & 3
    a('v_max3_f32 v32, v32, v33, v34')
    a('v_max_f32 v32, v32, v35')
    a('v_mov_b32 v33, v32')
    a('v_permlane32_swap_b32 v32, v33')
    a('v_max_f32 v32, v32, v33')
    CS = (DH ** -0.5) * LOG2E
    a('s_mov_b32 s39, %s' % f32(CS))
    a('v_mul_f32 v32, s39, v32')
    stampv(a, 8, 79)
    a('s_waitcnt lgkmcnt(0)')
    a('s_barrier')
    stampv(a, 9, 79)
    OA = 96
    VF = [32 + 8, 32 + 12, 32 + 16, 32 + 20]

    def vread(idx):
        t, j = idx >> 1, idx & 1
        a('ds_read_b128 %s, v66 offset:%d' % (vr(VF[idx & 3], 4), t * 64 + j * 32))

    def softmax_tile(t):
        b = SC + 16 * t
        for r in range(16):
            a('v_fma_f32 v%d, v%d, s39, -v32' % (b + r, b + r))
        for r in range(16):
            a('v_exp_f32 v%d, v%d' % (b + r, b + r))
        for i in range(8):
            a('v_cvt_pk_bf16_f32 v%d, v%d, v%d' % (b + i, b + 2 * i, b + 2 * i + 1))

    order = [1, 2, 3, 4, 5, 6, 7, 0, 8]
    first = True
    for n_, t in enumerate(order):
        vread(2 * t)
        vread(2 * t + 1)
        if t == 0:
            softmax_tile(0)
            for i in range(8):
                a('v_bfi_b32 v%d, v%d, 0, v%d' % (SC + 128 + i, 68 + i, SC + i))
                a('v_and_b32 v%d, v%d, v%d' % (SC + i, 68 + i, SC + i))
        elif t != 8:
            softmax_tile(t)
        a('s_waitcnt lgkmcnt(0)')
        for j in range(2):
            c = '0' if first else vr(OA, 16)
            a('v_mfma_f32_32x32x16_bf16 %s, %s, %s, %s' % (vr(OA, 16), vr(VF[(2 * t + j) & 3], 4),
                                                          vr(SC + 16 * t + 4 * j, 4), c))
            first = False
    stampv(a, 10, 79)
    a('v_and_b32 v33, 15, v2')
    a('v_lshlrev_b32 v34, 4, v15')
    a('v_add_u32 v34, s32, v34')
    a('v_lshl_add_u32 v35, v33, 6, v34')
    a('ds_read_b128 v[40:43], v35 offset:%d' % K2_KV0)
    a('ds_read_b128 v[44:47], v35 offset:%d' % (K2_KV0 + 1024))
    a('ds_read_b128 v[48:51], v34 offset:%d' % (K2_KV0 + 1280))
    a('v_rcp_f32 v36, v%d' % (OA + 12))
    a('s_waitcnt lgkmcnt(0)')
    for rt in range(2):
        pq = vr(24 + 4 * rt, 4)
        a('v_mfma_f32_16x16x32_bf16 %s, v[40:43], %s, 0' % (vr(SC + 12 * rt, 4), pq))
        a('v_mfma_f32_16x16x32_bf16 %s, v[44:47], %s, 0' % (vr(SC + 12 * rt + 4, 4), pq))
        a('v_mfma_f32_16x16x32_bf16 %s, v[48:51], %s, 0' % (vr(SC + 12 * rt + 8, 4), pq))
    for r in range(12):
        a('v_mul_f32 v%d, v%d, v36' % (OA + r, OA + r))
    for i in range(6):
        a('v_cvt_pk_bf16_f32 v%d, v%d, v%d' % (52 + i, OA + 2 * i, OA + 2 * i + 1))
    a('s_lshr_b32 s38, s37, 4')
    a('s_mul_i32 s38, s38, 40960')
    a('s_add_u32 s38, s38, %d' % OF)
    a('v_bfe_u32 v37, v3, 4, 1')
    a('v_mul_u32_u24 v37, 40960, v37')
    a('v_lshl_add_u32 v37, v33, 4, v37')
    a('s_mul_i32 s39, s31, 20')
    a('v_lshlrev_b32 v38, 2, v4')
    a('v_add_u32 v38, s39, v38')

    def oaddr(dst, kk, base):
        a('v_lshrrev_b32 v%d, 3, v%d' % (dst, kk))
        a('v_lshl_add_u32 v%d, v%d, 8, v%d' % (dst, dst, base))
        a('v_and_b32 v39, 4, v%d' % kk)
        a('v_lshl_add_u32 v%d, v39, 1, v%d' % (dst, dst))

    oaddr(58, 38, 37)
    a('buffer_store_dwordx2 v[52:53], v58, s[56:59], s38 offen')
    a('buffer_store_dwordx2 v[54:55], v58, s[56:59], s38 offen offset:256')
    a('s_mov_b32 exec_hi, 0')
    a('buffer_store_dwordx2 v[56:57], v58, s[56:59], s38 offen offset:512')
    a('s_mov_b32 exec_hi, -1')
    a('s_add_u32 s39, s39, 640')
    a('v_lshlrev_b32 v38, 2, v15')
    a('v_add_u32 v38, s39, v38')
    a('v_lshlrev_b32 v37, 4, v33')
    oaddr(58, 38, 37)
    a('s_mov_b32 s39, %s' % f32(1e-6))
    for rt in range(2):
        b = SC + 12 * rt
        a('v_add_f32 v36, s39, v%d' % (b + 8))
        a('v_rcp_f32 v36, v36')
        for r in range(8):
            a('v_mul_f32 v%d, v%d, v36' % (b + r, b + r))
        for i in range(4):
            a('v_cvt_pk_bf16_f32 v%d, v%d, v%d' % (40 + 4 * rt + i, b + 2 * i, b + 2 * i + 1))
    a('s_add_u32 s39, s38, 40960')
    a('buffer_store_dwordx2 v[40:41], v58, s[56:59], s38 offen')
    a('buffer_store_dwordx2 v[44:45], v58, s[56:59], s39 offen')
    a('s_mov_b64 exec, 0xffff')
    a('buffer_store_dwordx2 v[42:43], v58, s[56:59], s38 offen offset:512')
    a('buffer_store_dwordx2 v[46:47], v58, s[56:59], s39 offen offset:512')
    stampv(a, 11, 79)
    if DIAG:
        a('s_waitcnt vmcnt(0)')
    stampv(a, 12, 79)
    stampv(a, 31, 79, True)
    stampv_flush(a, 1, 24, 56, 79, 78)
    a.label('K2_END')
    a('s_endpgm')
    return name


K3_LDS = 4 * 3 * 5 * 1024


def gen_k3(a):
    name = 'k3_out_kernel'
    kernel_header(a, name)
    a('s_cmp_ge_u32 s2, 256')
    a('s_cbranch_scc1 K3_END')
    stampv(a, 0, 250)
    a('s_load_dwordx2 s[18:19], s[0:1], 56')
    a('s_load_dwordx2 s[22:23], s[0:1], 72')
    a('v_lshrrev_b32 v1, 6, v0')
    a('v_and_b32 v2, 63, v0')
    a('v_readfirstlane_b32 s24, v1')
    a('s_and_b32 s25, s2, 7')
    a('s_lshr_b32 s26, s2, 3')
    a('s_and_b32 s27, s25, 1')
    a('s_lshl_b32 s27, s27, 2')
    a('s_and_b32 s28, s26, 3')
    a('s_add_u32 s27, s27, s28')
    a('s_lshr_b32 s28, s25, 1')
    a('s_lshl_b32 s28, s28, 3')
    a('s_lshr_b32 s29, s26, 2')
    a('s_add_u32 s28, s28, s29')
    a('v_lshlrev_b32 v3, 4, v2')
    a('s_mul_i32 s30, s28, %d' % (160 * 1024))
    a('s_mul_i32 s31, s24, 10240')
    a('s_add_u32 s30, s30, s31')
    a('s_add_u32 s30, s30, %d' % OF)
    a('s_mul_i32 s32, s27, %d' % (200 * 1024))
    a('s_add_u32 s32, s32, s31')
    a('s_add_u32 s32, s32, %d' % WOF)
    for i in range(1, 5):
        a('v_add_u32 v%d, %d, v3' % (3 + i, i * 40960))
    a('v_and_b32 v8, 15, v2')
    a('v_lshrrev_b32 v9, 4, v2')
    a('v_lshlrev_b32 v10, 2, v8')
    a('s_lshl_b32 s33, s28, 8')
    a('s_add_u32 s33, s33, %d' % GG)
    a('s_waitcnt lgkmcnt(0)')
    make_srd(a, 40, 22, WS_SIZE)
    make_srd(a, 44, 18, S * D * 2)
    stampv(a, 1, 250)
    ACC = 16
    FR = 96
    NST = 4

    def loads(ks):
        b = FR + (ks % NST) * 36
        for rt in range(4):
            a('buffer_load_dwordx4 %s, v%d, s[40:43], s30 offen offset:%d' % (vr(b + 4 * rt, 4), 3 + rt, (ks & 3) * 1024))
        for ct in range(5):
            a('buffer_load_dwordx4 %s, v%d, s[40:43], s32 offen offset:%d' % (vr(b + 16 + 4 * ct, 4), 3 + ct, (ks & 3) * 1024))
        if (ks & 3) == 3:
            a('s_add_u32 s30, s30, 4096')
            a('s_add_u32 s32, s32, 4096')

    for rt in range(4):
        a('buffer_load_dword v%d, v10, s[40:43], s33 offen offset:%d' % (12 + rt, rt * 64))
    for ks in range(NST):
        loads(ks)
    for ks in range(10):
        rem = min(NST - 1, 9 - ks)
        stampv(a, 2 + 2 * ks, 250)
        a('s_waitcnt vmcnt(%d)' % (9 * rem))
        stampv(a, 3 + 2 * ks, 250)
        b = FR + (ks % NST) * 36
        for ct in range(5):
            for rt in range(4):
                acc = vr(ACC + (rt * 5 + ct) * 4, 4)
                a('v_mfma_f32_16x16x32_bf16 %s, %s, %s, %s' % (acc, vr(b + 16 + 4 * ct, 4), vr(b + 4 * rt, 4),
                                                              '0' if ks == 0 else acc))
        if ks + NST < 10:
            loads(ks + NST)
    stampv(a, 22, 250)
    a('s_cmp_lt_u32 s24, 2')
    a('s_cbranch_scc1 K3_NOINV')
    for rt in range(4):
        a('v_sub_f32 v%d, 1.0, v%d' % (12 + rt, 12 + rt))
    a.label('K3_NOINV')
    for rt in range(4):
        for i in range(20):
            r = ACC + rt * 20 + i
            a('v_mul_f32 v%d, v%d, v%d' % (r, r, 12 + rt))
    a('s_mul_i32 s34, s24, 5120')
    a('v_add_u32 v11, s34, v3')
    a('v_add_u32 v1, 40960, v11')
    for rt in range(4):
        a('s_cmp_eq_u32 s24, %d' % rt)
        a('s_cbranch_scc1 K3_SKIPW%d' % rt)
        for ct in range(5):
            a('ds_write_b128 v%d, %s offset:%d' % (11 if rt < 2 else 1, vr(ACC + (rt * 5 + ct) * 4, 4),
                                                  (rt & 1) * 20480 + ct * 1024))
        a.label('K3_SKIPW%d' % rt)
    for rt in range(4):
        a('s_cmp_lg_u32 s24, %d' % rt)
        a('s_cbranch_scc1 K3_SKIPM%d' % rt)
        for i in range(20):
            a('v_mov_b32 v%d, v%d' % (96 + i, ACC + rt * 20 + i))
        a.label('K3_SKIPM%d' % rt)
    a('s_mul_i32 s34, s24, 20480')
    a('v_add_u32 v11, s34, v3')
    a('s_waitcnt lgkmcnt(0)')
    a('s_barrier')
    stampv(a, 23, 250)
    for k in range(1, 4):
        a('s_add_u32 s35, s24, %d' % k)
        a('s_and_b32 s35, s35, 3')
        a('s_mul_i32 s35, s35, 5120')
        a('v_add_u32 v1, s35, v11')
        for ct in range(5):
            a('ds_read_b128 %s, v1 offset:%d' % (vr(96 + 20 * k + 4 * ct, 4), ct * 1024))
    a('s_waitcnt lgkmcnt(0)')
    for k in range(1, 4):
        for i in range(20):
            a('v_add_f32 v%d, v%d, v%d' % (96 + i, 96 + i, 96 + 20 * k + i))
    for i in range(10):
        a('v_cvt_pk_bf16_f32 v%d, v%d, v%d' % (16 + i, 96 + 2 * i, 96 + 2 * i + 1))
    a('v_mul_u32_u24 v1, 1280, v8')
    a('v_lshl_add_u32 v1, v9, 3, v1')
    a('s_lshl_b32 s34, s28, 6')
    a('s_lshl_b32 s35, s24, 4')
    a('s_add_u32 s34, s34, s35')
    a('s_mul_i32 s34, s34, 1280')
    a('s_mul_i32 s35, s27, 160')
    a('s_add_u32 s34, s34, s35')
    for ct in range(5):
        a('buffer_store_dwordx2 %s, v1, s[44:47], s34 offen offset:%d' % (vr(16 + 2 * ct, 2), ct * 32))
    stampv(a, 24, 250)
    if DIAG:
        a('s_waitcnt vmcnt(0)')
    stampv(a, 25, 250)
    stampv_flush(a, 2, 24, 40, 250, 251)
    a.label('K3_END')
    a('s_endpgm')
    return name


K3_LDS = 16 * 5120


def main():
    a = Asm()
    hdr = open('cdna_kernels/%s.s.ref' % NAME).read().split('\n')
    head = [l for l in hdr if l.startswith(';') and '@launch' not in l and 'Override launch' not in l
            and 'grid=ceil' not in l]
    head = head[:12]
    lines = head + [
        '; @launch kernel=k1_qkv_kernel grid=(256,1,1) block=(512,1,1) lds=%d' % K1_LDS,
        '; @launch kernel=k2_attn_kernel grid=(256,1,1) block=(512,1,1) lds=%d' % K2_LDS,
        '; @launch kernel=k3_out_kernel grid=(256,1,1) block=(256,1,1) lds=%d' % K3_LDS,
        '.amdgcn_target "amdgcn-amd-amdhsa--gfx950"',
        '.text',
    ]
    n1 = gen_k1(a)
    n2 = gen_k2(a)
    n3 = gen_k3(a)
    body = a.finish()
    out = '\n'.join(lines) + '\n' + body
    out += '.section .rodata,"a"\n'
    out += kernel_desc(n1, 256) + kernel_desc(n2, 256) + kernel_desc(n3, 256)
    path = sys.argv[1] if len(sys.argv) > 1 else 'cdna_kernels/%s.s' % NAME
    open(path, 'w').write(out)
    print('wrote', path, len(out), 'bytes; nops inserted:', len(a.nops_inserted))
    if '-v' in sys.argv:
        for t, k in a.nops_inserted:
            print('  nop %d before %s' % (k, t))


if __name__ == "__main__":
    main()
```

```python
import sys
sys.argv.append('--diag')
sys.path.insert(0,'gen')
import gen
from gen import *
def kern(a, name, kidx, flags):
    kernel_header(a, name)
    a('s_load_dwordx2 s[22:23], s[0:1], 72')
    a('v_lshrrev_b32 v1, 6, v0')
    a('v_and_b32 v2, 63, v0')
    a('v_readfirstlane_b32 s24, v1')
    for i in range(16, 32):
        a('v_mov_b32 v%d, 1.0' % i)
    a('v_and_b32 v3, 15, v2')
    a('v_lshrrev_b32 v4, 4, v2')
    a('v_lshlrev_b32 v5, 4, v2')
    a('v_mul_u32_u24 v6, 40, v3')
    a('v_mul_u32_u24 v7, 5120, v4')
    a('v_add_u32 v6, v6, v7')
    a('v_lshlrev_b32 v7, 8, v3')
    a('v_lshl_add_u32 v7, v4, 4, v7')
    a('s_waitcnt lgkmcnt(0)')
    make_srd(a, 40, 22, WS_SIZE)
    a('s_lshl_b32 s30, s2, 16')
    a('s_lshl_b32 s31, s24, 14')
    a('s_add_u32 s30, s30, s31')
    a('s_add_u32 s30, s30, %d' % (64 << 20))
    ti = 0
    for pat in range(3):
        a('s_barrier')
        stampv(a, 3 * ti, 250)
        a('s_add_u32 s31, s30, %d' % ((pat * 16 + kidx * 48) << 20))
        if pat == 0:
            for i in range(16):
                a('buffer_store_dwordx4 v[16:19], v5, s[40:43], s31 offen offset:%d %s' % ((i & 3) * 1024, flags))
                if (i & 3) == 3:
                    a('s_add_u32 s31, s31, 4096')
        elif pat == 1:
            for i in range(6):
                a('buffer_store_dwordx4 v[16:19], v6, s[40:43], s31 offen offset:%d %s' % (i * 640, flags))
                a('buffer_store_dwordx4 v[16:19], v6, s[40:43], s31 offen offset:%d %s' % (i * 640 + 16, flags))
                a('buffer_store_dwordx2 v[16:17], v6, s[40:43], s31 offen offset:%d %s' % (i * 640 + 32, flags))
        else:
            for i in range(16):
                a('buffer_store_dwordx4 v[16:19], v7, s[40:43], s31 offen offset:%d %s' % ((i & 3) * 64, flags))
                if (i & 3) == 3:
                    a('s_add_u32 s31, s31, 4096')
        stampv(a, 3 * ti + 1, 250)
        a('s_waitcnt vmcnt(0)')
        stampv(a, 3 * ti + 2, 250)
        ti += 1
    stampv_flush(a, kidx, 24, 40, 250, 251)
    a('s_endpgm')
a = Asm()
kern(a, 'm1_kernel', 0, '')
kern(a, 'm2_kernel', 1, 'sc1')
kern(a, 'm3_kernel', 2, 'nt')
out = ''.join('; @launch kernel=m%d_kernel grid=(256,1,1) block=(256,1,1) lds=0\n' % i for i in (1,2,3)) + '.amdgcn_target "amdgcn-amd-amdhsa--gfx950"\n.text\n' + a.finish() + '.section .rodata,"a"\n' + ''.join(kernel_desc('m%d_kernel' % i, 256) for i in (1,2,3))
open('mb2.s', 'w').write(out)
```

```python
import sys, os, struct
sys.path.insert(0, os.path.dirname(os.path.abspath(__file__)))
from asmdsl import Asm

NAME = 'gated_mix__sliding_block__linear_attn_block__prompt'
S, D, H, DH = 2048, 640, 32, 20
DIAG = '--diag' in sys.argv
NOROT = '--rot1' not in sys.argv
GSLEEP = 2
_rot = [x for x in sys.argv if x.startswith('--rot=')]
RA, RM1, RB, RM2 = [int(v) for v in _rot[0][6:].split(',')] if _rot else (1, 7, 3, 3)
NOROT3 = '--rot3' not in sys.argv
PAIR = 4 if '--pair' in sys.argv else 0
EXP1 = '--exp1' in sys.argv
EXP2 = '--exp2' in sys.argv
EXP3 = '--exp3' in sys.argv
FUSED = '--split' not in sys.argv
SC = ' sc1' if FUSED else ''
LC = ' sc1' if (FUSED and '--lsc1' in sys.argv) else ''

QA = 0
KA = QA + H * S * 40
VTA = KA + H * S * 40
PQB = VTA + 640 * S * 2
GG = PQB + H * S * 40
OF = GG + 8192
WOF = OF + S * 1280 * 2
ZR = WOF + 1280 * 640 * 2
FLG1 = ZR
FLG2 = ZR + 1024
KVA = ZR + 2048
WS_SIZE = 268435456
DIAG_OFF = 32 << 20
SPIN_LIMIT = 1 << 16


def f32(x):
    return '0x%08x' % struct.unpack('<I', struct.pack('<f', x))[0]


LOG2E = 1.4426950408889634
SRD3 = '0x00020000'
WS = 's[36:39]'


def vr(a, n=1):
    return 'v%d' % a if n == 1 else 'v[%d:%d]' % (a, a + n - 1)


def make_srd(a, d, ptr, size):
    a('s_mov_b32 s%d, s%d' % (d, ptr))
    a('s_and_b32 s%d, s%d, 0xffff' % (d + 1, ptr + 1))
    a('s_mov_b32 s%d, %d' % (d + 2, size))
    a('s_mov_b32 s%d, %s' % (d + 3, SRD3))


def make_srd_off(a, d, ptr, off, size):
    a('s_add_u32 s%d, s%d, %d' % (d, ptr, off))
    a('s_addc_u32 s%d, s%d, 0' % (d + 1, ptr + 1))
    a('s_and_b32 s%d, s%d, 0xffff' % (d + 1, d + 1))
    a('s_mov_b32 s%d, %d' % (d + 2, size))
    a('s_mov_b32 s%d, %s' % (d + 3, SRD3))


STV = 255


def stamp_move(a, new):
    global STV
    if DIAG:
        a('v_mov_b32 v%d, v%d' % (new, STV))
        STV = new


def stampv(a, idx, real=False):
    if DIAG:
        a('%s s[100:101]' % ('s_memrealtime' if real else 's_memtime'))
        a('s_waitcnt lgkmcnt(0)')
        a('v_writelane_b32 v%d, s100, %d' % (STV, idx))


def stampv_flush(a, kern):
    if DIAG:
        a('s_mov_b64 exec, -1')
        a('s_lshl_b32 s100, s2, 3')
        a('s_add_u32 s100, s100, s24')
        a('s_lshl_b32 s100, s100, 8')
        a('s_add_u32 s100, s100, %d' % (DIAG_OFF + kern * (1 << 20)))
        a('v_and_b32 v%d, 63, v0' % (STV - 1))
        a('v_lshlrev_b32 v%d, 2, v%d' % (STV - 1, STV - 1))
        a('buffer_store_dword v%d, v%d, %s, s100 offen' % (STV, STV - 1, WS))


def tick0(a):
    if DIAG:
        a('s_memtime s[100:101]')
        a('s_waitcnt lgkmcnt(0)')
        a('s_mov_b32 s96, s100')


def tick1(a, acc):
    if DIAG:
        a('s_memtime s[100:101]')
        a('s_waitcnt lgkmcnt(0)')
        a('s_sub_u32 s96, s100, s96')
        a('s_add_u32 s%d, s%d, s96' % (acc, acc))


def tick_out(a, acc, idx):
    if DIAG:
        a('v_writelane_b32 v%d, s%d, %d' % (STV, acc, idx))


def kernel_header(a, name):
    a.raw('.globl %s' % name)
    a.raw('.p2align 8')
    a.raw('.type %s,@function' % name)
    a.label(name)
    a.barrier_hazards()


def kernel_desc(name, vgpr, sgpr=102, accum=None):
    if accum is None:
        accum = (vgpr + 3) // 4 * 4
    return f'''.p2align 6
.amdhsa_kernel {name}
  .amdhsa_next_free_vgpr {vgpr}
  .amdhsa_next_free_sgpr {sgpr}
  .amdhsa_accum_offset {accum}
  .amdhsa_group_segment_fixed_size 0
  .amdhsa_kernarg_size 80
  .amdhsa_user_sgpr_count 2
  .amdhsa_user_sgpr_kernarg_segment_ptr 1
  .amdhsa_system_sgpr_workgroup_id_x 1
.end_amdhsa_kernel
'''


def common_prologue(a, endlabel):
    a('s_cmp_ge_u32 s2, 256')
    a('s_cbranch_scc1 %s' % endlabel)
    a('s_load_dwordx16 s[4:19], s[0:1], 0')
    a('s_load_dwordx4 s[20:23], s[0:1], 64')
    a('v_lshrrev_b32 v1, 6, v0')
    a('v_and_b32 v2, 63, v0')
    a('v_readfirstlane_b32 s24, v1')
    a('s_mov_b32 s98, 0')
    if DIAG:
        for r_ in (90, 91, 92, 93):
            a('s_mov_b32 s%d, 0' % r_)
    a('s_and_b32 s25, s2, 7')
    a('s_lshr_b32 s26, s2, 3')
    a('s_and_b32 s27, s25, 3')
    a('s_lshl_b32 s27, s27, 2')
    a('s_and_b32 s28, s26, 3')
    a('s_add_u32 s27, s27, s28')
    a('s_lshr_b32 s28, s25, 2')
    a('s_lshl_b32 s28, s28, 3')
    a('s_lshr_b32 s29, s26, 2')
    a('s_add_u32 s28, s28, s29')
    a('s_lshr_b32 s29, s27, 3')
    a('s_and_b32 s30, s27, 7')
    a('s_and_b32 s3, s26, %d' % (3 & RM2))
    a('s_mul_i32 s3, s3, %d' % RB)
    a('s_lshr_b32 s26, s26, 2')
    a('s_and_b32 s26, s26, %d' % RM1)
    a('s_mul_i32 s26, s26, %d' % RA)
    a('s_add_u32 s3, s3, s26')
    for _ in range(3):
        a('s_cmp_ge_u32 s3, 10')
        a('s_cselect_b32 s26, 10, 0')
        a('s_sub_u32 s3, s3, s26')
    if NOROT:
        a('s_mov_b32 s3, 0')


uid = [0]


def poll_loop(a, load_instr, nregs, freg, cond_regs_ok):
    uid[0] += 1
    L = 'POLL%d' % uid[0]
    a('s_mov_b32 s98, 0')
    a.label(L)
    a(load_instr)
    a('s_waitcnt vmcnt(0)')
    cond_regs_ok()
    a('s_cbranch_scc1 %s_OK' % L)
    a('s_sleep 1')
    a('s_add_u32 s98, s98, 1')
    a('s_cmp_lt_u32 s98, %d' % SPIN_LIMIT)
    a('s_cbranch_scc1 %s' % L)
    a.label(L + '_OK')


SLOT = 47104
WOFFS = 16384
L_GATE = 3 * SLOT
L_WOSCR = L_GATE + 2048
L_FLAGS = L_WOSCR + 8192
LDS_TOTAL = L_FLAGS + 64
ST_Q = 0
ST_K = 20480
ST_V = 40960
VPITCH = 272
ST_FR = 65536
ST_KV = ST_FR + 40960


def phase1(a):
    a('s_cmp_ge_u32 s24, 4')
    a('s_cbranch_scc0 P1_CONS')
    a('s_sub_u32 s31, s24, 4')
    a('v_lshrrev_b32 v3, 3, v2')
    a('v_and_b32 v4, 7, v2')
    a('v_lshrrev_b32 v5, 1, v3')
    a('v_xor_b32 v4, v4, v5')
    a('v_lshlrev_b32 v4, 4, v4')
    a('v_mul_u32_u24 v3, 1280, v3')
    a('v_add_u32 v10, v3, v4')
    a('v_xor_b32 v11, 64, v10')
    a('v_add_u32 v11, 10240, v11')
    a('v_add_u32 v12, 20480, v10')
    a('v_add_u32 v13, 20480, v11')
    a('v_cmp_lt_u32 vcc, 29, v2')
    a('s_lshl_b32 s32, s28, 7')
    a('s_lshl_b32 s33, s31, 5')
    a('v_cndmask_b32 v3, 0, 1, vcc')
    a('v_mul_u32_u24 v4, 30, v3')
    a('v_sub_u32 v4, v2, v4')
    a('v_mul_u32_u24 v5, 26, v4')
    a('v_lshrrev_b32 v5, 8, v5')
    a('v_mul_u32_u24 v6, 10, v5')
    a('v_sub_u32 v6, v4, v6')
    a('v_mul_u32_u24 v3, 3840, v3')
    a('v_mul_u32_u24 v5, 1280, v5')
    a('v_lshlrev_b32 v6, 4, v6')
    a('v_add3_u32 v14, v3, v5, v6')
    for ii in range(1, 4):
        koff = 2 * (ii & 1) + 8 * (ii >> 1)
        a('v_add_u32 v%d, %d, v14' % (14 + ii, koff * 3840))
    a('v_lshlrev_b32 v23, 4, v2')
    a('s_add_u32 s32, s32, s33')
    a('s_mul_i32 s32, s32, 1280')
    a('s_and_b32 s33, s31, 1')
    a('s_lshl_b32 s33, s33, 2')
    a('s_lshr_b32 s34, s31, 1')
    a('s_lshl_b32 s34, s34, 4')
    a('s_add_u32 s33, s33, s34')
    a('s_mul_i32 s33, s33, 3840')
    a('s_mul_i32 s34, s30, 160')
    a('s_add_u32 s33, s33, s34')
    a('s_lshl_b32 s34, s31, 12')
    a('s_mul_i32 s35, s31, 3840')
    a('s_add_u32 s35, s35, %d' % WOFFS)
    a('s_mov_b32 s48, -1')
    a('s_mov_b32 s49, 0x0fffffff')
    a('s_lshl_b32 s50, s31, 2')
    a('s_add_u32 s50, s50, %d' % L_FLAGS)
    a('v_mov_b32 v20, s50')
    a('v_mov_b32 v21, %d' % (L_FLAGS + 16))
    a('s_mov_b32 s52, 0')
    a('s_lshl_b32 s56, s3, 7')
    a('s_add_u32 s32, s32, s56')
    a('s_mul_i32 s56, s3, %d' % (64 * 3840))
    a('s_add_u32 s33, s33, s56')
    a('s_sub_u32 s54, 10, s3')
    a('s_lshl_b32 s55, s54, 1')
    a('s_waitcnt lgkmcnt(0)')
    make_srd(a, 40, 4, S * D * 2)
    a('s_cmp_eq_u32 s29, 0')
    a('s_cselect_b32 s44, s6, s12')
    a('s_cselect_b32 s45, s7, s13')
    a('s_and_b32 s45, s45, 0xffff')
    a('s_mov_b32 s46, %d' % (D * 3 * D * 2))
    a('s_mov_b32 s47, %s' % SRD3)

    def grp_x():
        a('s_add_u32 s51, s50, s34')
        for ii in range(4):
            a('s_add_u32 m0, s51, %d' % (ii * 1024))
            if not EXP2:
                a('buffer_load_dwordx4 v%d, s[40:43], s32 offen lds' % (10 + ii))
        a('s_add_u32 s32, s32, 128')
        a('s_sub_u32 s54, s54, 1')
        a('s_cmp_eq_u32 s54, 0')
        a('s_cselect_b32 s56, 1280, 0')
        a('s_sub_u32 s32, s32, s56')
        a('s_add_u32 s52, s52, 4')

    def grp_w(u):
        a('s_add_u32 s51, s50, s35')
        a('s_mov_b64 exec, s[48:49]')
        for ii in range(4):
            a('s_add_u32 m0, s51, %d' % (u * 15360 + ii * 960))
            if not EXP2:
                a('buffer_load_dwordx4 v%d, s[44:47], s33 offen lds' % (14 + ii))
        a('s_mov_b64 exec, -1')
        a('s_add_u32 s33, s33, %d' % (32 * 3840))
        a('s_sub_u32 s55, s55, 1')
        a('s_cmp_eq_u32 s55, 0')
        a('s_cselect_b32 s56, %d, 0' % (640 * 3840))
        a('s_sub_u32 s33, s33, s56')
        a('s_add_u32 s52, s52, 4')

    def publish():
        a('s_getreg_b32 s56, hwreg(HW_REG_IB_STS)')
        a('s_lshr_b32 s57, s56, 18')
        a('s_and_b32 s57, s57, 0x30')
        a('s_and_b32 s56, s56, 15')
        a('s_or_b32 s56, s56, s57')
        a('s_sub_i32 s56, s52, s56')
        a('s_max_i32 s56, s56, 0')
        a('s_lshr_b32 s56, s56, 2')
        a('v_mov_b32 v22, s56')
        a('ds_write_b32 v20, v22')

    def gate(tag, need):
        a.label(tag + '_T')
        a('ds_read_b128 v[24:27], v21')
        a('s_waitcnt lgkmcnt(0)')
        a('v_min3_u32 v24, v24, v25, v26')
        a('v_min_u32 v24, v24, v27')
        a('v_readfirstlane_b32 s58, v24')
        a('s_cmp_ge_i32 s58, %s' % need)
        a('s_cbranch_scc1 %s' % tag)
        publish()
        a('s_sleep %d' % GSLEEP)
        a('s_add_u32 s98, s98, 1')
        a('s_cmp_gt_u32 s98, %d' % (SPIN_LIMIT * 8))
        a('s_cbranch_scc0 %s_T' % tag)
        a.label(tag)

    a('s_cmp_lg_u32 s31, 0')
    a('s_cbranch_scc1 P1_L_NOGATE')
    make_srd(a, 60, 16, 1280)
    a('s_mov_b32 m0, %d' % L_GATE)
    a('s_mov_b32 s59, 1024')
    a('buffer_load_dwordx4 v23, s[60:63], 0 offen lds')
    a('s_mov_b32 m0, %d' % (L_GATE + 1024))
    a('buffer_load_dwordx4 v23, s[60:63], s59 offen lds')
    a.label('P1_L_NOGATE')
    a('s_mov_b32 s50, 0')
    grp_x()
    grp_w(0)
    make_srd(a, 36, 22, WS_SIZE)
    stampv(a, 1)
    a('s_barrier')
    grp_w(1)
    publish()
    a('s_mov_b32 s50, %d' % SLOT)
    a('s_mov_b32 s53, -3')
    a.label('P1_L_LOOP')
    gate('P1_L_G1', 's53')
    grp_w(0)
    publish()
    a('s_add_u32 s53, s53, 1')
    gate('P1_L_G2', 's53')
    grp_x()
    publish()
    grp_w(1)
    publish()
    a('s_add_u32 s53, s53, 1')
    a('s_add_u32 s50, s50, %d' % SLOT)
    a('s_cmp_eq_u32 s50, %d' % (3 * SLOT))
    a('s_cselect_b32 s50, 0, s50')
    a('s_cmp_lt_i32 s53, 15')
    a('s_cbranch_scc1 P1_L_LOOP')
    for n_ in (12, 8, 4, 0):
        a('s_waitcnt vmcnt(%d)' % n_)
        publish()
    stampv(a, 3)
    a('s_cmp_lg_u32 s31, 0')
    a('s_cbranch_scc1 P1_L_NOZ')
    make_srd(a, 52, 20, 256)
    a('v_mov_b32 v24, 0')

    def zok():
        a('v_readfirstlane_b32 s57, v25')
        a('s_cmp_eq_u32 s57, 32')
    poll_loop(a, 'buffer_load_dword v25, v24, s[52:55], 0 offen sc1', 1, 25, zok)
    a.label('P1_L_NOZ')
    stampv(a, 4)
    a('s_barrier')
    a('s_branch P1_STORE')

    a.label('P1_CONS')
    a.barrier_hazards()
    F0, F1, ACC = 16, 64, 112
    FL = 240
    a('s_lshr_b32 s31, s24, 1')
    a('s_and_b32 s32, s24, 1')
    a('v_and_b32 v3, 15, v2')
    a('v_lshrrev_b32 v4, 4, v2')
    a('v_bfe_u32 v5, v2, 2, 2')
    a('v_and_b32 v6, 3, v2')
    a('v_mov_b32 v244, %d' % L_FLAGS)
    a('v_mov_b32 v16, 0')
    a('v_mov_b32 v17, 0')
    a('v_mov_b32 v18, 0')
    a('v_mov_b32 v19, 0')
    a('ds_write_b128 v244, v[16:19]')
    a('ds_write_b128 v244, v[16:19] offset:16')
    a('v_lshlrev_b32 v246, 4, v2')
    a('s_mul_i32 s40, s2, 52429')
    a('s_lshr_b32 s40, s40, 18')
    a('s_mul_i32 s41, s40, 5')
    a('s_sub_u32 s41, s2, s41')
    a('v_lshrrev_b32 v7, 2, v2')
    a('v_mul_u32_u24 v7, 1280, v7')
    a('v_lshl_add_u32 v247, v6, 4, v7')
    a('s_lshl_b32 s42, s24, 11')
    a('s_add_u32 s42, s42, %d' % L_WOSCR)
    a('s_waitcnt lgkmcnt(0)')
    make_srd(a, 36, 22, WS_SIZE)
    a('s_cmp_ge_u32 s2, 8')
    a('s_cbranch_scc1 P1_C_NOZ')
    a('s_lshl_b32 s43, s2, 2')
    a('s_add_u32 s43, s43, s24')
    a('s_lshl_b32 s43, s43, 11')
    a('s_add_u32 s43, s43, %d' % ZR)
    a('buffer_store_dwordx4 v[16:19], v246, %s, s43 offen sc1' % WS)
    a('buffer_store_dwordx4 v[16:19], v246, %s, s43 offen offset:1024 sc1' % WS)
    a.label('P1_C_NOZ')
    a('s_cmp_ge_u32 s2, 200')
    a('s_cbranch_scc1 P1_C_NOWO')
    a('s_cmp_lt_u32 s40, 20')
    a('s_cselect_b32 s52, s8, s14')
    a('s_cselect_b32 s53, s9, s15')
    a('s_cselect_b32 s57, 0, 20')
    a('s_and_b32 s53, s53, 0xffff')
    a('s_mov_b32 s54, %d' % (D * D * 2))
    a('s_mov_b32 s55, %s' % SRD3)
    a('s_sub_u32 s57, s40, s57')
    a('s_mul_i32 s57, s57, %d' % (32 * 1280))
    a('s_lshl_b32 s56, s41, 8')
    a('s_add_u32 s57, s57, s56')
    a('s_lshl_b32 s56, s24, 6')
    a('s_add_u32 s57, s57, s56')
    a('s_mov_b32 m0, s42')
    a('s_add_u32 s56, s57, %d' % (16 * 1280))
    a('buffer_load_dwordx4 v247, s[52:55], s57 offen lds')
    a('s_add_u32 m0, s42, 1024')
    a('buffer_load_dwordx4 v247, s[52:55], s56 offen lds')
    a.label('P1_C_NOWO')
    a('s_barrier')
    a('v_lshrrev_b32 v7, 1, v3')
    a('v_xor_b32 v7, v4, v7')
    a('v_lshlrev_b32 v7, 4, v7')
    a('v_lshl_add_u32 v8, v3, 7, v7')
    a('s_lshl_b32 s33, s31, 13')
    a('v_add_u32 v8, s33, v8')
    a('v_xor_b32 v9, 64, v8')
    a('v_lshrrev_b32 v7, 1, v4')
    a('v_lshlrev_b32 v7, 4, v7')
    a('v_and_b32 v1, 1, v4')
    a('v_lshl_add_u32 v7, v1, 2, v7')
    a('v_add_u32 v7, v7, v5')
    a('v_mul_u32_u24 v7, 480, v7')
    a('v_add_u32 v7, %d, v7' % WOFFS)
    a('v_mul_u32_u24 v1, 40, v6')
    a('v_add_u32 v10, v7, v1')
    a('v_lshl_add_u32 v11, v6, 3, v7')
    a('v_lshlrev_b32 v7, 4, v4')
    a('v_add_u32 v7, %d, v7' % L_GATE)
    a('s_lshl_b32 s33, s3, 7')
    a('v_add_u32 v7, s33, v7')
    a('s_sub_u32 s43, 10, s3')
    a('s_mov_b32 s45, 128')
    for r in range(128):
        a('v_mov_b32 v%d, 0' % (ACC + r))
    for i in range(4):
        a('v_mov_b32 v%d, v%d' % (12 + i, 8 + i))
    a('s_lshl_b32 s33, s24, 2')
    a('s_add_u32 s33, s33, %d' % (L_FLAGS + 16))
    a('v_mov_b32 v245, s33')
    a('s_mov_b32 s34, 0')
    a('s_mov_b32 s35, 1')
    a('v_lshlrev_b32 v1, 9, v4')
    a('v_lshl_add_u32 v1, v5, 6, v1')
    a('v_lshl_add_u32 v1, v6, 3, v1')
    a('v_add_u32 v1, s42, v1')
    stampv(a, 1)
    a('s_waitcnt vmcnt(0)')
    stampv(a, 2)
    a('s_cmp_ge_u32 s2, 8')
    a('s_cbranch_scc1 P1_C_NOZ2')
    make_srd(a, 52, 20, 256)
    a('v_mov_b32 v16, 1')
    a('v_mov_b32 v17, 0')
    a('s_mov_b64 exec, 1')
    a('buffer_atomic_add v16, v17, s[52:55], 0 offen sc1')
    a('s_mov_b64 exec, -1')
    a.label('P1_C_NOZ2')
    a('s_cmp_ge_u32 s2, 200')
    a('s_cbranch_scc1 P1_C_NOWO2')
    for tt in range(2):
        for j4 in range(2):
            a('ds_read_b64_tr_b16 v[%d:%d], v1 offset:%d' % (64 + tt * 4 + j4 * 2, 65 + tt * 4 + j4 * 2, j4 * 256 + tt * 32))
    a('s_lshl_b32 s57, s41, 3')
    a('s_lshl_b32 s58, s24, 1')
    a('s_add_u32 s57, s57, s58')
    a('s_mul_i32 s57, s57, 40')
    a('s_add_u32 s57, s57, s40')
    a('s_lshl_b32 s57, s57, 10')
    a('s_add_u32 s57, s57, %d' % WOF)
    a('s_add_u32 s58, s57, %d' % (40 * 1024))
    a('s_waitcnt lgkmcnt(0)')
    a('buffer_store_dwordx4 v[64:67], v246, %s, s57 offen%s' % (WS, SC))
    a('buffer_store_dwordx4 v[68:71], v246, %s, s58 offen%s' % (WS, SC))
    a.label('P1_C_NOWO2')
    a.label('P1_C_W0')
    a('ds_read_b128 %s, v244' % vr(FL, 4))
    a('s_waitcnt lgkmcnt(0)')
    a('v_min3_u32 v1, v%d, v%d, v%d' % (FL, FL + 1, FL + 2))
    a('v_min_u32 v1, v1, v%d' % (FL + 3))
    a('v_readfirstlane_b32 s40, v1')
    a('s_add_u32 s98, s98, 1')
    a('s_cmp_gt_u32 s98, %d' % (SPIN_LIMIT * 8))
    a('s_cbranch_scc1 P1_C_W0X')
    a('s_cmp_lt_u32 s40, 2')
    a('s_cbranch_scc1 P1_C_W0')
    a.label('P1_C_W0X')
    stampv(a, 3)
    a('s_setprio 2')
    a('s_lshl_b32 s40, s29, 1')
    a('s_add_u32 s40, s40, s32')
    a('s_cmp_eq_u32 s40, 1')
    a('s_cbranch_scc1 P1_V1')
    a('s_cmp_eq_u32 s40, 2')
    a('s_cbranch_scc1 P1_V2')
    a('s_cmp_eq_u32 s40, 3')
    a('s_cbranch_scc1 P1_V3')

    def tl_p1(sec, ct):
        return ('w', sec, ct, 'A', 8 * ct, 'WX')

    def tl_p2(sec, ct):
        return ('w', sec, ct, 'B', 32 * ct, 'XW')

    def tl_p3(sec, ct):
        return ('w', sec, ct, 'B', 40 * ct, 'XW') if ct < 4 else ('w', sec, ct, 'A', 32, 'XW')

    variants = [
        [tl_p1(0, c) for c in range(5)] + [tl_p1(1, c) for c in range(3)],
        [tl_p1(1, 3), tl_p1(1, 4)] + [tl_p2(2, c) for c in range(5)] + [('gate',)],
        [tl_p1(0, c) for c in range(5)] + [tl_p3(1, c) for c in range(3)],
        [tl_p3(1, 3), tl_p3(1, 4)] + [tl_p3(2, c) for c in range(5)],
    ]

    def reads(tiles, F, u):
        L = []
        for rt in range(4):
            L.append('ds_read_b128 %s, v%d offset:%d' % (vr(F + 4 * rt, 4), 12 + u, rt * 2048))
        for t, tile in enumerate(tiles):
            b = F + 16 + 4 * t
            if tile[0] == 'gate':
                L.append('ds_read_b128 %s, v7 offset:%d' % (vr(b, 4), u * 64))
            else:
                _, sec, ct, pat, tcol, _o = tile
                for j4 in range(2):
                    off = (32 * u + 8 * j4) * 480 + sec * 160 + tcol
                    L.append('ds_read_b64_tr_b16 %s, v%d offset:%d' % (vr(b + 2 * j4, 2), 14 if pat == 'A' else 15, off))
        return L

    def mfmas(tiles, F):
        L = []
        for t, tile in enumerate(tiles):
            for rt in range(4):
                acc = vr(ACC + (t * 4 + rt) * 4, 4)
                xf = vr(F + 4 * rt, 4)
                wf = vr(F + 16 + 4 * t, 4)
                o = 'WX' if tile[0] == 'gate' else tile[5]
                if o == 'WX':
                    L.append('v_mfma_f32_16x16x32_bf16 %s, %s, %s, %s' % (acc, wf, xf, acc))
                else:
                    L.append('v_mfma_f32_16x16x32_bf16 %s, %s, %s, %s' % (acc, xf, wf, acc))
        return L

    spins = []

    def half(tiles, Fc, Fn, un, tag, pre=()):
        ms = mfmas(tiles, Fc)
        rs = reads(tiles, Fn, un)
        if EXP1:
            ms = ['s_nop 0'] * len(ms)
        if EXP1 or EXP3:
            rs = []
        rs = rs + ['ds_read_b128 %s, v244' % vr(FL, 4)]
        a(ms[0])
        a('v_min3_u32 v1, v%d, v%d, v%d' % (FL, FL + 1, FL + 2))
        a('v_min_u32 v1, v1, v%d' % (FL + 3))
        a(ms[1])
        a('v_readfirstlane_b32 s40, v1')
        for p in pre:
            a(p)
        a(ms[2])
        a('s_cmp_lt_u32 s40, s35')
        a('s_cbranch_scc1 %s_SPIN' % tag)
        a.label(tag + '_GO')
        spins.append(tag)
        i = 0
        if len(rs) > 8:
            rs = [rs[0], rs[4], rs[1], rs[5], rs[2], rs[6], rs[3], rs[7]] + rs[8:]
        for n_, m in enumerate(ms[3:]):
            for _ in range(2 if n_ < PAIR else 1):
                if i < len(rs):
                    a(rs[i])
                    i += 1
            a(m)
        while i < len(rs):
            a(rs[i])
            i += 1
        a('v_mov_b32 v1, s41')
        a('s_add_u32 s41, s41, 1')
        a('s_add_u32 s35, s35, %d' % (2 if un == 1 else 1))
        a('s_min_u32 s35, s35, 30')
        a('s_waitcnt lgkmcnt(0)')
        a('ds_write_b32 v245, v1')

    def accr(t, rt, r=0):
        return ACC + (t * 4 + rt) * 4 + r

    def phi_many(regs, tmpbase):
        for i in range(0, len(regs), 8):
            grp = regs[i:i + 8]
            for j in range(0, len(grp), 2):
                a('v_pk_mul_f32 %s, %s, s[60:61]' % (vr(tmpbase + j, 2), vr(grp[j], 2)))
            for j, r in enumerate(grp):
                a('v_exp_f32 v%d, v%d' % (tmpbase + j, tmpbase + j))
            for j in range(0, len(grp), 2):
                a('v_pk_add_f32 %s, %s, s[62:63]' % (vr(grp[j], 2), vr(grp[j], 2)))
            for j, r in enumerate(grp):
                a('v_med3_f32 v%d, v%d, v%d, 1.0' % (r, tmpbase + j, r))
            for j in range(0, len(grp), 2):
                a('v_pk_add_f32 %s, %s, s[64:65]' % (vr(grp[j], 2), vr(grp[j], 2)))

    def stage_rowmajor(tile_ids, dim0, region):
        k = 0
        for rt in range(4):
            for idx, t in enumerate(tile_ids):
                st = 16 + (k & 7) * 2
                k += 1
                a('v_cvt_pk_bf16_f32 v%d, v%d, v%d' % (st, accr(t, rt, 0), accr(t, rt, 1)))
                a('v_cvt_pk_bf16_f32 v%d, v%d, v%d' % (st + 1, accr(t, rt, 2), accr(t, rt, 3)))
                a('ds_write_b64 v1, %s offset:%d' % (vr(st, 2), region + rt * 640 + dim0 * 2 + idx * 8))

    for vi, tiles in enumerate(variants):
        br, ni = vi >> 1, vi & 1
        a.label('P1_V%d' % vi)
        a.barrier_hazards()
        for r in reads(tiles, F0, 0):
            a(r)
        a('ds_read_b128 %s, v244' % vr(FL, 4))
        a('s_mov_b32 s35, 3')
        a('s_mov_b32 s41, 2')
        a('v_mov_b32 v1, 1')
        a('s_mov_b32 s33, 0')
        a('s_waitcnt lgkmcnt(0)')
        a('ds_write_b32 v245, v1')
        a.label('P1_V%d_LOOP' % vi)
        half(tiles, F0, F1, 1, 'P1_V%d_A' % vi)
        pre = ['s_add_u32 s34, s34, %d' % SLOT, 's_cmp_eq_u32 s34, %d' % (3 * SLOT), 's_cselect_b32 s34, 0, s34']
        pre += ['v_add_u32 v%d, s34, v%d' % (12 + i, 8 + i) for i in range(4)]
        if tiles[-1][0] == 'gate':
            pre += ['s_sub_u32 s43, s43, 1', 's_cmp_eq_u32 s43, 0', 's_cselect_b32 s44, %d, s45' % (128 - 1280),
                    'v_add_u32 v7, s44, v7']
        half(tiles, F1, F0, 0, 'P1_V%d_B' % vi, pre)
        a('s_add_u32 s33, s33, 1')
        a('s_cmp_lt_u32 s33, 10')
        a('s_cbranch_scc1 P1_V%d_LOOP' % vi)
        a('s_setprio 0')
        stampv(a, 4)
        tick_out(a, 90, 40)
        tick_out(a, 98, 41)
        a('s_lshl_b32 s40, s31, 6')
        a('v_lshl_add_u32 v1, v4, 7, v3')
        a('v_add_u32 v1, s40, v1')
        a('v_mul_u32_u24 v1, 40, v1')
        if br == 1:
            a('s_mov_b32 s60, %s' % f32(LOG2E))
            a('s_mov_b32 s61, %s' % f32(LOG2E))
            a('s_mov_b32 s62, 1.0')
            a('s_mov_b32 s63, 1.0')
            a('s_mov_b32 s64, %s' % f32(1e-6))
            a('s_mov_b32 s65, %s' % f32(1e-6))
            nphi = 8 if ni == 0 else 2
            phi_many([accr(t, rt, r) for t in range(nphi) for rt in range(4) for r in range(4)], 64)
        stampv(a, 5)
        a('s_waitcnt lgkmcnt(0)')
        a('s_barrier')
        stampv(a, 6)
        if vi == 0:
            stage_rowmajor([5, 6, 7], 0, ST_K)
            stage_rowmajor([0, 1, 2, 3, 4], 0, ST_Q)
        elif vi == 1:
            stage_rowmajor([0, 1], 12, ST_K)
            a('v_mul_u32_u24 v1, %d, v3' % VPITCH)
            a('v_lshl_add_u32 v1, v4, 4, v1')
            a('s_lshl_b32 s40, s31, 7')
            a('v_add_u32 v1, s40, v1')
            for ct in range(5):
                t = 2 + ct
                for rp in range(2):
                    st = 32 + ((ct * 2 + rp) & 3) * 4
                    for h2 in range(2):
                        rt = rp * 2 + h2
                        a('v_cvt_pk_bf16_f32 v%d, v%d, v%d' % (st + 2 * h2, accr(t, rt, 0), accr(t, rt, 1)))
                        a('v_cvt_pk_bf16_f32 v%d, v%d, v%d' % (st + 2 * h2 + 1, accr(t, rt, 2), accr(t, rt, 3)))
                    a('ds_write_b128 v1, %s offset:%d' % (vr(st, 4), ST_V + ct * 16 * VPITCH + rp * 64))
            a('s_cmp_lg_u32 s30, 0')
            a('s_cbranch_scc1 P1_NOGATE_ST')
            a('v_lshlrev_b32 v1, 2, v3')
            a('s_lshl_b32 s40, s28, 9')
            a('s_lshl_b32 s41, s31, 8')
            a('s_add_u32 s40, s40, s41')
            a('s_add_u32 s40, s40, %d' % GG)
            a('s_mov_b32 s60, %s' % f32(-LOG2E))
            for rt in range(4):
                a('v_mul_f32 v%d, s60, v%d' % (accr(7, rt), accr(7, rt)))
            for rt in range(4):
                a('v_exp_f32 v%d, v%d' % (accr(7, rt), accr(7, rt)))
            for rt in range(4):
                a('v_add_f32 v%d, 1.0, v%d' % (accr(7, rt), accr(7, rt)))
            for rt in range(4):
                a('v_rcp_f32 v%d, v%d' % (accr(7, rt), accr(7, rt)))
            a('s_mov_b64 exec, 0xffff')
            for rt in range(4):
                a('buffer_store_dword v%d, v1, %s, s40 offen offset:%d%s' % (accr(7, rt, 0), WS, rt * 64, SC))
            a('s_mov_b64 exec, -1')
            a.label('P1_NOGATE_ST')
        else:
            if ni == 0:
                fr = [(5, 0), (6, 1), (7, 2)]
            else:
                fr = [(0, 3), (1, 4)] + [(2 + c, 5 + c) for c in range(5)]
            a('s_lshl_b32 s40, s31, 11')
            a('s_add_u32 s40, s40, %d' % ST_FR)
            a('v_add_u32 v7, s40, v246')
            for n_, (t, T) in enumerate(fr):
                for rp in range(2):
                    st = 80 + ((n_ * 2 + rp) & 3) * 4
                    for h2 in range(2):
                        rt = rp * 2 + h2
                        a('v_cvt_pk_bf16_f32 v%d, v%d, v%d' % (st + 2 * h2, accr(t, rt, 0), accr(t, rt, 1)))
                        a('v_cvt_pk_bf16_f32 v%d, v%d, v%d' % (st + 2 * h2 + 1, accr(t, rt, 2), accr(t, rt, 3)))
                    a('ds_write_b128 v7, %s offset:%d' % (vr(st, 4), T * 4096 + rp * 1024))
            if ni == 0:
                stage_rowmajor([0, 1, 2, 3, 4], 0, ST_Q)
        a('s_branch P1_STORE')
    for tag in spins:
        a.label(tag + '_SPIN')
        a.barrier_hazards()
        tick0(a)
        a('ds_read_b128 %s, v244' % vr(FL, 4))
        a('s_waitcnt lgkmcnt(0)')
        a('v_min3_u32 v1, v%d, v%d, v%d' % (FL, FL + 1, FL + 2))
        a('v_min_u32 v1, v1, v%d' % (FL + 3))
        a('v_readfirstlane_b32 s40, v1')
        tick1(a, 90)
        a('s_add_u32 s98, s98, 1')
        a('s_cmp_gt_u32 s98, %d' % (SPIN_LIMIT * 8))
        a('s_cbranch_scc1 %s_GO' % tag)
        a('s_cmp_lt_u32 s40, s35')
        a('s_cbranch_scc1 %s_SPIN' % tag)
        a('s_branch %s_GO' % tag)

    a.label('P1_STORE')
    a.barrier_hazards()
    a('v_lshlrev_b32 v1, 4, v2')
    a('s_waitcnt lgkmcnt(0)')
    a('s_barrier')
    stampv(a, 7)
    a('s_cmp_eq_u32 s29, 1')
    a('s_cbranch_scc1 P1_ST_B')
    a('s_lshl_b32 s40, s30, 13')
    a('s_lshl_b32 s41, s28, 7')
    a('s_add_u32 s40, s40, s41')
    a('s_mul_i32 s40, s40, 40')

    def piece_rowmajor(wreg, lds_region, gregion, rbase, tag):
        for i in range(3):
            if i == 2:
                a('s_cmp_ge_u32 %s, 4' % wreg)
                a('s_cbranch_scc1 %s' % tag)
            a('s_add_u32 s41, %s, %d' % (wreg, 8 * i))
            a('s_lshl_b32 s42, s41, 10')
            a('v_add_u32 v3, s42, v1')
            a('ds_read_b128 %s, v3 offset:%d' % (vr(rbase + 4 * i, 4), lds_region))
            a('s_mul_i32 s43, s41, 52429')
            a('s_lshr_b32 s43, s43, 18')
            a('s_mul_i32 s43, s43, %d' % (2048 * 40 - 5120))
            a('s_add_u32 s43, s43, s42')
            a('s_add_u32 s43, s43, s40')
            a('s_add_u32 s%d, s43, %d' % (44 + i, gregion))
            a('s_waitcnt lgkmcnt(0)')
            a('buffer_store_dwordx4 %s, v1, %s, s%d offen%s' % (vr(rbase + 4 * i, 4), WS, 44 + i, SC))
        a.label(tag)

    piece_rowmajor('s24', ST_K, KA, 16, 'P1_SK')
    a('v_lshrrev_b32 v4, 4, v2')
    a('v_and_b32 v5, 15, v2')
    a('v_mul_u32_u24 v6, %d, v4' % VPITCH)
    a('v_lshl_add_u32 v6, v5, 4, v6')
    a('v_lshlrev_b32 v7, 12, v4')
    a('v_lshl_add_u32 v7, v5, 4, v7')
    a('s_mul_i32 s47, s30, %d' % (80 * 4096))
    a('s_lshl_b32 s41, s28, 8')
    a('s_add_u32 s47, s47, s41')
    a('s_add_u32 s47, s47, %d' % VTA)
    a('s_add_u32 s48, s24, 4')
    a('s_and_b32 s48, s48, 7')
    for i in range(3):
        if i == 2:
            a('s_cmp_ge_u32 s48, 4')
            a('s_cbranch_scc1 P1_SV')
        a('s_add_u32 s41, s48, %d' % (8 * i))
        a('s_mul_i32 s42, s41, %d' % (4 * VPITCH))
        a('v_add_u32 v3, s42, v6')
        a('ds_read_b128 %s, v3 offset:%d' % (vr(28 + 4 * i, 4), ST_V))
        a('s_lshl_b32 s43, s41, 14')
        a('s_add_u32 s%d, s43, s47' % (49 + i))
        a('s_waitcnt lgkmcnt(0)')
        a('buffer_store_dwordx4 %s, v7, %s, s%d offen%s' % (vr(28 + 4 * i, 4), WS, 49 + i, SC))
    a.label('P1_SV')
    piece_rowmajor('s24', ST_Q, QA, 40, 'P1_SQ')
    a('s_branch P1_DONE')

    a.label('P1_ST_B')
    a.barrier_hazards()
    a('s_cmp_lt_u32 s24, 4')
    a('s_cbranch_scc1 P1_KV')
    a('s_sub_u32 s41, s24, 4')
    a('s_mul_i32 s42, s41, 5120')
    a('v_add_u32 v3, s42, v1')
    for i in range(5):
        a('ds_read_b128 %s, v3 offset:%d' % (vr(16 + 4 * i, 4), ST_Q + 1024 * i))
    a('s_lshl_b32 s40, s30, 2')
    a('s_add_u32 s40, s40, s41')
    a('s_lshl_b32 s40, s40, 11')
    a('s_lshl_b32 s41, s28, 7')
    a('s_add_u32 s40, s40, s41')
    a('s_mul_i32 s40, s40, 40')
    a('s_add_u32 s40, s40, %d' % PQB)
    a('s_add_u32 s41, s40, 4096')
    a('s_waitcnt lgkmcnt(0)')
    for i in range(4):
        a('buffer_store_dwordx4 %s, v1, %s, s40 offen offset:%d%s' % (vr(16 + 4 * i, 4), WS, 1024 * i, SC))
    a('buffer_store_dwordx4 v[32:35], v1, %s, s41 offen%s' % (WS, SC))
    a('s_branch P1_DONE')
    a.label('P1_KV')
    a.barrier_hazards()
    a('v_add_u32 v1, %d, v1' % ST_FR)
    a('s_lshl_b32 s40, s24, 12')
    a('v_add_u32 v7, s40, v1')
    for G in range(4):
        a('ds_read_b128 %s, v7 offset:%d' % (vr(16 + 4 * G, 4), G * 1024))
        a('ds_read_b128 %s, v1 offset:%d' % (vr(32 + 4 * G, 4), 4 * 4096 + G * 1024))
        a('ds_read_b128 %s, v7 offset:%d' % (vr(48 + 4 * G, 4), 5 * 4096 + G * 1024))
        a('ds_read_b128 %s, v1 offset:%d' % (vr(64 + 4 * G, 4), 9 * 4096 + G * 1024))
    for i in range(4):
        a('v_mov_b32 v%d, 0x3f803f80' % (80 + i))
    a('s_mul_i32 s41, s24, 1792')
    a('s_add_u32 s41, s41, %d' % ST_KV)
    a('v_mul_u32_u24 v8, 80, v3')
    a('v_add_u32 v8, s41, v8')
    a('v_lshl_add_u32 v9, v4, 4, v8')
    a('s_lshl_b32 s40, s24, 2')
    a('v_subrev_u32 v10, s40, v3')
    a('v_cmp_gt_u32 s[50:51], 4, v10')
    a('v_cmp_eq_u32 s[52:53], s24, v4')
    a('v_cmp_eq_u32 s[54:55], 0, v3')
    a('v_mul_u32_u24 v10, 80, v10')
    a('v_add_u32 v10, s41, v10')
    a('v_lshl_add_u32 v11, v4, 4, v10')
    a('s_and_b64 s[56:57], s[50:51], s[52:53]')
    a('s_and_b64 s[58:59], s[54:55], s[52:53]')
    a('s_waitcnt lgkmcnt(0)')
    Dr = [112 + 4 * i for i in range(6)]
    for G in range(4):
        c = lambda i: ('0' if G == 0 else vr(Dr[i], 4))
        kw, k4, vw, v4_ = vr(16 + 4 * G, 4), vr(32 + 4 * G, 4), vr(48 + 4 * G, 4), vr(64 + 4 * G, 4)
        a('v_mfma_f32_16x16x32_bf16 %s, %s, %s, %s' % (vr(Dr[0], 4), kw, vw, c(0)))
        a('v_mfma_f32_16x16x32_bf16 %s, %s, %s, %s' % (vr(Dr[1], 4), kw, v4_, c(1)))
        a('v_mfma_f32_16x16x32_bf16 %s, %s, %s, %s' % (vr(Dr[2], 4), k4, vw, c(2)))
        a('v_mfma_f32_16x16x32_bf16 %s, %s, %s, %s' % (vr(Dr[3], 4), k4, v4_, c(3)))
        a('v_mfma_f32_16x16x32_bf16 %s, %s, v[80:83], %s' % (vr(Dr[4], 4), kw, c(4)))
        a('v_mfma_f32_16x16x32_bf16 %s, %s, v[80:83], %s' % (vr(Dr[5], 4), k4, c(5)))
    a('v_lshlrev_b32 v12, 2, v2')
    a('v_add_u32 v13, s41, v12')
    a('ds_write_b128 v9, %s' % vr(Dr[0], 4))
    a('s_mov_b64 exec, s[50:51]')
    a('ds_write_b128 v11, %s offset:1280' % vr(Dr[1], 4))
    a('s_mov_b64 exec, s[52:53]')
    a('ds_write_b128 v8, %s offset:64' % vr(Dr[2], 4))
    a('s_mov_b64 exec, s[56:57]')
    a('ds_write_b128 v10, %s offset:1344' % vr(Dr[3], 4))
    a('s_mov_b64 exec, s[54:55]')
    a('ds_write_b128 v9, %s offset:1600' % vr(Dr[4], 4))
    a('s_mov_b64 exec, s[58:59]')
    a('ds_write_b128 v8, %s offset:1664' % vr(Dr[5], 4))
    a('s_mov_b64 exec, -1')
    a('s_waitcnt lgkmcnt(0)')
    for i in range(7):
        a('ds_read_b32 v%d, v13 offset:%d' % (16 + i, 256 * i))
    a('s_lshl_b32 s40, s30, 2')
    a('s_add_u32 s40, s40, s24')
    a('s_mul_i32 s40, s40, 1680')
    a('s_add_u32 s40, s40, %d' % KVA)
    a('s_waitcnt lgkmcnt(0)')
    for i in range(6):
        a('buffer_atomic_add_f32 v%d, v12, %s, s40 offen offset:%d' % (16 + i, WS, 256 * i))
    a('s_mov_b32 exec_hi, 0xf')
    a('buffer_atomic_add_f32 v22, v12, %s, s40 offen offset:1536' % WS)
    a('s_mov_b32 exec_hi, -1')
    a.label('P1_DONE')
    a.barrier_hazards()
    stampv(a, 8)
    if FUSED:
        a('s_waitcnt vmcnt(0)')
        stampv(a, 9)
        a('s_barrier')
        a('s_cmp_lg_u32 s24, 0')
        a('s_cbranch_scc1 P1_NOFLAG')
        a('s_lshl_b32 s40, s27, 6')
        a('s_lshl_b32 s41, s28, 2')
        a('s_add_u32 s40, s40, s41')
        a('s_add_u32 s40, s40, %d' % FLG1)
        a('v_mov_b32 v16, 1')
        a('v_mov_b32 v17, 0')
        a('s_mov_b64 exec, 1')
        a('buffer_store_dword v16, v17, %s, s40 offen sc1' % WS)
        a('s_mov_b64 exec, -1')
        a.label('P1_NOFLAG')


K2_KIMG = 15360
K2_VP = 784
K2_V0 = K2_KIMG
K2_O1 = K2_V0 + 20 * K2_VP
K2_O2 = K2_O1 + 784 + 7 * 16
K2_HEAD = (K2_O2 + 784 + 255) // 256 * 256


def phase2(a):
    stamp_move(a, 79)
    a('s_lshl_b32 s25, s30, 1')
    a('s_add_u32 s25, s25, s29')
    a('s_lshr_b32 s31, s24, 2')
    a('s_and_b32 s32, s24, 3')
    a('s_lshl_b32 s33, s25, 1')
    a('s_add_u32 s33, s33, s31')
    a('s_mul_i32 s34, s31, %d' % K2_HEAD)
    a('s_lshl_b32 s35, s28, 7')
    a('s_sub_i32 s26, s35, 256')
    a('v_and_b32 v3, 31, v2')
    a('v_lshrrev_b32 v4, 5, v2')
    a('v_lshlrev_b32 v5, 4, v2')
    a('s_mul_i32 s60, s26, 40')
    a('s_lshl_b32 s61, s32, 10')
    a('s_add_i32 s60, s60, s61')
    a('v_add_u32 v6, s60, v5')
    a('v_max_i32 v10, 0, v6')
    for i in range(1, 4):
        a('v_add_u32 v%d, %d, v6' % (10 + i, i * 4096))
        a('v_max_i32 v%d, 0, v%d' % (10 + i, 10 + i))
    a('s_mul_i32 s62, s33, %d' % (S * 40))
    a('s_lshl_b32 s60, s26, 1')
    a('v_add_u32 v14, s60, v5')
    a('v_max_i32 v14, 0, v14')
    a('s_lshl_b32 s63, s32, 5')
    a('s_add_u32 s63, s63, s35')
    a('s_mul_i32 s64, s63, 40')
    a('s_add_u32 s64, s64, s62')
    a('v_mul_u32_u24 v7, 40, v3')
    a('v_lshl_add_u32 v8, v4, 4, v7')
    if not FUSED:
        a('s_waitcnt lgkmcnt(0)')
        make_srd(a, 36, 22, WS_SIZE)
    make_srd_off(a, 40, 22, KA, H * S * 40)
    make_srd_off(a, 44, 22, VTA, 640 * S * 2)
    make_srd_off(a, 48, 22, QA, H * S * 40)
    make_srd_off(a, 52, 22, PQB, H * S * 40)
    make_srd_off(a, 56, 22, KVA, H * 1680)
    if FUSED:
        a('s_cmp_lg_u32 s24, 0')
        a('s_cbranch_scc1 P2_W1')
        a('s_sub_i32 s60, s28, 2')
        a('v_add_u32 v16, s60, v2')
        a('v_max_i32 v16, 0, v16')
        a('v_min_u32 v16, s28, v16')
        a('v_lshlrev_b32 v16, 2, v16')
        a('s_lshl_b32 s60, s30, 6')
        a('s_add_u32 s60, s60, %d' % FLG1)

        def ok():
            a('v_cmp_ne_u32 vcc, 1, v17')
            a('s_cmp_eq_u64 vcc, 0')
        poll_loop(a, 'buffer_load_dword v17, v16, %s, s60 offen sc1' % WS, 1, 17, ok)
        a.label('P2_W1')
        stampv(a, 10)
        a('s_barrier')
    stampv(a, 11)
    a('s_lshl_b32 s60, s32, 10')
    a('s_add_u32 s60, s60, s34')
    for i in range(4):
        if i == 3:
            a('s_cmp_eq_u32 s32, 3')
            a('s_cbranch_scc1 P2_SKIPK')
        a('s_add_u32 m0, s60, %d' % (i * 4096))
        a('buffer_load_dwordx4 v%d, s[40:43], s62 offen%s lds' % (10 + i, LC))
    a.label('P2_SKIPK')
    a('buffer_load_dwordx4 v[16:19], v8, s[48:51], s64 offen%s' % LC)
    a('buffer_load_dwordx2 v[20:21], v7, s[48:51], s64 offen offset:32%s' % LC)
    a('s_mul_i32 s60, s33, 20')
    a('s_mul_i32 s61, s32, 5')
    a('s_add_u32 s60, s60, s61')
    a('s_lshl_b32 s60, s60, 12')
    a('s_mul_i32 s61, s32, %d' % (5 * K2_VP))
    a('s_add_u32 s61, s61, s34')
    a('s_add_u32 s61, s61, %d' % K2_V0)
    a('s_mov_b32 exec_hi, 0xffff')
    for i in range(5):
        a('s_add_u32 m0, s61, %d' % (i * K2_VP))
        a('buffer_load_dwordx4 v14, s[44:47], s60 offen%s lds' % LC)
        if i < 4:
            a('s_add_u32 s60, s60, 4096')
    a('s_mov_b32 exec_hi, -1')
    stampv(a, 12)
    a('s_lshl_b32 s60, s32, 9')
    a('v_lshlrev_b32 v22, 3, v2')
    a('v_add_u32 v22, s60, v22')
    a('v_mov_b32 v64, 0x3f803f80')
    a('v_mov_b32 v65, 0x3f803f80')
    a('v_add_u32 v66, s34, v22')
    a('v_cmp_gt_u32 vcc, 784, v22')
    a('s_and_saveexec_b64 s[60:61], vcc')
    a('ds_write_b64 v66, v[64:65] offset:%d' % K2_O1)
    a('ds_write_b64 v66, v[64:65] offset:%d' % K2_O2)
    a('s_mov_b64 exec, s[60:61]')
    a('v_lshlrev_b32 v67, 2, v4')
    a('v_sub_u32 v67, v3, v67')
    for r in range(16):
        c = 16 * ((r >> 2) & 1) + 8 * (r >> 3) + (r & 3)
        a('v_cmp_gt_i32 s[%d:%d], %d, v67' % (66 + 2 * r, 67 + 2 * r, c))
    a('v_mov_b32 v64, 0xffff')
    a('v_mov_b32 v65, 0xffff0000')
    for i in range(8):
        a('v_cndmask_b32 v%d, 0, v64, s[%d:%d]' % (68 + i, 66 + 4 * i, 67 + 4 * i))
        a('v_cndmask_b32 v76, 0, v65, s[%d:%d]' % (68 + 4 * i, 69 + 4 * i))
        a('v_or_b32 v%d, v%d, v76' % (68 + i, 68 + i))
    a('v_and_b32 v64, 7, v3')
    a('v_bfe_u32 v65, v3, 3, 1')
    a('v_lshl_add_u32 v64, v65, 4, v64')
    a('v_bfe_u32 v65, v3, 4, 1')
    a('v_lshl_add_u32 v64, v65, 3, v64')
    a('v_mul_u32_u24 v64, 40, v64')
    a('s_mul_i32 s60, s32, 1280')
    a('s_add_u32 s60, s60, s34')
    a('v_add_u32 v64, s60, v64')
    a('v_lshl_add_u32 v65, v4, 4, v64')
    a('v_mul_u32_u24 v66, %d, v3' % K2_VP)
    a('v_add_u32 v66, %d, v66' % K2_V0)
    a('v_cmp_lt_u32 vcc, 19, v3')
    a('v_mov_b32 v76, %d' % K2_O1)
    a('v_mov_b32 v77, %d' % K2_O2)
    a('v_cndmask_b32 v66, v66, v76, vcc')
    a('v_cmp_lt_u32 vcc, 27, v3')
    a('s_lshl_b32 s60, s32, 6')
    a('s_add_u32 s60, s60, s34')
    a('v_cndmask_b32 v66, v66, v77, vcc')
    a('v_lshl_add_u32 v66, v4, 4, v66')
    a('v_add_u32 v66, s60, v66')
    a('v_and_b32 v77, 15, v2')
    a('v_lshrrev_b32 v15, 4, v2')
    a('v_mul_u32_u24 v9, 40, v77')
    a('v_lshl_add_u32 v9, v15, 4, v9')
    a('v_mul_u32_u24 v10, 80, v77')
    a('v_lshl_add_u32 v10, v15, 5, v10')
    a('v_lshlrev_b32 v11, 5, v15')
    a('v_add_u32 v11, 1600, v11')
    a('v_mov_b32 v76, 0x7fffffff')
    a('v_cmp_gt_u32 vcc, 3, v15')
    a('v_cmp_gt_u32 s[60:61], 2, v15')
    a('v_cndmask_b32 v12, v76, v10, vcc')
    a('v_cndmask_b32 v13, v76, v10, s[60:61]')
    a('v_cndmask_b32 v10, v76, v11, vcc')
    a('v_cndmask_b32 v11, v76, v11, s[60:61]')
    for b_ in (24, 32, 40, 48):
        a('v_mov_b32 v%d, 0' % (b_ + 6))
        a('v_mov_b32 v%d, 0' % (b_ + 7))
    a('s_mul_i32 s65, s33, 1680')
    stampv(a, 13)
    a('s_waitcnt vmcnt(5) lgkmcnt(0)')
    stampv(a, 14)
    a('s_barrier')
    stampv(a, 15)
    a('v_cmp_eq_u32 vcc, 0, v4')
    a('v_mov_b32 v22, 0')
    a('v_mov_b32 v23, 0')
    a('v_cndmask_b32 v20, 0, v20, vcc')
    a('v_cndmask_b32 v21, 0, v21, vcc')
    SCR = 112
    KF = [24, 32, 40, 48]

    def kreads(t):
        b = KF[t & 1]
        a('ds_read_b64 v[%d:%d], v65 offset:%d' % (b, b + 1, t * 1280))
        a('ds_read_b64 v[%d:%d], v65 offset:%d' % (b + 2, b + 3, t * 1280 + 8))
        a('ds_read_b64 v[%d:%d], v64 offset:%d' % (b + 4, b + 5, t * 1280 + 32))

    def issue_b_loads():
        a('buffer_load_dwordx4 v[24:27], v9, s[52:55], s64 offen%s' % LC)
        a('buffer_load_dwordx4 v[28:31], v9, s[52:55], s64 offen offset:640%s' % LC)
        a('buffer_load_dwordx4 v[32:35], v12, s[56:59], s65 offen%s' % LC)
        a('buffer_load_dwordx4 v[36:39], v13, s[56:59], s65 offen offset:16%s' % LC)
        a('buffer_load_dwordx4 v[40:43], v12, s[56:59], s65 offen offset:1280%s' % LC)
        a('buffer_load_dwordx4 v[44:47], v13, s[56:59], s65 offen offset:1296%s' % LC)
        a('buffer_load_dwordx4 v[48:51], v10, s[56:59], s65 offen%s' % LC)
        a('buffer_load_dwordx4 v[52:55], v11, s[56:59], s65 offen offset:16%s' % LC)

    a('s_lshl_b32 s60, s28, 2')
    a('s_add_u32 s60, s60, s32')
    order = [8, 0, 1, 2, 3, 4, 5, 6, 7]
    MX = [60, 61, 62, 63]

    def post(t, first):
        b = SCR + 16 * t
        if t == 8:
            return
        lab = 'P2_V%d' % t
        a('v_mov_b32 v1, v%d' % (b + 15))
        a('s_cmp_ge_u32 s60, %d' % (8 - t))
        a('s_cbranch_scc1 %s' % lab)
        for r in range(16):
            a('v_mov_b32 v%d, 0xff800000' % (b + r))
        a.label(lab)
        if t == 0:
            for r in range(16):
                a('v_cndmask_b32 v%d, v%d, v%d, s[%d:%d]' % (b + r, SCR + 128 + r, b + r, 66 + 2 * r, 67 + 2 * r))
            for k in range(4):
                a('v_max3_f32 v%d, v%d, v%d, v%d' % (MX[k], b + 4 * k, b + 4 * k + 1, b + 4 * k + 2))
            for k in range(4):
                a('v_max_f32 v%d, v%d, v%d' % (MX[k], MX[k], b + 4 * k + 3))
        else:
            for k in range(8):
                a('v_max3_f32 v%d, v%d, v%d, v%d' % (MX[k & 3], MX[k & 3], b + 2 * k, b + 2 * k + 1))

    def kreads_n(n):
        t = order[n]
        b = KF[n & 3]
        a('ds_read_b64 v[%d:%d], v65 offset:%d' % (b, b + 1, t * 1280))
        a('ds_read_b64 v[%d:%d], v65 offset:%d' % (b + 2, b + 3, t * 1280 + 8))
        a('ds_read_b64 v[%d:%d], v64 offset:%d' % (b + 4, b + 5, t * 1280 + 32))

    kreads_n(0)
    kreads_n(1)
    kreads_n(2)
    for n, t in enumerate(order):
        if n + 3 < 9:
            kreads_n(n + 3)
        a('s_waitcnt lgkmcnt(%d)' % (3 * min(3, 8 - n)))
        b = KF[n & 3]
        d = vr(SCR + 16 * t, 16)
        a('v_mfma_f32_32x32x16_bf16 %s, %s, v[16:19], 0' % (d, vr(b, 4)))
        a('v_mfma_f32_32x32x16_bf16 %s, %s, v[20:23], %s' % (d, vr(b + 4, 4), d))
        if n >= 2:
            post(order[n - 2], n == 2)
    post(6, False)
    if not FUSED:
        issue_b_loads()
    else:
        a('buffer_load_dwordx4 v[56:59], v5, %s, s99 offen sc1' % WS)
    post(7, False)
    a('v_max3_f32 v60, v60, v61, v62')
    a('v_max_f32 v60, v60, v63')
    a('v_mov_b32 v61, v60')
    a('v_permlane32_swap_b32 v60, v61')
    a('v_max_f32 v60, v60, v61')
    CS = (DH ** -0.5) * LOG2E
    a('s_mov_b32 s60, %s' % f32(CS))
    a('s_mov_b32 s61, %s' % f32(CS))
    a('v_mul_f32 v60, %s, v60' % f32(-CS))
    a('v_mov_b32 v61, v60')
    stampv(a, 16)
    a('s_waitcnt vmcnt(%d)' % (1 if FUSED else 8))
    a('s_barrier')
    stampv(a, 17)
    OA = 96
    VF = [80, 84, 88, 92]

    def vread(idx):
        t, j = idx >> 1, idx & 1
        a('ds_read_b128 %s, v66 offset:%d' % (vr(VF[idx & 3], 4), t * 64 + j * 32))

    def softmax_tile(t):
        b = SCR + 16 * t
        for r in range(0, 16, 2):
            a('v_pk_fma_f32 %s, %s, s[60:61], v[60:61]' % (vr(b + r, 2), vr(b + r, 2)))
        for r in range(16):
            a('v_exp_f32 v%d, v%d' % (b + r, b + r))
        for i in range(8):
            a('v_cvt_pk_bf16_f32 v%d, v%d, v%d' % (b + i, b + 2 * i, b + 2 * i + 1))

    def flagcheck(tag, last):
        a('s_cmp_eq_u32 s98, 1')
        a('s_cbranch_scc1 %s' % tag)
        if last:
            a.label(tag + '_R')
        a('s_waitcnt vmcnt(0)')
        a('v_and_b32 v56, v56, v57')
        a('v_and_b32 v58, v58, v59')
        a('v_and_b32 v56, v56, v58')
        a('v_cmp_ne_u32 vcc, 1, v56')
        a('s_cmp_eq_u64 vcc, 0')
        a('s_cbranch_scc1 %s_Y' % tag)
        a('buffer_load_dwordx4 v[56:59], v5, %s, s99 offen sc1' % WS)
        if last:
            a('s_add_u32 s97, s97, 1')
            a('s_cmp_lt_u32 s97, %d' % SPIN_LIMIT)
            a('s_cbranch_scc1 %s_R' % tag)
        else:
            a('s_branch %s' % tag)
        a.label(tag + '_Y')
        issue_b_loads()
        a('s_mov_b32 s98, 1')
        a.label(tag)

    order2 = [0, 8, 1, 2, 3, 4, 5, 6, 7]
    first = True
    nv = 0
    if FUSED:
        a('s_mov_b32 s98, 0')
    for n_, t in enumerate(order2):
        i0 = nv
        for j in range(2):
            a('ds_read_b128 %s, v66 offset:%d' % (vr(VF[nv & 3], 4), t * 64 + j * 32))
            nv += 1
        if t == 0:
            softmax_tile(0)
            for i in range(8):
                a('v_bfi_b32 v%d, v%d, 0, v%d' % (SCR + 128 + i, 68 + i, SCR + i))
                a('v_and_b32 v%d, v%d, v%d' % (SCR + i, 68 + i, SCR + i))
        elif t != 8:
            softmax_tile(t)
        a('s_waitcnt lgkmcnt(0)')
        for j in range(2):
            c = '0' if first else vr(OA, 16)
            a('v_mfma_f32_32x32x16_bf16 %s, %s, %s, %s' % (vr(OA, 16), vr(VF[(i0 + j) & 3], 4), vr(SCR + 16 * t + 4 * j, 4), c))
            first = False
        if FUSED and t in (8, 3, 5):
            flagcheck('P2_FC%d' % t, False)
    if FUSED:
        a('s_mov_b32 s97, 0')
        flagcheck('P2_FCL', True)
    stampv(a, 18)
    a('s_waitcnt vmcnt(0)')
    for i in range(12):
        a('v_cvt_pk_bf16_f32 v%d, v%d, v%d' % (80 + i, 32 + 2 * i, 33 + 2 * i))
    a('v_rcp_f32 v62, v%d' % (OA + 12))
    for rt in range(2):
        pq = vr(24 + 4 * rt, 4)
        a('v_mfma_f32_16x16x32_bf16 %s, v[80:83], %s, 0' % (vr(SCR + 12 * rt, 4), pq))
        a('v_mfma_f32_16x16x32_bf16 %s, v[84:87], %s, 0' % (vr(SCR + 12 * rt + 4, 4), pq))
        a('v_mfma_f32_16x16x32_bf16 %s, v[88:91], %s, 0' % (vr(SCR + 12 * rt + 8, 4), pq))
    for r in range(12):
        a('v_mul_f32 v%d, v%d, v62' % (OA + r, OA + r))
    for i in range(6):
        a('v_cvt_pk_bf16_f32 v%d, v%d, v%d' % (32 + i, OA + 2 * i, OA + 2 * i + 1))
    a('s_mul_i32 s60, s32, 2560')
    a('v_bfe_u32 v6, v3, 4, 1')
    a('v_mul_u32_u24 v6, 1280, v6')
    a('v_lshl_add_u32 v6, v77, 4, v6')
    a('v_add_u32 v6, s60, v6')
    a('s_mul_i32 s61, s31, 20')
    a('v_lshlrev_b32 v7, 2, v4')
    a('v_add_u32 v7, s61, v7')

    def oaddr(dst, kk, base):
        a('v_lshrrev_b32 v%d, 3, v%d' % (dst, kk))
        a('v_lshl_add_u32 v%d, v%d, 8, v%d' % (dst, dst, base))
        a('v_and_b32 v63, 4, v%d' % kk)
        a('v_lshl_add_u32 v%d, v63, 1, v%d' % (dst, dst))

    oaddr(8, 7, 6)
    a('ds_write_b64 v8, v[32:33]')
    a('ds_write_b64 v8, v[34:35] offset:256')
    a('s_mov_b32 exec_hi, 0')
    a('ds_write_b64 v8, v[36:37] offset:512')
    a('s_mov_b32 exec_hi, -1')
    a('v_lshlrev_b32 v7, 2, v15')
    a('v_add_u32 v7, s61, v7')
    a('v_lshlrev_b32 v6, 4, v77')
    a('v_add_u32 v6, s60, v6')
    oaddr(8, 7, 6)
    a('s_mov_b32 s61, %s' % f32(1e-6))
    for rt in range(2):
        b = SCR + 12 * rt
        a('v_add_f32 v%d, s61, v%d' % (62 + rt, b + 8))
    for rt in range(2):
        a('v_rcp_f32 v%d, v%d' % (62 + rt, 62 + rt))
    for rt in range(2):
        b = SCR + 12 * rt
        for r in range(8):
            a('v_mul_f32 v%d, v%d, v%d' % (b + r, b + r, 62 + rt))
        for i in range(4):
            a('v_cvt_pk_bf16_f32 v%d, v%d, v%d' % (40 + 4 * rt + i, b + 2 * i, b + 2 * i + 1))
    a('ds_write_b64 v8, v[40:41] offset:%d' % K2_HEAD)
    a('ds_write_b64 v8, v[44:45] offset:%d' % (K2_HEAD + 1280))
    a('s_mov_b64 exec, 0xffff')
    a('ds_write_b64 v8, v[42:43] offset:%d' % (K2_HEAD + 512))
    a('ds_write_b64 v8, v[46:47] offset:%d' % (K2_HEAD + 1280 + 512))
    a('s_mov_b64 exec, -1')
    a('s_mul_i32 s60, s24, 1280')
    a('v_add_u32 v6, s60, v5')
    a('s_lshl_b32 s60, s28, 3')
    a('s_add_u32 s60, s60, s24')
    a('s_mul_i32 s60, s60, 40960')
    a('s_mul_i32 s61, s25, 1280')
    a('s_add_u32 s60, s60, s61')
    a('s_add_u32 s60, s60, %d' % OF)
    a('s_add_u32 s61, s60, 20480')
    a('s_waitcnt lgkmcnt(0)')
    a('s_barrier')
    stampv(a, 19)
    a('ds_read_b128 v[16:19], v6')
    a('ds_read_b128 v[20:23], v6 offset:%d' % K2_HEAD)
    a('ds_read_b128 v[24:27], v6 offset:1024')
    a('ds_read_b128 v[28:31], v6 offset:%d' % (K2_HEAD + 1024))
    a('s_waitcnt lgkmcnt(2)')
    a('buffer_store_dwordx4 v[16:19], v5, %s, s60 offen%s' % (WS, SC))
    a('buffer_store_dwordx4 v[20:23], v5, %s, s61 offen%s' % (WS, SC))
    a('s_waitcnt lgkmcnt(0)')
    a('s_mov_b64 exec, 0xffff')
    a('buffer_store_dwordx4 v[24:27], v5, %s, s60 offen offset:1024%s' % (WS, SC))
    a('buffer_store_dwordx4 v[28:31], v5, %s, s61 offen offset:1024%s' % (WS, SC))
    a('s_mov_b64 exec, -1')
    stampv(a, 20)
    stamp_move(a, 255)


def phase3(a):
    a('s_and_b32 s60, s2, 7')
    a('s_lshr_b32 s61, s2, 3')
    a('s_and_b32 s31, s60, 1')
    a('s_lshl_b32 s31, s31, 2')
    a('s_and_b32 s62, s61, 3')
    a('s_add_u32 s31, s31, s62')
    a('s_lshr_b32 s32, s60, 1')
    a('s_lshl_b32 s32, s32, 3')
    a('s_lshr_b32 s62, s61, 2')
    a('s_add_u32 s32, s32, s62')
    if not NOROT3:
        a('s_and_b32 s63, s61, 3')
        a('s_lshl_b32 s63, s63, 1')
        a('s_add_u32 s62, s62, s63')
        a('s_add_u32 s24, s24, s62')
        a('s_and_b32 s24, s24, 7')
    a('v_lshlrev_b32 v3, 4, v2')
    for i in range(1, 5):
        a('v_add_u32 v%d, %d, v3' % (3 + i, i * 40960))
    a('s_mul_i32 s33, s24, 5120')
    a('s_mul_i32 s34, s31, %d' % (200 * 1024))
    a('s_add_u32 s34, s34, s33')
    a('s_add_u32 s34, s34, %d' % WOF)
    a('s_add_u32 s35, s34, 4096')
    a('s_mul_i32 s40, s32, %d' % (160 * 1024))
    a('s_add_u32 s40, s40, s33')
    a('s_add_u32 s40, s40, %d' % OF)
    a('s_add_u32 s41, s40, 4096')
    if not FUSED:
        a('s_waitcnt lgkmcnt(0)')
        make_srd(a, 36, 22, WS_SIZE)
    ACC, WF, OFR = 16, 96, 196
    make_srd(a, 44, 18, S * D * 2)
    a('v_and_b32 v8, 15, v2')
    a('v_lshrrev_b32 v9, 4, v2')
    a('v_lshlrev_b32 v10, 2, v8')
    a('s_lshl_b32 s42, s32, 8')
    a('s_add_u32 s42, s42, %d' % GG)
    if FUSED:
        a('s_waitcnt vmcnt(0)')
        stampv(a, 21)
        a('s_barrier')
        a('s_cmp_lg_u32 s24, 0')
        a('s_cbranch_scc1 P3_W0')
        a('s_lshl_b32 s60, s28, 6')
        a('s_lshl_b32 s61, s25, 2')
        a('s_add_u32 s60, s60, s61')
        a('s_add_u32 s60, s60, %d' % FLG2)
        a('v_mov_b32 v16, 1')
        a('v_mov_b32 v17, 0')
        a('s_mov_b64 exec, 1')
        a('buffer_store_dword v16, v17, %s, s60 offen sc1' % WS)
        a('s_mov_b64 exec, -1')
        a.label('P3_W0')
    for ks in range(5):
        for ct in range(5):
            a('buffer_load_dwordx4 %s, v%d, %s, s%d offen offset:%d%s'
              % (vr(WF + (ks * 5 + ct) * 4, 4), 3 + ct, WS, 34 if ks < 4 else 35, (ks & 3) * 1024, LC))
    stampv(a, 22)
    if FUSED:
        a('s_cmp_lg_u32 s24, 0')
        a('s_cbranch_scc1 P3_W')
        a('s_lshr_b32 s60, s32, 1')
        a('s_lshl_b32 s60, s60, 6')
        a('s_add_u32 s60, s60, %d' % FLG2)

        def ok():
            a('v_cmp_ne_u32 vcc, 1, v17')
            a('s_cmp_eq_u64 vcc, 0')
        poll_loop(a, 'buffer_load_dword v17, v10, %s, s60 offen sc1' % WS, 1, 17, ok)
        a.label('P3_W')
        stampv(a, 23)
        a('s_barrier')
    stampv(a, 24)

    def oloads(ks):
        b = OFR + (ks % 3) * 16
        for rt in range(4):
            a('buffer_load_dwordx4 %s, v%d, %s, s%d offen offset:%d%s'
              % (vr(b + 4 * rt, 4), 3 + rt, WS, 40 if ks < 4 else 41, (ks & 3) * 1024, LC))

    for ks in range(3):
        oloads(ks)
    for rt in range(4):
        a('buffer_load_dword v%d, v10, %s, s42 offen offset:%d%s' % (12 + rt, WS, rt * 64, LC))
    waits = [12, 12, 12, 4, 0]
    waits = [12, 12, 12, 4, 0]
    for ks in range(5):
        a('s_waitcnt vmcnt(%d)' % waits[ks])
        b = OFR + (ks % 3) * 16
        for ct in range(5):
            for rt in range(4):
                acc = vr(ACC + (rt * 5 + ct) * 4, 4)
                a('v_mfma_f32_16x16x32_bf16 %s, %s, %s, %s' % (acc, vr(WF + (ks * 5 + ct) * 4, 4), vr(b + 4 * rt, 4),
                                                              '0' if ks == 0 else acc))
        if ks + 3 < 5:
            oloads(ks + 3)
    stampv(a, 25)
    a('s_cmp_lt_u32 s24, 4')
    a('s_cbranch_scc1 P3_NOINV')
    for rt in range(4):
        a('v_sub_f32 v%d, 1.0, v%d' % (12 + rt, 12 + rt))
    a.label('P3_NOINV')
    for rt in range(4):
        a('v_mov_b32 v%d, v%d' % (96 + 2 * rt, 12 + rt))
        a('v_mov_b32 v%d, v%d' % (97 + 2 * rt, 12 + rt))
    for rt in range(4):
        for i in range(0, 20, 2):
            r = ACC + rt * 20 + i
            a('v_pk_mul_f32 %s, %s, %s' % (vr(r, 2), vr(r, 2), vr(96 + 2 * rt, 2)))
    a('s_cmp_lt_u32 s24, 4')
    a('s_cbranch_scc1 P3_L1R')
    a('s_sub_u32 s60, s24, 4')
    a('s_mul_i32 s60, s60, 20480')
    a('v_add_u32 v11, s60, v3')
    for T in range(20):
        a('ds_write_b128 v11, %s offset:%d' % (vr(ACC + 4 * T, 4), T * 1024))
    a('s_waitcnt lgkmcnt(0)')
    a('s_barrier')
    a('s_barrier')
    a('s_branch P3_END')
    a.label('P3_L1R')
    a.barrier_hazards()
    a('s_mul_i32 s60, s24, 20480')
    a('v_add_u32 v11, s60, v3')
    a('s_barrier')
    for T in range(20):
        a('ds_read_b128 %s, v11 offset:%d' % (vr(104 + 4 * T, 4), T * 1024))
    a('s_mul_i32 s60, s24, 5120')
    a('s_add_u32 s60, s60, 81920')
    a('v_add_u32 v11, s60, v3')
    a('v_add_u32 v1, 40960, v11')
    a('s_waitcnt lgkmcnt(0)')
    for i in range(0, 80, 2):
        a('v_pk_add_f32 %s, %s, %s' % (vr(ACC + i, 2), vr(ACC + i, 2), vr(104 + i, 2)))
    for rt in range(4):
        a('s_cmp_eq_u32 s24, %d' % rt)
        a('s_cbranch_scc1 P3_SKIPW%d' % rt)
        for ct in range(5):
            a('ds_write_b128 v%d, %s offset:%d' % (11 if rt < 2 else 1, vr(ACC + (rt * 5 + ct) * 4, 4), (rt & 1) * 20480 + ct * 1024))
        a.label('P3_SKIPW%d' % rt)
    for rt in range(4):
        a('s_cmp_lg_u32 s24, %d' % rt)
        a('s_cbranch_scc1 P3_SKIPM%d' % rt)
        for i in range(20):
            a('v_mov_b32 v%d, v%d' % (96 + i, ACC + rt * 20 + i))
        a.label('P3_SKIPM%d' % rt)
    a('s_mul_i32 s60, s24, 20480')
    a('s_add_u32 s60, s60, 81920')
    a('v_add_u32 v11, s60, v3')
    a('s_waitcnt lgkmcnt(0)')
    a('s_barrier')
    stampv(a, 26)
    for k in range(1, 4):
        a('s_add_u32 s61, s24, %d' % k)
        a('s_and_b32 s61, s61, 3')
        a('s_mul_i32 s61, s61, 5120')
        a('v_add_u32 v1, s61, v11')
        for ct in range(5):
            a('ds_read_b128 %s, v1 offset:%d' % (vr(96 + 20 * k + 4 * ct, 4), ct * 1024))
    a('v_mul_u32_u24 v1, 1280, v8')
    a('v_lshl_add_u32 v1, v9, 3, v1')
    a('s_lshl_b32 s60, s32, 6')
    a('s_lshl_b32 s61, s24, 4')
    a('s_add_u32 s60, s60, s61')
    a('s_mul_i32 s60, s60, 1280')
    a('s_mul_i32 s61, s31, 160')
    a('s_add_u32 s60, s60, s61')
    a('s_waitcnt lgkmcnt(0)')
    for k in range(1, 4):
        for i in range(0, 20, 2):
            a('v_pk_add_f32 %s, %s, %s' % (vr(96 + i, 2), vr(96 + i, 2), vr(96 + 20 * k + i, 2)))
    for i in range(10):
        a('v_cvt_pk_bf16_f32 v%d, v%d, v%d' % (16 + i, 96 + 2 * i, 96 + 2 * i + 1))
    for ct in range(5):
        a('buffer_store_dwordx2 %s, v1, s[44:47], s60 offen offset:%d' % (vr(16 + 2 * ct, 2), ct * 32))
    a.label('P3_END')
    stampv(a, 27)


P3_LDS = 81920 + 81920


def main():
    a = Asm()
    hdr = open('cdna_kernels/%s.s.ref' % NAME).read().split('\n')
    head = [l for l in hdr if l.startswith(';') and '@launch' not in l and 'Override launch' not in l
            and 'grid=ceil' not in l][:12]
    lds = max(LDS_TOTAL, P3_LDS, 2 * K2_HEAD)
    assert lds <= 163840, lds
    if FUSED:
        kn = NAME + '_kernel'
        lines = head + ['; @launch grid=(256,1,1) block=(512,1,1) lds=%d' % lds]
        kernel_header(a, kn)
        stampv(a, 0)
        common_prologue(a, 'K_END')
        a('s_mov_b32 s99, %d' % FLG1)
        phase1(a)
        phase2(a)
        phase3(a)
        stampv_flush(a, 0)
        a.label('K_END')
        a('s_endpgm')
        names = [kn]
    else:
        lines = head + [
            '; @launch kernel=k1_kernel grid=(256,1,1) block=(512,1,1) lds=%d' % LDS_TOTAL,
            '; @launch kernel=k2_kernel grid=(256,1,1) block=(512,1,1) lds=%d' % (2 * K2_HEAD),
            '; @launch kernel=k3_kernel grid=(256,1,1) block=(512,1,1) lds=%d' % P3_LDS,
        ]
        names = []
        for i, ph in enumerate((phase1, phase2, phase3)):
            kn = 'k%d_kernel' % (i + 1)
            kernel_header(a, kn)
            stampv(a, 0)
            common_prologue(a, 'K%d_END' % (i + 1))
            ph(a)
            stampv_flush(a, i)
            a.label('K%d_END' % (i + 1))
            a('s_endpgm')
            names.append(kn)
    lines += ['.amdgcn_target "amdgcn-amd-amdhsa--gfx950"', '.text']
    body = a.finish()
    out = '\n'.join(lines) + '\n' + body + '.section .rodata,"a"\n' + ''.join(kernel_desc(n, 256) for n in names)
    args = [x for x in sys.argv[1:] if not x.startswith('-')]
    path = args[0] if args else 'cdna_kernels/%s.s' % NAME
    open(path, 'w').write(out)
    print('wrote', path, len(out), 'bytes; nops inserted:', len(a.nops_inserted))
    if '-v' in sys.argv:
        for t, k in a.nops_inserted:
            if 'lds' not in t:
                print('  nop %d before %s' % (k, t))


if __name__ == "__main__":
    main()
```

```python
import sys, os, struct
sys.path.insert(0, os.path.dirname(os.path.abspath(__file__)))
from asmdsl import Asm

NAME = 'gated_mix__sliding_block__linear_attn_block__prompt'
S, D, H, DH = 2048, 640, 32, 20
DIAG = '--diag' in sys.argv
NOROT = '--rot1' not in sys.argv
GSLEEP = 2
_t = [x for x in sys.argv if x.startswith('--tlb=')]
TLBW = int(_t[0][6:]) if _t else 0
_rot = [x for x in sys.argv if x.startswith('--rot=')]
RA, RM1, RB, RM2 = [int(v) for v in _rot[0][6:].split(',')] if _rot else (1, 7, 3, 3)
NOROT3 = '--rot3' not in sys.argv
PAIR = 4 if '--pair' in sys.argv else 0
EXP1 = '--exp1' in sys.argv
EXP2 = '--exp2' in sys.argv
EXP3 = '--exp3' in sys.argv
FUSED = '--split' not in sys.argv
SC = ' sc1' if FUSED else ''
LC = ' sc1' if (FUSED and '--lsc1' in sys.argv) else ''

QA = 0
KA = QA + H * S * 40
VTA = KA + H * S * 40
PQB = VTA + 640 * S * 2
GG = PQB + H * S * 40
OF = GG + 8192
WOF = OF + S * 1280 * 2
ZR = WOF + 1280 * 640 * 2
FLG1 = ZR
FLG2 = ZR + 1024
KVA = ZR + 2048
WS_SIZE = 268435456
DIAG_OFF = 32 << 20
SPIN_LIMIT = 1 << 16


def f32(x):
    return '0x%08x' % struct.unpack('<I', struct.pack('<f', x))[0]


LOG2E = 1.4426950408889634
SRD3 = '0x00020000'
WS = 's[36:39]'


def vr(a, n=1):
    return 'v%d' % a if n == 1 else 'v[%d:%d]' % (a, a + n - 1)


def make_srd(a, d, ptr, size):
    a('s_mov_b32 s%d, s%d' % (d, ptr))
    a('s_and_b32 s%d, s%d, 0xffff' % (d + 1, ptr + 1))
    a('s_mov_b32 s%d, %d' % (d + 2, size))
    a('s_mov_b32 s%d, %s' % (d + 3, SRD3))


def make_srd_off(a, d, ptr, off, size):
    a('s_add_u32 s%d, s%d, %d' % (d, ptr, off))
    a('s_addc_u32 s%d, s%d, 0' % (d + 1, ptr + 1))
    a('s_and_b32 s%d, s%d, 0xffff' % (d + 1, d + 1))
    a('s_mov_b32 s%d, %d' % (d + 2, size))
    a('s_mov_b32 s%d, %s' % (d + 3, SRD3))


STV = 255


def stamp_move(a, new):
    global STV
    if DIAG:
        a('v_mov_b32 v%d, v%d' % (new, STV))
        STV = new


def stampv(a, idx, real=False):
    if DIAG:
        a('%s s[100:101]' % ('s_memrealtime' if real else 's_memtime'))
        a('s_waitcnt lgkmcnt(0)')
        a('v_writelane_b32 v%d, s100, %d' % (STV, idx))


def stampv_flush(a, kern):
    if DIAG:
        a('s_mov_b64 exec, -1')
        a('s_lshl_b32 s100, s2, 3')
        a('s_add_u32 s100, s100, s24')
        a('s_lshl_b32 s100, s100, 8')
        a('s_add_u32 s100, s100, %d' % (DIAG_OFF + kern * (1 << 20)))
        a('v_and_b32 v%d, 63, v0' % (STV - 1))
        a('v_lshlrev_b32 v%d, 2, v%d' % (STV - 1, STV - 1))
        a('buffer_store_dword v%d, v%d, %s, s100 offen' % (STV, STV - 1, WS))


def tick0(a):
    if DIAG:
        a('s_memtime s[100:101]')
        a('s_waitcnt lgkmcnt(0)')
        a('s_mov_b32 s96, s100')


def tick1(a, acc):
    if DIAG:
        a('s_memtime s[100:101]')
        a('s_waitcnt lgkmcnt(0)')
        a('s_sub_u32 s96, s100, s96')
        a('s_add_u32 s%d, s%d, s96' % (acc, acc))


def tick_out(a, acc, idx):
    if DIAG:
        a('v_writelane_b32 v%d, s%d, %d' % (STV, acc, idx))


def kernel_header(a, name):
    a.raw('.globl %s' % name)
    a.raw('.p2align 8')
    a.raw('.type %s,@function' % name)
    a.label(name)
    a.barrier_hazards()


def kernel_desc(name, vgpr, sgpr=102, accum=None):
    if accum is None:
        accum = (vgpr + 3) // 4 * 4
    return f'''.p2align 6
.amdhsa_kernel {name}
  .amdhsa_next_free_vgpr {vgpr}
  .amdhsa_next_free_sgpr {sgpr}
  .amdhsa_accum_offset {accum}
  .amdhsa_group_segment_fixed_size 0
  .amdhsa_kernarg_size 80
  .amdhsa_user_sgpr_count 2
  .amdhsa_user_sgpr_kernarg_segment_ptr 1
  .amdhsa_system_sgpr_workgroup_id_x 1
.end_amdhsa_kernel
'''


def common_prologue(a, endlabel):
    a('s_cmp_ge_u32 s2, 256')
    a('s_cbranch_scc1 %s' % endlabel)
    a('s_load_dwordx16 s[4:19], s[0:1], 0')
    a('s_load_dwordx4 s[20:23], s[0:1], 64')
    a('v_lshrrev_b32 v1, 6, v0')
    a('v_and_b32 v2, 63, v0')
    a('v_readfirstlane_b32 s24, v1')
    a('s_mov_b32 s98, 0')
    if DIAG:
        for r_ in (90, 91, 92, 93):
            a('s_mov_b32 s%d, 0' % r_)
    a('s_and_b32 s25, s2, 7')
    a('s_lshr_b32 s26, s2, 3')
    a('s_and_b32 s27, s25, 3')
    a('s_lshl_b32 s27, s27, 2')
    a('s_and_b32 s28, s26, 3')
    a('s_add_u32 s27, s27, s28')
    a('s_lshr_b32 s28, s25, 2')
    a('s_lshl_b32 s28, s28, 3')
    a('s_lshr_b32 s29, s26, 2')
    a('s_add_u32 s28, s28, s29')
    a('s_lshr_b32 s29, s27, 3')
    a('s_and_b32 s30, s27, 7')
    a('s_and_b32 s3, s26, %d' % (3 & RM2))
    a('s_mul_i32 s3, s3, %d' % RB)
    a('s_lshr_b32 s26, s26, 2')
    a('s_and_b32 s26, s26, %d' % RM1)
    a('s_mul_i32 s26, s26, %d' % RA)
    a('s_add_u32 s3, s3, s26')
    for _ in range(3):
        a('s_cmp_ge_u32 s3, 10')
        a('s_cselect_b32 s26, 10, 0')
        a('s_sub_u32 s3, s3, s26')
    if NOROT:
        a('s_mov_b32 s3, 0')


uid = [0]


def poll_loop(a, load_instr, nregs, freg, cond_regs_ok):
    uid[0] += 1
    L = 'POLL%d' % uid[0]
    a('s_mov_b32 s98, 0')
    a.label(L)
    a(load_instr)
    a('s_waitcnt vmcnt(0)')
    cond_regs_ok()
    a('s_cbranch_scc1 %s_OK' % L)
    a('s_sleep 1')
    a('s_add_u32 s98, s98, 1')
    a('s_cmp_lt_u32 s98, %d' % SPIN_LIMIT)
    a('s_cbranch_scc1 %s' % L)
    a.label(L + '_OK')


SLOT = 47104
WOFFS = 16384
L_GATE = 3 * SLOT
L_WOSCR = L_GATE + 2048
L_FLAGS = L_WOSCR + 8192
LDS_TOTAL = L_FLAGS + 64
ST_Q = 0
ST_K = 20480
ST_V = 40960
VPITCH = 272
ST_FR = 65536
ST_KV = ST_FR + 40960


def phase1(a):
    a('s_cmp_ge_u32 s24, 4')
    a('s_cbranch_scc0 P1_CONS')
    a('s_sub_u32 s31, s24, 4')
    a('v_lshrrev_b32 v3, 3, v2')
    a('v_and_b32 v4, 7, v2')
    a('v_lshrrev_b32 v5, 1, v3')
    a('v_xor_b32 v4, v4, v5')
    a('v_lshlrev_b32 v4, 4, v4')
    a('v_mul_u32_u24 v3, 1280, v3')
    a('v_add_u32 v10, v3, v4')
    a('v_xor_b32 v11, 64, v10')
    a('v_add_u32 v11, 10240, v11')
    a('v_add_u32 v12, 20480, v10')
    a('v_add_u32 v13, 20480, v11')
    a('v_cmp_lt_u32 vcc, 29, v2')
    a('s_lshl_b32 s32, s28, 7')
    a('s_lshl_b32 s33, s31, 5')
    a('v_cndmask_b32 v3, 0, 1, vcc')
    a('v_mul_u32_u24 v4, 30, v3')
    a('v_sub_u32 v4, v2, v4')
    a('v_mul_u32_u24 v5, 26, v4')
    a('v_lshrrev_b32 v5, 8, v5')
    a('v_mul_u32_u24 v6, 10, v5')
    a('v_sub_u32 v6, v4, v6')
    a('v_mul_u32_u24 v3, 3840, v3')
    a('v_mul_u32_u24 v5, 1280, v5')
    a('v_lshlrev_b32 v6, 4, v6')
    a('v_add3_u32 v14, v3, v5, v6')
    for ii in range(1, 4):
        koff = 2 * (ii & 1) + 8 * (ii >> 1)
        a('v_add_u32 v%d, %d, v14' % (14 + ii, koff * 3840))
    a('v_lshlrev_b32 v23, 4, v2')
    a('s_add_u32 s32, s32, s33')
    a('s_mul_i32 s32, s32, 1280')
    a('s_and_b32 s33, s31, 1')
    a('s_lshl_b32 s33, s33, 2')
    a('s_lshr_b32 s34, s31, 1')
    a('s_lshl_b32 s34, s34, 4')
    a('s_add_u32 s33, s33, s34')
    a('s_mul_i32 s33, s33, 3840')
    a('s_mul_i32 s34, s30, 160')
    a('s_add_u32 s33, s33, s34')
    a('s_lshl_b32 s34, s31, 12')
    a('s_mul_i32 s35, s31, 3840')
    a('s_add_u32 s35, s35, %d' % WOFFS)
    a('s_mov_b32 s48, -1')
    a('s_mov_b32 s49, 0x0fffffff')
    a('s_lshl_b32 s50, s31, 2')
    a('s_add_u32 s50, s50, %d' % L_FLAGS)
    a('v_mov_b32 v20, s50')
    a('v_mov_b32 v21, %d' % (L_FLAGS + 16))
    a('s_mov_b32 s52, 0')
    a('s_lshl_b32 s56, s3, 7')
    a('s_add_u32 s32, s32, s56')
    a('s_mul_i32 s56, s3, %d' % (64 * 3840))
    a('s_add_u32 s33, s33, s56')
    a('s_sub_u32 s54, 10, s3')
    a('s_lshl_b32 s55, s54, 1')
    a('s_waitcnt lgkmcnt(0)')
    make_srd(a, 40, 4, S * D * 2)
    a('s_cmp_eq_u32 s29, 0')
    a('s_cselect_b32 s44, s6, s12')
    a('s_cselect_b32 s45, s7, s13')
    a('s_and_b32 s45, s45, 0xffff')
    a('s_mov_b32 s46, %d' % (D * 3 * D * 2))
    a('s_mov_b32 s47, %s' % SRD3)

    def grp_x():
        a('s_add_u32 s51, s50, s34')
        for ii in range(4):
            a('s_add_u32 m0, s51, %d' % (ii * 1024))
            if not EXP2:
                a('buffer_load_dwordx4 v%d, s[40:43], s32 offen lds' % (10 + ii))
        a('s_add_u32 s32, s32, 128')
        a('s_sub_u32 s54, s54, 1')
        a('s_cmp_eq_u32 s54, 0')
        a('s_cselect_b32 s56, 1280, 0')
        a('s_sub_u32 s32, s32, s56')
        a('s_add_u32 s52, s52, 4')

    def grp_w(u):
        a('s_add_u32 s51, s50, s35')
        a('s_mov_b64 exec, s[48:49]')
        for ii in range(4):
            a('s_add_u32 m0, s51, %d' % (u * 15360 + ii * 960))
            if not EXP2:
                a('buffer_load_dwordx4 v%d, s[44:47], s33 offen lds' % (14 + ii))
        a('s_mov_b64 exec, -1')
        a('s_add_u32 s33, s33, %d' % (32 * 3840))
        a('s_sub_u32 s55, s55, 1')
        a('s_cmp_eq_u32 s55, 0')
        a('s_cselect_b32 s56, %d, 0' % (640 * 3840))
        a('s_sub_u32 s33, s33, s56')
        a('s_add_u32 s52, s52, 4')

    def publish():
        a('s_getreg_b32 s56, hwreg(HW_REG_IB_STS)')
        a('s_lshr_b32 s57, s56, 18')
        a('s_and_b32 s57, s57, 0x30')
        a('s_and_b32 s56, s56, 15')
        a('s_or_b32 s56, s56, s57')
        a('s_sub_i32 s56, s52, s56')
        a('s_max_i32 s56, s56, 0')
        a('s_lshr_b32 s56, s56, 2')
        a('v_mov_b32 v22, s56')
        a('ds_write_b32 v20, v22')

    def gate(tag, need):
        a.label(tag + '_T')
        a('ds_read_b128 v[24:27], v21')
        a('s_waitcnt lgkmcnt(0)')
        a('v_min3_u32 v24, v24, v25, v26')
        a('v_min_u32 v24, v24, v27')
        a('v_readfirstlane_b32 s58, v24')
        a('s_cmp_ge_i32 s58, %s' % need)
        a('s_cbranch_scc1 %s' % tag)
        publish()
        a('s_sleep %d' % GSLEEP)
        a('s_add_u32 s98, s98, 1')
        a('s_cmp_gt_u32 s98, %d' % (SPIN_LIMIT * 8))
        a('s_cbranch_scc0 %s_T' % tag)
        a.label(tag)

    a('s_cmp_lg_u32 s31, 0')
    a('s_cbranch_scc1 P1_L_NOGATE')
    make_srd(a, 60, 16, 1280)
    a('s_mov_b32 m0, %d' % L_GATE)
    a('s_mov_b32 s59, 1024')
    a('buffer_load_dwordx4 v23, s[60:63], 0 offen lds')
    a('s_mov_b32 m0, %d' % (L_GATE + 1024))
    a('buffer_load_dwordx4 v23, s[60:63], s59 offen lds')
    a.label('P1_L_NOGATE')
    a('s_mov_b32 s50, 0')
    grp_x()
    grp_w(0)
    make_srd(a, 36, 22, WS_SIZE)
    stampv(a, 1)
    a('s_barrier')
    grp_w(1)
    publish()
    a('s_mov_b32 s50, %d' % SLOT)
    a('s_mov_b32 s53, -3')
    a.label('P1_L_LOOP')
    gate('P1_L_G1', 's53')
    grp_w(0)
    publish()
    a('s_add_u32 s53, s53, 1')
    gate('P1_L_G2', 's53')
    grp_x()
    publish()
    grp_w(1)
    publish()
    a('s_add_u32 s53, s53, 1')
    a('s_add_u32 s50, s50, %d' % SLOT)
    a('s_cmp_eq_u32 s50, %d' % (3 * SLOT))
    a('s_cselect_b32 s50, 0, s50')
    a('s_cmp_lt_i32 s53, 15')
    a('s_cbranch_scc1 P1_L_LOOP')
    for n_ in (12, 8, 4, 0):
        a('s_waitcnt vmcnt(%d)' % n_)
        publish()
    stampv(a, 3)
    a('s_cmp_lg_u32 s31, 0')
    a('s_cbranch_scc1 P1_L_NOZ')
    make_srd(a, 52, 20, 256)
    a('v_mov_b32 v24, 0')

    def zok():
        a('v_readfirstlane_b32 s57, v25')
        a('s_cmp_eq_u32 s57, 32')
    poll_loop(a, 'buffer_load_dword v25, v24, s[52:55], 0 offen sc1', 1, 25, zok)
    a.label('P1_L_NOZ')
    stampv(a, 4)
    a('s_barrier')
    a('s_branch P1_STORE')

    a.label('P1_CONS')
    a.barrier_hazards()
    F0, F1, ACC = 16, 64, 112
    FL = 240
    a('s_lshr_b32 s31, s24, 1')
    a('s_and_b32 s32, s24, 1')
    a('v_and_b32 v3, 15, v2')
    a('v_lshrrev_b32 v4, 4, v2')
    a('v_bfe_u32 v5, v2, 2, 2')
    a('v_and_b32 v6, 3, v2')
    a('v_mov_b32 v244, %d' % L_FLAGS)
    a('v_mov_b32 v16, 0')
    a('v_mov_b32 v17, 0')
    a('v_mov_b32 v18, 0')
    a('v_mov_b32 v19, 0')
    a('ds_write_b128 v244, v[16:19]')
    a('ds_write_b128 v244, v[16:19] offset:16')
    a('v_lshlrev_b32 v246, 4, v2')
    a('s_mul_i32 s40, s2, 52429')
    a('s_lshr_b32 s40, s40, 18')
    a('s_mul_i32 s41, s40, 5')
    a('s_sub_u32 s41, s2, s41')
    a('v_lshrrev_b32 v7, 2, v2')
    a('v_mul_u32_u24 v7, 1280, v7')
    a('v_lshl_add_u32 v247, v6, 4, v7')
    a('s_lshl_b32 s42, s24, 11')
    a('s_add_u32 s42, s42, %d' % L_WOSCR)
    a('s_waitcnt lgkmcnt(0)')
    make_srd(a, 36, 22, WS_SIZE)
    a('s_cmp_ge_u32 s2, 8')
    a('s_cbranch_scc1 P1_C_NOZ')
    a('s_lshl_b32 s43, s2, 2')
    a('s_add_u32 s43, s43, s24')
    a('s_lshl_b32 s43, s43, 11')
    a('s_add_u32 s43, s43, %d' % ZR)
    a('buffer_store_dwordx4 v[16:19], v246, %s, s43 offen sc1' % WS)
    a('buffer_store_dwordx4 v[16:19], v246, %s, s43 offen offset:1024 sc1' % WS)
    a.label('P1_C_NOZ')
    a('s_cmp_ge_u32 s2, 200')
    a('s_cbranch_scc1 P1_C_NOWO')
    a('s_cmp_lt_u32 s40, 20')
    a('s_cselect_b32 s52, s8, s14')
    a('s_cselect_b32 s53, s9, s15')
    a('s_cselect_b32 s57, 0, 20')
    a('s_and_b32 s53, s53, 0xffff')
    a('s_mov_b32 s54, %d' % (D * D * 2))
    a('s_mov_b32 s55, %s' % SRD3)
    a('s_sub_u32 s57, s40, s57')
    a('s_mul_i32 s57, s57, %d' % (32 * 1280))
    a('s_lshl_b32 s56, s41, 8')
    a('s_add_u32 s57, s57, s56')
    a('s_lshl_b32 s56, s24, 6')
    a('s_add_u32 s57, s57, s56')
    a('s_mov_b32 m0, s42')
    a('s_add_u32 s56, s57, %d' % (16 * 1280))
    a('buffer_load_dwordx4 v247, s[52:55], s57 offen lds')
    a('s_add_u32 m0, s42, 1024')
    a('buffer_load_dwordx4 v247, s[52:55], s56 offen lds')
    a.label('P1_C_NOWO')
    if TLBW:
        a('v_lshlrev_b32 v7, %d, v2' % TLBW)
        a('s_cmp_lg_u32 s24, 3')
        a('s_cbranch_scc1 P1_C_NOTLB')
        make_srd(a, 44, 22, ZR + 65536)
        make_srd(a, 48, 18, S * D * 2)
        a('buffer_load_dword v248, v7, s[44:47], 0 offen')
        a('buffer_load_dword v249, v7, s[48:51], 0 offen')
        a.label('P1_C_NOTLB')
    a('s_barrier')
    a('v_lshrrev_b32 v7, 1, v3')
    a('v_xor_b32 v7, v4, v7')
    a('v_lshlrev_b32 v7, 4, v7')
    a('v_lshl_add_u32 v8, v3, 7, v7')
    a('s_lshl_b32 s33, s31, 13')
    a('v_add_u32 v8, s33, v8')
    a('v_xor_b32 v9, 64, v8')
    a('v_lshrrev_b32 v7, 1, v4')
    a('v_lshlrev_b32 v7, 4, v7')
    a('v_and_b32 v1, 1, v4')
    a('v_lshl_add_u32 v7, v1, 2, v7')
    a('v_add_u32 v7, v7, v5')
    a('v_mul_u32_u24 v7, 480, v7')
    a('v_add_u32 v7, %d, v7' % WOFFS)
    a('v_mul_u32_u24 v1, 40, v6')
    a('v_add_u32 v10, v7, v1')
    a('v_lshl_add_u32 v11, v6, 3, v7')
    a('v_lshlrev_b32 v7, 4, v4')
    a('v_add_u32 v7, %d, v7' % L_GATE)
    a('s_lshl_b32 s33, s3, 7')
    a('v_add_u32 v7, s33, v7')
    a('s_sub_u32 s43, 10, s3')
    a('s_mov_b32 s45, 128')
    for r in range(128):
        a('v_mov_b32 v%d, 0' % (ACC + r))
    for i in range(4):
        a('v_mov_b32 v%d, v%d' % (12 + i, 8 + i))
    a('s_lshl_b32 s33, s24, 2')
    a('s_add_u32 s33, s33, %d' % (L_FLAGS + 16))
    a('v_mov_b32 v245, s33')
    a('s_mov_b32 s34, 0')
    a('s_mov_b32 s35, 1')
    a('v_lshlrev_b32 v1, 9, v4')
    a('v_lshl_add_u32 v1, v5, 6, v1')
    a('v_lshl_add_u32 v1, v6, 3, v1')
    a('v_add_u32 v1, s42, v1')
    stampv(a, 1)
    a('s_waitcnt vmcnt(0)')
    stampv(a, 2)
    a('s_cmp_ge_u32 s2, 8')
    a('s_cbranch_scc1 P1_C_NOZ2')
    make_srd(a, 52, 20, 256)
    a('v_mov_b32 v16, 1')
    a('v_mov_b32 v17, 0')
    a('s_mov_b64 exec, 1')
    a('buffer_atomic_add v16, v17, s[52:55], 0 offen sc1')
    a('s_mov_b64 exec, -1')
    a.label('P1_C_NOZ2')
    a('s_cmp_ge_u32 s2, 200')
    a('s_cbranch_scc1 P1_C_NOWO2')
    for tt in range(2):
        for j4 in range(2):
            a('ds_read_b64_tr_b16 v[%d:%d], v1 offset:%d' % (64 + tt * 4 + j4 * 2, 65 + tt * 4 + j4 * 2, j4 * 256 + tt * 32))
    a('s_lshl_b32 s57, s41, 3')
    a('s_lshl_b32 s58, s24, 1')
    a('s_add_u32 s57, s57, s58')
    a('s_mul_i32 s57, s57, 40')
    a('s_add_u32 s57, s57, s40')
    a('s_lshl_b32 s57, s57, 10')
    a('s_add_u32 s57, s57, %d' % WOF)
    a('s_add_u32 s58, s57, %d' % (40 * 1024))
    a('s_waitcnt lgkmcnt(0)')
    a('buffer_store_dwordx4 v[64:67], v246, %s, s57 offen%s' % (WS, SC))
    a('buffer_store_dwordx4 v[68:71], v246, %s, s58 offen%s' % (WS, SC))
    a.label('P1_C_NOWO2')
    a.label('P1_C_W0')
    a('ds_read_b128 %s, v244' % vr(FL, 4))
    a('s_waitcnt lgkmcnt(0)')
    a('v_min3_u32 v1, v%d, v%d, v%d' % (FL, FL + 1, FL + 2))
    a('v_min_u32 v1, v1, v%d' % (FL + 3))
    a('v_readfirstlane_b32 s40, v1')
    a('s_add_u32 s98, s98, 1')
    a('s_cmp_gt_u32 s98, %d' % (SPIN_LIMIT * 8))
    a('s_cbranch_scc1 P1_C_W0X')
    a('s_cmp_lt_u32 s40, 2')
    a('s_cbranch_scc1 P1_C_W0')
    a.label('P1_C_W0X')
    stampv(a, 3)
    a('s_setprio 2')
    a('s_lshl_b32 s40, s29, 1')
    a('s_add_u32 s40, s40, s32')
    a('s_cmp_eq_u32 s40, 1')
    a('s_cbranch_scc1 P1_V1')
    a('s_cmp_eq_u32 s40, 2')
    a('s_cbranch_scc1 P1_V2')
    a('s_cmp_eq_u32 s40, 3')
    a('s_cbranch_scc1 P1_V3')

    def tl_p1(sec, ct):
        return ('w', sec, ct, 'A', 8 * ct, 'WX')

    def tl_p2(sec, ct):
        return ('w', sec, ct, 'B', 32 * ct, 'XW')

    def tl_p3(sec, ct):
        return ('w', sec, ct, 'B', 40 * ct, 'XW') if ct < 4 else ('w', sec, ct, 'A', 32, 'XW')

    variants = [
        [tl_p1(0, c) for c in range(5)] + [tl_p1(1, c) for c in range(3)],
        [tl_p1(1, 3), tl_p1(1, 4)] + [tl_p2(2, c) for c in range(5)] + [('gate',)],
        [tl_p1(0, c) for c in range(5)] + [tl_p3(1, c) for c in range(3)],
        [tl_p3(1, 3), tl_p3(1, 4)] + [tl_p3(2, c) for c in range(5)],
    ]

    def reads(tiles, F, u):
        L = []
        for rt in range(4):
            L.append('ds_read_b128 %s, v%d offset:%d' % (vr(F + 4 * rt, 4), 12 + u, rt * 2048))
        for t, tile in enumerate(tiles):
            b = F + 16 + 4 * t
            if tile[0] == 'gate':
                L.append('ds_read_b128 %s, v7 offset:%d' % (vr(b, 4), u * 64))
            else:
                _, sec, ct, pat, tcol, _o = tile
                for j4 in range(2):
                    off = (32 * u + 8 * j4) * 480 + sec * 160 + tcol
                    L.append('ds_read_b64_tr_b16 %s, v%d offset:%d' % (vr(b + 2 * j4, 2), 14 if pat == 'A' else 15, off))
        return L

    def mfmas(tiles, F):
        L = []
        for t, tile in enumerate(tiles):
            for rt in range(4):
                acc = vr(ACC + (t * 4 + rt) * 4, 4)
                xf = vr(F + 4 * rt, 4)
                wf = vr(F + 16 + 4 * t, 4)
                o = 'WX' if tile[0] == 'gate' else tile[5]
                if o == 'WX':
                    L.append('v_mfma_f32_16x16x32_bf16 %s, %s, %s, %s' % (acc, wf, xf, acc))
                else:
                    L.append('v_mfma_f32_16x16x32_bf16 %s, %s, %s, %s' % (acc, xf, wf, acc))
        return L

    spins = []

    def half(tiles, Fc, Fn, un, tag, pre=()):
        ms = mfmas(tiles, Fc)
        rs = reads(tiles, Fn, un)
        if EXP1:
            ms = ['s_nop 0'] * len(ms)
        if EXP1 or EXP3:
            rs = []
        rs = rs + ['ds_read_b128 %s, v244' % vr(FL, 4)]
        a(ms[0])
        a('v_min3_u32 v1, v%d, v%d, v%d' % (FL, FL + 1, FL + 2))
        a('v_min_u32 v1, v1, v%d' % (FL + 3))
        a(ms[1])
        a('v_readfirstlane_b32 s40, v1')
        for p in pre:
            a(p)
        a(ms[2])
        a('s_cmp_lt_u32 s40, s35')
        a('s_cbranch_scc1 %s_SPIN' % tag)
        a.label(tag + '_GO')
        spins.append(tag)
        i = 0
        if len(rs) > 8:
            rs = [rs[0], rs[4], rs[1], rs[5], rs[2], rs[6], rs[3], rs[7]] + rs[8:]
        for n_, m in enumerate(ms[3:]):
            for _ in range(2 if n_ < PAIR else 1):
                if i < len(rs):
                    a(rs[i])
                    i += 1
            a(m)
        while i < len(rs):
            a(rs[i])
            i += 1
        a('v_mov_b32 v1, s41')
        a('s_add_u32 s41, s41, 1')
        a('s_add_u32 s35, s35, %d' % (2 if un == 1 else 1))
        a('s_min_u32 s35, s35, 30')
        a('s_waitcnt lgkmcnt(0)')
        a('ds_write_b32 v245, v1')

    def accr(t, rt, r=0):
        return ACC + (t * 4 + rt) * 4 + r

    def phi_many(regs, tmpbase):
        for i in range(0, len(regs), 8):
            grp = regs[i:i + 8]
            for j in range(0, len(grp), 2):
                a('v_pk_mul_f32 %s, %s, s[60:61]' % (vr(tmpbase + j, 2), vr(grp[j], 2)))
            for j, r in enumerate(grp):
                a('v_exp_f32 v%d, v%d' % (tmpbase + j, tmpbase + j))
            for j in range(0, len(grp), 2):
                a('v_pk_add_f32 %s, %s, s[62:63]' % (vr(grp[j], 2), vr(grp[j], 2)))
            for j, r in enumerate(grp):
                a('v_med3_f32 v%d, v%d, v%d, 1.0' % (r, tmpbase + j, r))
            for j in range(0, len(grp), 2):
                a('v_pk_add_f32 %s, %s, s[64:65]' % (vr(grp[j], 2), vr(grp[j], 2)))

    def stage_rowmajor(tile_ids, dim0, region):
        k = 0
        for rt in range(4):
            for idx, t in enumerate(tile_ids):
                st = 16 + (k & 7) * 2
                k += 1
                a('v_cvt_pk_bf16_f32 v%d, v%d, v%d' % (st, accr(t, rt, 0), accr(t, rt, 1)))
                a('v_cvt_pk_bf16_f32 v%d, v%d, v%d' % (st + 1, accr(t, rt, 2), accr(t, rt, 3)))
                a('ds_write_b64 v1, %s offset:%d' % (vr(st, 2), region + rt * 640 + dim0 * 2 + idx * 8))

    for vi, tiles in enumerate(variants):
        br, ni = vi >> 1, vi & 1
        a.label('P1_V%d' % vi)
        a.barrier_hazards()
        for r in reads(tiles, F0, 0):
            a(r)
        a('ds_read_b128 %s, v244' % vr(FL, 4))
        a('s_mov_b32 s35, 3')
        a('s_mov_b32 s41, 2')
        a('v_mov_b32 v1, 1')
        a('s_mov_b32 s33, 0')
        a('s_waitcnt lgkmcnt(0)')
        a('ds_write_b32 v245, v1')
        a.label('P1_V%d_LOOP' % vi)
        half(tiles, F0, F1, 1, 'P1_V%d_A' % vi)
        pre = ['s_add_u32 s34, s34, %d' % SLOT, 's_cmp_eq_u32 s34, %d' % (3 * SLOT), 's_cselect_b32 s34, 0, s34']
        pre += ['v_add_u32 v%d, s34, v%d' % (12 + i, 8 + i) for i in range(4)]
        if tiles[-1][0] == 'gate':
            pre += ['s_sub_u32 s43, s43, 1', 's_cmp_eq_u32 s43, 0', 's_cselect_b32 s44, %d, s45' % (128 - 1280),
                    'v_add_u32 v7, s44, v7']
        half(tiles, F1, F0, 0, 'P1_V%d_B' % vi, pre)
        a('s_add_u32 s33, s33, 1')
        a('s_cmp_lt_u32 s33, 10')
        a('s_cbranch_scc1 P1_V%d_LOOP' % vi)
        a('s_setprio 0')
        stampv(a, 4)
        tick_out(a, 90, 40)
        tick_out(a, 98, 41)
        a('s_lshl_b32 s40, s31, 6')
        a('v_lshl_add_u32 v1, v4, 7, v3')
        a('v_add_u32 v1, s40, v1')
        a('v_mul_u32_u24 v1, 40, v1')
        if br == 1:
            a('s_mov_b32 s60, %s' % f32(LOG2E))
            a('s_mov_b32 s61, %s' % f32(LOG2E))
            a('s_mov_b32 s62, 1.0')
            a('s_mov_b32 s63, 1.0')
            a('s_mov_b32 s64, %s' % f32(1e-6))
            a('s_mov_b32 s65, %s' % f32(1e-6))
            nphi = 8 if ni == 0 else 2
            phi_many([accr(t, rt, r) for t in range(nphi) for rt in range(4) for r in range(4)], 64)
        stampv(a, 5)
        a('s_waitcnt lgkmcnt(0)')
        a('s_barrier')
        stampv(a, 6)
        if vi == 0:
            stage_rowmajor([5, 6, 7], 0, ST_K)
            stage_rowmajor([0, 1, 2, 3, 4], 0, ST_Q)
        elif vi == 1:
            stage_rowmajor([0, 1], 12, ST_K)
            a('v_mul_u32_u24 v1, %d, v3' % VPITCH)
            a('v_lshl_add_u32 v1, v4, 4, v1')
            a('s_lshl_b32 s40, s31, 7')
            a('v_add_u32 v1, s40, v1')
            for ct in range(5):
                t = 2 + ct
                for rp in range(2):
                    st = 32 + ((ct * 2 + rp) & 3) * 4
                    for h2 in range(2):
                        rt = rp * 2 + h2
                        a('v_cvt_pk_bf16_f32 v%d, v%d, v%d' % (st + 2 * h2, accr(t, rt, 0), accr(t, rt, 1)))
                        a('v_cvt_pk_bf16_f32 v%d, v%d, v%d' % (st + 2 * h2 + 1, accr(t, rt, 2), accr(t, rt, 3)))
                    a('ds_write_b128 v1, %s offset:%d' % (vr(st, 4), ST_V + ct * 16 * VPITCH + rp * 64))
            a('s_cmp_lg_u32 s30, 0')
            a('s_cbranch_scc1 P1_NOGATE_ST')
            a('v_lshlrev_b32 v1, 2, v3')
            a('s_lshl_b32 s40, s28, 9')
            a('s_lshl_b32 s41, s31, 8')
            a('s_add_u32 s40, s40, s41')
            a('s_add_u32 s40, s40, %d' % GG)
            a('s_mov_b32 s60, %s' % f32(-LOG2E))
            for rt in range(4):
                a('v_mul_f32 v%d, s60, v%d' % (accr(7, rt), accr(7, rt)))
            for rt in range(4):
                a('v_exp_f32 v%d, v%d' % (accr(7, rt), accr(7, rt)))
            for rt in range(4):
                a('v_add_f32 v%d, 1.0, v%d' % (accr(7, rt), accr(7, rt)))
            for rt in range(4):
                a('v_rcp_f32 v%d, v%d' % (accr(7, rt), accr(7, rt)))
            a('s_mov_b64 exec, 0xffff')
            for rt in range(4):
                a('buffer_store_dword v%d, v1, %s, s40 offen offset:%d%s' % (accr(7, rt, 0), WS, rt * 64, SC))
            a('s_mov_b64 exec, -1')
            a.label('P1_NOGATE_ST')
        else:
            if ni == 0:
                fr = [(5, 0), (6, 1), (7, 2)]
            else:
                fr = [(0, 3), (1, 4)] + [(2 + c, 5 + c) for c in range(5)]
            a('s_lshl_b32 s40, s31, 11')
            a('s_add_u32 s40, s40, %d' % ST_FR)
            a('v_add_u32 v7, s40, v246')
            for n_, (t, T) in enumerate(fr):
                for rp in range(2):
                    st = 80 + ((n_ * 2 + rp) & 3) * 4
                    for h2 in range(2):
                        rt = rp * 2 + h2
                        a('v_cvt_pk_bf16_f32 v%d, v%d, v%d' % (st + 2 * h2, accr(t, rt, 0), accr(t, rt, 1)))
                        a('v_cvt_pk_bf16_f32 v%d, v%d, v%d' % (st + 2 * h2 + 1, accr(t, rt, 2), accr(t, rt, 3)))
                    a('ds_write_b128 v7, %s offset:%d' % (vr(st, 4), T * 4096 + rp * 1024))
            if ni == 0:
                stage_rowmajor([0, 1, 2, 3, 4], 0, ST_Q)
        a('s_branch P1_STORE')
    for tag in spins:
        a.label(tag + '_SPIN')
        a.barrier_hazards()
        tick0(a)
        a('ds_read_b128 %s, v244' % vr(FL, 4))
        a('s_waitcnt lgkmcnt(0)')
        a('v_min3_u32 v1, v%d, v%d, v%d' % (FL, FL + 1, FL + 2))
        a('v_min_u32 v1, v1, v%d' % (FL + 3))
        a('v_readfirstlane_b32 s40, v1')
        tick1(a, 90)
        a('s_add_u32 s98, s98, 1')
        a('s_cmp_gt_u32 s98, %d' % (SPIN_LIMIT * 8))
        a('s_cbranch_scc1 %s_GO' % tag)
        a('s_cmp_lt_u32 s40, s35')
        a('s_cbranch_scc1 %s_SPIN' % tag)
        a('s_branch %s_GO' % tag)

    a.label('P1_STORE')
    a.barrier_hazards()
    a('v_lshlrev_b32 v1, 4, v2')
    a('s_waitcnt lgkmcnt(0)')
    a('s_barrier')
    stampv(a, 7)
    a('s_cmp_eq_u32 s29, 1')
    a('s_cbranch_scc1 P1_ST_B')
    a('s_lshl_b32 s40, s30, 13')
    a('s_lshl_b32 s41, s28, 7')
    a('s_add_u32 s40, s40, s41')
    a('s_mul_i32 s40, s40, 40')

    def piece_rowmajor(wreg, lds_region, gregion, rbase, tag):
        for i in range(3):
            if i == 2:
                a('s_cmp_ge_u32 %s, 4' % wreg)
                a('s_cbranch_scc1 %s' % tag)
            a('s_add_u32 s41, %s, %d' % (wreg, 8 * i))
            a('s_lshl_b32 s42, s41, 10')
            a('v_add_u32 v3, s42, v1')
            a('ds_read_b128 %s, v3 offset:%d' % (vr(rbase + 4 * i, 4), lds_region))
            a('s_mul_i32 s43, s41, 52429')
            a('s_lshr_b32 s43, s43, 18')
            a('s_mul_i32 s43, s43, %d' % (2048 * 40 - 5120))
            a('s_add_u32 s43, s43, s42')
            a('s_add_u32 s43, s43, s40')
            a('s_add_u32 s%d, s43, %d' % (44 + i, gregion))
            a('s_waitcnt lgkmcnt(0)')
            a('buffer_store_dwordx4 %s, v1, %s, s%d offen%s' % (vr(rbase + 4 * i, 4), WS, 44 + i, SC))
        a.label(tag)

    piece_rowmajor('s24', ST_K, KA, 16, 'P1_SK')
    a('v_lshrrev_b32 v4, 4, v2')
    a('v_and_b32 v5, 15, v2')
    a('v_mul_u32_u24 v6, %d, v4' % VPITCH)
    a('v_lshl_add_u32 v6, v5, 4, v6')
    a('v_lshlrev_b32 v7, 12, v4')
    a('v_lshl_add_u32 v7, v5, 4, v7')
    a('s_mul_i32 s47, s30, %d' % (80 * 4096))
    a('s_lshl_b32 s41, s28, 8')
    a('s_add_u32 s47, s47, s41')
    a('s_add_u32 s47, s47, %d' % VTA)
    a('s_add_u32 s48, s24, 4')
    a('s_and_b32 s48, s48, 7')
    for i in range(3):
        if i == 2:
            a('s_cmp_ge_u32 s48, 4')
            a('s_cbranch_scc1 P1_SV')
        a('s_add_u32 s41, s48, %d' % (8 * i))
        a('s_mul_i32 s42, s41, %d' % (4 * VPITCH))
        a('v_add_u32 v3, s42, v6')
        a('ds_read_b128 %s, v3 offset:%d' % (vr(28 + 4 * i, 4), ST_V))
        a('s_lshl_b32 s43, s41, 14')
        a('s_add_u32 s%d, s43, s47' % (49 + i))
        a('s_waitcnt lgkmcnt(0)')
        a('buffer_store_dwordx4 %s, v7, %s, s%d offen%s' % (vr(28 + 4 * i, 4), WS, 49 + i, SC))
    a.label('P1_SV')
    piece_rowmajor('s24', ST_Q, QA, 40, 'P1_SQ')
    a('s_branch P1_DONE')

    a.label('P1_ST_B')
    a.barrier_hazards()
    a('s_cmp_lt_u32 s24, 4')
    a('s_cbranch_scc1 P1_KV')
    a('s_sub_u32 s41, s24, 4')
    a('s_mul_i32 s42, s41, 5120')
    a('v_add_u32 v3, s42, v1')
    for i in range(5):
        a('ds_read_b128 %s, v3 offset:%d' % (vr(16 + 4 * i, 4), ST_Q + 1024 * i))
    a('s_lshl_b32 s40, s30, 2')
    a('s_add_u32 s40, s40, s41')
    a('s_lshl_b32 s40, s40, 11')
    a('s_lshl_b32 s41, s28, 7')
    a('s_add_u32 s40, s40, s41')
    a('s_mul_i32 s40, s40, 40')
    a('s_add_u32 s40, s40, %d' % PQB)
    a('s_add_u32 s41, s40, 4096')
    a('s_waitcnt lgkmcnt(0)')
    for i in range(4):
        a('buffer_store_dwordx4 %s, v1, %s, s40 offen offset:%d%s' % (vr(16 + 4 * i, 4), WS, 1024 * i, SC))
    a('buffer_store_dwordx4 v[32:35], v1, %s, s41 offen%s' % (WS, SC))
    a('s_branch P1_DONE')
    a.label('P1_KV')
    a.barrier_hazards()
    a('v_add_u32 v1, %d, v1' % ST_FR)
    a('s_lshl_b32 s40, s24, 12')
    a('v_add_u32 v7, s40, v1')
    for G in range(4):
        a('ds_read_b128 %s, v7 offset:%d' % (vr(16 + 4 * G, 4), G * 1024))
        a('ds_read_b128 %s, v1 offset:%d' % (vr(32 + 4 * G, 4), 4 * 4096 + G * 1024))
        a('ds_read_b128 %s, v7 offset:%d' % (vr(48 + 4 * G, 4), 5 * 4096 + G * 1024))
        a('ds_read_b128 %s, v1 offset:%d' % (vr(64 + 4 * G, 4), 9 * 4096 + G * 1024))
    for i in range(4):
        a('v_mov_b32 v%d, 0x3f803f80' % (80 + i))
    a('s_mul_i32 s41, s24, 1792')
    a('s_add_u32 s41, s41, %d' % ST_KV)
    a('v_mul_u32_u24 v8, 80, v3')
    a('v_add_u32 v8, s41, v8')
    a('v_lshl_add_u32 v9, v4, 4, v8')
    a('s_lshl_b32 s40, s24, 2')
    a('v_subrev_u32 v10, s40, v3')
    a('v_cmp_gt_u32 s[50:51], 4, v10')
    a('v_cmp_eq_u32 s[52:53], s24, v4')
    a('v_cmp_eq_u32 s[54:55], 0, v3')
    a('v_mul_u32_u24 v10, 80, v10')
    a('v_add_u32 v10, s41, v10')
    a('v_lshl_add_u32 v11, v4, 4, v10')
    a('s_and_b64 s[56:57], s[50:51], s[52:53]')
    a('s_and_b64 s[58:59], s[54:55], s[52:53]')
    a('s_waitcnt lgkmcnt(0)')
    Dr = [112 + 4 * i for i in range(6)]
    for G in range(4):
        c = lambda i: ('0' if G == 0 else vr(Dr[i], 4))
        kw, k4, vw, v4_ = vr(16 + 4 * G, 4), vr(32 + 4 * G, 4), vr(48 + 4 * G, 4), vr(64 + 4 * G, 4)
        a('v_mfma_f32_16x16x32_bf16 %s, %s, %s, %s' % (vr(Dr[0], 4), kw, vw, c(0)))
        a('v_mfma_f32_16x16x32_bf16 %s, %s, %s, %s' % (vr(Dr[1], 4), kw, v4_, c(1)))
        a('v_mfma_f32_16x16x32_bf16 %s, %s, %s, %s' % (vr(Dr[2], 4), k4, vw, c(2)))
        a('v_mfma_f32_16x16x32_bf16 %s, %s, %s, %s' % (vr(Dr[3], 4), k4, v4_, c(3)))
        a('v_mfma_f32_16x16x32_bf16 %s, %s, v[80:83], %s' % (vr(Dr[4], 4), kw, c(4)))
        a('v_mfma_f32_16x16x32_bf16 %s, %s, v[80:83], %s' % (vr(Dr[5], 4), k4, c(5)))
    a('v_lshlrev_b32 v12, 2, v2')
    a('v_add_u32 v13, s41, v12')
    a('ds_write_b128 v9, %s' % vr(Dr[0], 4))
    a('s_mov_b64 exec, s[50:51]')
    a('ds_write_b128 v11, %s offset:1280' % vr(Dr[1], 4))
    a('s_mov_b64 exec, s[52:53]')
    a('ds_write_b128 v8, %s offset:64' % vr(Dr[2], 4))
    a('s_mov_b64 exec, s[56:57]')
    a('ds_write_b128 v10, %s offset:1344' % vr(Dr[3], 4))
    a('s_mov_b64 exec, s[54:55]')
    a('ds_write_b128 v9, %s offset:1600' % vr(Dr[4], 4))
    a('s_mov_b64 exec, s[58:59]')
    a('ds_write_b128 v8, %s offset:1664' % vr(Dr[5], 4))
    a('s_mov_b64 exec, -1')
    a('s_waitcnt lgkmcnt(0)')
    for i in range(7):
        a('ds_read_b32 v%d, v13 offset:%d' % (16 + i, 256 * i))
    a('s_lshl_b32 s40, s30, 2')
    a('s_add_u32 s40, s40, s24')
    a('s_mul_i32 s40, s40, 1680')
    a('s_add_u32 s40, s40, %d' % KVA)
    a('s_waitcnt lgkmcnt(0)')
    for i in range(6):
        a('buffer_atomic_add_f32 v%d, v12, %s, s40 offen offset:%d' % (16 + i, WS, 256 * i))
    a('s_mov_b32 exec_hi, 0xf')
    a('buffer_atomic_add_f32 v22, v12, %s, s40 offen offset:1536' % WS)
    a('s_mov_b32 exec_hi, -1')
    a.label('P1_DONE')
    a.barrier_hazards()
    stampv(a, 8)
    if FUSED:
        a('s_waitcnt vmcnt(0)')
        stampv(a, 9)
        a('s_barrier')
        a('s_cmp_lg_u32 s24, 0')
        a('s_cbranch_scc1 P1_NOFLAG')
        a('s_lshl_b32 s40, s27, 6')
        a('s_lshl_b32 s41, s28, 2')
        a('s_add_u32 s40, s40, s41')
        a('s_add_u32 s40, s40, %d' % FLG1)
        a('v_mov_b32 v16, 1')
        a('v_mov_b32 v17, 0')
        a('s_mov_b64 exec, 1')
        a('buffer_store_dword v16, v17, %s, s40 offen sc1' % WS)
        a('s_mov_b64 exec, -1')
        a.label('P1_NOFLAG')


K2_KIMG = 15360
K2_VP = 784
K2_V0 = K2_KIMG
K2_O1 = K2_V0 + 20 * K2_VP
K2_O2 = K2_O1 + 784 + 7 * 16
K2_HEAD = (K2_O2 + 784 + 255) // 256 * 256


def phase2(a):
    stamp_move(a, 79)
    a('s_lshl_b32 s25, s30, 1')
    a('s_add_u32 s25, s25, s29')
    a('s_lshr_b32 s31, s24, 2')
    a('s_and_b32 s32, s24, 3')
    a('s_lshl_b32 s33, s25, 1')
    a('s_add_u32 s33, s33, s31')
    a('s_mul_i32 s34, s31, %d' % K2_HEAD)
    a('s_lshl_b32 s35, s28, 7')
    a('s_sub_i32 s26, s35, 256')
    a('v_and_b32 v3, 31, v2')
    a('v_lshrrev_b32 v4, 5, v2')
    a('v_lshlrev_b32 v5, 4, v2')
    a('s_mul_i32 s60, s26, 40')
    a('s_lshl_b32 s61, s32, 10')
    a('s_add_i32 s60, s60, s61')
    a('v_add_u32 v6, s60, v5')
    a('v_max_i32 v10, 0, v6')
    for i in range(1, 4):
        a('v_add_u32 v%d, %d, v6' % (10 + i, i * 4096))
        a('v_max_i32 v%d, 0, v%d' % (10 + i, 10 + i))
    a('s_mul_i32 s62, s33, %d' % (S * 40))
    a('s_lshl_b32 s60, s26, 1')
    a('v_add_u32 v14, s60, v5')
    a('v_max_i32 v14, 0, v14')
    a('s_lshl_b32 s63, s32, 5')
    a('s_add_u32 s63, s63, s35')
    a('s_mul_i32 s64, s63, 40')
    a('s_add_u32 s64, s64, s62')
    a('v_mul_u32_u24 v7, 40, v3')
    a('v_lshl_add_u32 v8, v4, 4, v7')
    if not FUSED:
        a('s_waitcnt lgkmcnt(0)')
        make_srd(a, 36, 22, WS_SIZE)
    make_srd_off(a, 40, 22, KA, H * S * 40)
    make_srd_off(a, 44, 22, VTA, 640 * S * 2)
    make_srd_off(a, 48, 22, QA, H * S * 40)
    make_srd_off(a, 52, 22, PQB, H * S * 40)
    make_srd_off(a, 56, 22, KVA, H * 1680)
    if FUSED:
        a('s_cmp_lg_u32 s24, 0')
        a('s_cbranch_scc1 P2_W1')
        a('s_sub_i32 s60, s28, 2')
        a('v_add_u32 v16, s60, v2')
        a('v_max_i32 v16, 0, v16')
        a('v_min_u32 v16, s28, v16')
        a('v_lshlrev_b32 v16, 2, v16')
        a('s_lshl_b32 s60, s30, 6')
        a('s_add_u32 s60, s60, %d' % FLG1)

        def ok():
            a('v_cmp_ne_u32 vcc, 1, v17')
            a('s_cmp_eq_u64 vcc, 0')
        poll_loop(a, 'buffer_load_dword v17, v16, %s, s60 offen sc1' % WS, 1, 17, ok)
        a.label('P2_W1')
        stampv(a, 10)
        a('s_barrier')
    stampv(a, 11)
    a('s_lshl_b32 s60, s32, 10')
    a('s_add_u32 s60, s60, s34')
    for i in range(4):
        if i == 3:
            a('s_cmp_eq_u32 s32, 3')
            a('s_cbranch_scc1 P2_SKIPK')
        a('s_add_u32 m0, s60, %d' % (i * 4096))
        a('buffer_load_dwordx4 v%d, s[40:43], s62 offen%s lds' % (10 + i, LC))
    a.label('P2_SKIPK')
    a('buffer_load_dwordx4 v[16:19], v8, s[48:51], s64 offen%s' % LC)
    a('buffer_load_dwordx2 v[20:21], v7, s[48:51], s64 offen offset:32%s' % LC)
    a('s_mul_i32 s60, s33, 20')
    a('s_mul_i32 s61, s32, 5')
    a('s_add_u32 s60, s60, s61')
    a('s_lshl_b32 s60, s60, 12')
    a('s_mul_i32 s61, s32, %d' % (5 * K2_VP))
    a('s_add_u32 s61, s61, s34')
    a('s_add_u32 s61, s61, %d' % K2_V0)
    a('s_mov_b32 exec_hi, 0xffff')
    for i in range(5):
        a('s_add_u32 m0, s61, %d' % (i * K2_VP))
        a('buffer_load_dwordx4 v14, s[44:47], s60 offen%s lds' % LC)
        if i < 4:
            a('s_add_u32 s60, s60, 4096')
    a('s_mov_b32 exec_hi, -1')
    stampv(a, 12)
    a('s_lshl_b32 s60, s32, 9')
    a('v_lshlrev_b32 v22, 3, v2')
    a('v_add_u32 v22, s60, v22')
    a('v_mov_b32 v64, 0x3f803f80')
    a('v_mov_b32 v65, 0x3f803f80')
    a('v_add_u32 v66, s34, v22')
    a('v_cmp_gt_u32 vcc, 784, v22')
    a('s_and_saveexec_b64 s[60:61], vcc')
    a('ds_write_b64 v66, v[64:65] offset:%d' % K2_O1)
    a('ds_write_b64 v66, v[64:65] offset:%d' % K2_O2)
    a('s_mov_b64 exec, s[60:61]')
    a('v_lshlrev_b32 v67, 2, v4')
    a('v_sub_u32 v67, v3, v67')
    for r in range(16):
        c = 16 * ((r >> 2) & 1) + 8 * (r >> 3) + (r & 3)
        a('v_cmp_gt_i32 s[%d:%d], %d, v67' % (66 + 2 * r, 67 + 2 * r, c))
    a('v_mov_b32 v64, 0xffff')
    a('v_mov_b32 v65, 0xffff0000')
    for i in range(8):
        a('v_cndmask_b32 v%d, 0, v64, s[%d:%d]' % (68 + i, 66 + 4 * i, 67 + 4 * i))
        a('v_cndmask_b32 v76, 0, v65, s[%d:%d]' % (68 + 4 * i, 69 + 4 * i))
        a('v_or_b32 v%d, v%d, v76' % (68 + i, 68 + i))
    a('v_and_b32 v64, 7, v3')
    a('v_bfe_u32 v65, v3, 3, 1')
    a('v_lshl_add_u32 v64, v65, 4, v64')
    a('v_bfe_u32 v65, v3, 4, 1')
    a('v_lshl_add_u32 v64, v65, 3, v64')
    a('v_mul_u32_u24 v64, 40, v64')
    a('s_mul_i32 s60, s32, 1280')
    a('s_add_u32 s60, s60, s34')
    a('v_add_u32 v64, s60, v64')
    a('v_lshl_add_u32 v65, v4, 4, v64')
    a('v_mul_u32_u24 v66, %d, v3' % K2_VP)
    a('v_add_u32 v66, %d, v66' % K2_V0)
    a('v_cmp_lt_u32 vcc, 19, v3')
    a('v_mov_b32 v76, %d' % K2_O1)
    a('v_mov_b32 v77, %d' % K2_O2)
    a('v_cndmask_b32 v66, v66, v76, vcc')
    a('v_cmp_lt_u32 vcc, 27, v3')
    a('s_lshl_b32 s60, s32, 6')
    a('s_add_u32 s60, s60, s34')
    a('v_cndmask_b32 v66, v66, v77, vcc')
    a('v_lshl_add_u32 v66, v4, 4, v66')
    a('v_add_u32 v66, s60, v66')
    a('v_and_b32 v77, 15, v2')
    a('v_lshrrev_b32 v15, 4, v2')
    a('v_mul_u32_u24 v9, 40, v77')
    a('v_lshl_add_u32 v9, v15, 4, v9')
    a('v_mul_u32_u24 v10, 80, v77')
    a('v_lshl_add_u32 v10, v15, 5, v10')
    a('v_lshlrev_b32 v11, 5, v15')
    a('v_add_u32 v11, 1600, v11')
    a('v_mov_b32 v76, 0x7fffffff')
    a('v_cmp_gt_u32 vcc, 3, v15')
    a('v_cmp_gt_u32 s[60:61], 2, v15')
    a('v_cndmask_b32 v12, v76, v10, vcc')
    a('v_cndmask_b32 v13, v76, v10, s[60:61]')
    a('v_cndmask_b32 v10, v76, v11, vcc')
    a('v_cndmask_b32 v11, v76, v11, s[60:61]')
    for b_ in (24, 32, 40, 48):
        a('v_mov_b32 v%d, 0' % (b_ + 6))
        a('v_mov_b32 v%d, 0' % (b_ + 7))
    a('s_mul_i32 s65, s33, 1680')
    stampv(a, 13)
    a('s_waitcnt vmcnt(5) lgkmcnt(0)')
    stampv(a, 14)
    a('s_barrier')
    stampv(a, 15)
    a('v_cmp_eq_u32 vcc, 0, v4')
    a('v_mov_b32 v22, 0')
    a('v_mov_b32 v23, 0')
    a('v_cndmask_b32 v20, 0, v20, vcc')
    a('v_cndmask_b32 v21, 0, v21, vcc')
    SCR = 112
    KF = [24, 32, 40, 48]

    def kreads(t):
        b = KF[t & 1]
        a('ds_read_b64 v[%d:%d], v65 offset:%d' % (b, b + 1, t * 1280))
        a('ds_read_b64 v[%d:%d], v65 offset:%d' % (b + 2, b + 3, t * 1280 + 8))
        a('ds_read_b64 v[%d:%d], v64 offset:%d' % (b + 4, b + 5, t * 1280 + 32))

    def issue_b_loads():
        a('buffer_load_dwordx4 v[24:27], v9, s[52:55], s64 offen%s' % LC)
        a('buffer_load_dwordx4 v[28:31], v9, s[52:55], s64 offen offset:640%s' % LC)
        a('buffer_load_dwordx4 v[32:35], v12, s[56:59], s65 offen%s' % LC)
        a('buffer_load_dwordx4 v[36:39], v13, s[56:59], s65 offen offset:16%s' % LC)
        a('buffer_load_dwordx4 v[40:43], v12, s[56:59], s65 offen offset:1280%s' % LC)
        a('buffer_load_dwordx4 v[44:47], v13, s[56:59], s65 offen offset:1296%s' % LC)
        a('buffer_load_dwordx4 v[48:51], v10, s[56:59], s65 offen%s' % LC)
        a('buffer_load_dwordx4 v[52:55], v11, s[56:59], s65 offen offset:16%s' % LC)

    a('s_lshl_b32 s60, s28, 2')
    a('s_add_u32 s60, s60, s32')
    order = [8, 0, 1, 2, 3, 4, 5, 6, 7]
    MX = [60, 61, 62, 63]

    def post(t, first):
        b = SCR + 16 * t
        if t == 8:
            return
        lab = 'P2_V%d' % t
        a('v_mov_b32 v1, v%d' % (b + 15))
        a('s_cmp_ge_u32 s60, %d' % (8 - t))
        a('s_cbranch_scc1 %s' % lab)
        for r in range(16):
            a('v_mov_b32 v%d, 0xff800000' % (b + r))
        a.label(lab)
        if t == 0:
            for r in range(16):
                a('v_cndmask_b32 v%d, v%d, v%d, s[%d:%d]' % (b + r, SCR + 128 + r, b + r, 66 + 2 * r, 67 + 2 * r))
            for k in range(4):
                a('v_max3_f32 v%d, v%d, v%d, v%d' % (MX[k], b + 4 * k, b + 4 * k + 1, b + 4 * k + 2))
            for k in range(4):
                a('v_max_f32 v%d, v%d, v%d' % (MX[k], MX[k], b + 4 * k + 3))
        else:
            for k in range(8):
                a('v_max3_f32 v%d, v%d, v%d, v%d' % (MX[k & 3], MX[k & 3], b + 2 * k, b + 2 * k + 1))

    def kreads_n(n):
        t = order[n]
        b = KF[n & 3]
        a('ds_read_b64 v[%d:%d], v65 offset:%d' % (b, b + 1, t * 1280))
        a('ds_read_b64 v[%d:%d], v65 offset:%d' % (b + 2, b + 3, t * 1280 + 8))
        a('ds_read_b64 v[%d:%d], v64 offset:%d' % (b + 4, b + 5, t * 1280 + 32))

    kreads_n(0)
    kreads_n(1)
    kreads_n(2)
    for n, t in enumerate(order):
        if n + 3 < 9:
            kreads_n(n + 3)
        a('s_waitcnt lgkmcnt(%d)' % (3 * min(3, 8 - n)))
        b = KF[n & 3]
        d = vr(SCR + 16 * t, 16)
        a('v_mfma_f32_32x32x16_bf16 %s, %s, v[16:19], 0' % (d, vr(b, 4)))
        a('v_mfma_f32_32x32x16_bf16 %s, %s, v[20:23], %s' % (d, vr(b + 4, 4), d))
        if n >= 2:
            post(order[n - 2], n == 2)
    post(6, False)
    if not FUSED:
        issue_b_loads()
    else:
        a('buffer_load_dwordx4 v[56:59], v5, %s, s99 offen sc1' % WS)
    post(7, False)
    a('v_max3_f32 v60, v60, v61, v62')
    a('v_max_f32 v60, v60, v63')
    a('v_mov_b32 v61, v60')
    a('v_permlane32_swap_b32 v60, v61')
    a('v_max_f32 v60, v60, v61')
    CS = (DH ** -0.5) * LOG2E
    a('s_mov_b32 s60, %s' % f32(CS))
    a('s_mov_b32 s61, %s' % f32(CS))
    a('v_mul_f32 v60, %s, v60' % f32(-CS))
    a('v_mov_b32 v61, v60')
    stampv(a, 16)
    a('s_waitcnt vmcnt(%d)' % (1 if FUSED else 8))
    a('s_barrier')
    stampv(a, 17)
    OA = 96
    VF = [80, 84, 88, 92]

    def vread(idx):
        t, j = idx >> 1, idx & 1
        a('ds_read_b128 %s, v66 offset:%d' % (vr(VF[idx & 3], 4), t * 64 + j * 32))

    def softmax_tile(t):
        b = SCR + 16 * t
        for r in range(0, 16, 2):
            a('v_pk_fma_f32 %s, %s, s[60:61], v[60:61]' % (vr(b + r, 2), vr(b + r, 2)))
        for r in range(16):
            a('v_exp_f32 v%d, v%d' % (b + r, b + r))
        for i in range(8):
            a('v_cvt_pk_bf16_f32 v%d, v%d, v%d' % (b + i, b + 2 * i, b + 2 * i + 1))

    def flagcheck(tag, last):
        a('s_cmp_eq_u32 s98, 1')
        a('s_cbranch_scc1 %s' % tag)
        if last:
            a.label(tag + '_R')
        a('s_waitcnt vmcnt(0)')
        a('v_and_b32 v56, v56, v57')
        a('v_and_b32 v58, v58, v59')
        a('v_and_b32 v56, v56, v58')
        a('v_cmp_ne_u32 vcc, 1, v56')
        a('s_cmp_eq_u64 vcc, 0')
        a('s_cbranch_scc1 %s_Y' % tag)
        a('buffer_load_dwordx4 v[56:59], v5, %s, s99 offen sc1' % WS)
        if last:
            a('s_add_u32 s97, s97, 1')
            a('s_cmp_lt_u32 s97, %d' % SPIN_LIMIT)
            a('s_cbranch_scc1 %s_R' % tag)
        else:
            a('s_branch %s' % tag)
        a.label(tag + '_Y')
        issue_b_loads()
        a('s_mov_b32 s98, 1')
        a.label(tag)

    order2 = [0, 8, 1, 2, 3, 4, 5, 6, 7]
    first = True
    nv = 0
    if FUSED:
        a('s_mov_b32 s98, 0')
    for n_, t in enumerate(order2):
        i0 = nv
        for j in range(2):
            a('ds_read_b128 %s, v66 offset:%d' % (vr(VF[nv & 3], 4), t * 64 + j * 32))
            nv += 1
        if t == 0:
            softmax_tile(0)
            for i in range(8):
                a('v_bfi_b32 v%d, v%d, 0, v%d' % (SCR + 128 + i, 68 + i, SCR + i))
                a('v_and_b32 v%d, v%d, v%d' % (SCR + i, 68 + i, SCR + i))
        elif t != 8:
            softmax_tile(t)
        a('s_waitcnt lgkmcnt(0)')
        for j in range(2):
            c = '0' if first else vr(OA, 16)
            a('v_mfma_f32_32x32x16_bf16 %s, %s, %s, %s' % (vr(OA, 16), vr(VF[(i0 + j) & 3], 4), vr(SCR + 16 * t + 4 * j, 4), c))
            first = False
        if FUSED and t in (8, 3, 5):
            flagcheck('P2_FC%d' % t, False)
    if FUSED:
        a('s_mov_b32 s97, 0')
        flagcheck('P2_FCL', True)
    stampv(a, 18)
    a('s_waitcnt vmcnt(0)')
    for i in range(12):
        a('v_cvt_pk_bf16_f32 v%d, v%d, v%d' % (80 + i, 32 + 2 * i, 33 + 2 * i))
    a('v_rcp_f32 v62, v%d' % (OA + 12))
    for rt in range(2):
        pq = vr(24 + 4 * rt, 4)
        a('v_mfma_f32_16x16x32_bf16 %s, v[80:83], %s, 0' % (vr(SCR + 12 * rt, 4), pq))
        a('v_mfma_f32_16x16x32_bf16 %s, v[84:87], %s, 0' % (vr(SCR + 12 * rt + 4, 4), pq))
        a('v_mfma_f32_16x16x32_bf16 %s, v[88:91], %s, 0' % (vr(SCR + 12 * rt + 8, 4), pq))
    for r in range(12):
        a('v_mul_f32 v%d, v%d, v62' % (OA + r, OA + r))
    for i in range(6):
        a('v_cvt_pk_bf16_f32 v%d, v%d, v%d' % (32 + i, OA + 2 * i, OA + 2 * i + 1))
    a('s_mul_i32 s60, s32, 2560')
    a('v_bfe_u32 v6, v3, 4, 1')
    a('v_mul_u32_u24 v6, 1280, v6')
    a('v_lshl_add_u32 v6, v77, 4, v6')
    a('v_add_u32 v6, s60, v6')
    a('s_mul_i32 s61, s31, 20')
    a('v_lshlrev_b32 v7, 2, v4')
    a('v_add_u32 v7, s61, v7')

    def oaddr(dst, kk, base):
        a('v_lshrrev_b32 v%d, 3, v%d' % (dst, kk))
        a('v_lshl_add_u32 v%d, v%d, 8, v%d' % (dst, dst, base))
        a('v_and_b32 v63, 4, v%d' % kk)
        a('v_lshl_add_u32 v%d, v63, 1, v%d' % (dst, dst))

    oaddr(8, 7, 6)
    a('ds_write_b64 v8, v[32:33]')
    a('ds_write_b64 v8, v[34:35] offset:256')
    a('s_mov_b32 exec_hi, 0')
    a('ds_write_b64 v8, v[36:37] offset:512')
    a('s_mov_b32 exec_hi, -1')
    a('v_lshlrev_b32 v7, 2, v15')
    a('v_add_u32 v7, s61, v7')
    a('v_lshlrev_b32 v6, 4, v77')
    a('v_add_u32 v6, s60, v6')
    oaddr(8, 7, 6)
    a('s_mov_b32 s61, %s' % f32(1e-6))
    for rt in range(2):
        b = SCR + 12 * rt
        a('v_add_f32 v%d, s61, v%d' % (62 + rt, b + 8))
    for rt in range(2):
        a('v_rcp_f32 v%d, v%d' % (62 + rt, 62 + rt))
    for rt in range(2):
        b = SCR + 12 * rt
        for r in range(8):
            a('v_mul_f32 v%d, v%d, v%d' % (b + r, b + r, 62 + rt))
        for i in range(4):
            a('v_cvt_pk_bf16_f32 v%d, v%d, v%d' % (40 + 4 * rt + i, b + 2 * i, b + 2 * i + 1))
    a('ds_write_b64 v8, v[40:41] offset:%d' % K2_HEAD)
    a('ds_write_b64 v8, v[44:45] offset:%d' % (K2_HEAD + 1280))
    a('s_mov_b64 exec, 0xffff')
    a('ds_write_b64 v8, v[42:43] offset:%d' % (K2_HEAD + 512))
    a('ds_write_b64 v8, v[46:47] offset:%d' % (K2_HEAD + 1280 + 512))
    a('s_mov_b64 exec, -1')
    a('s_mul_i32 s60, s24, 1280')
    a('v_add_u32 v6, s60, v5')
    a('s_lshl_b32 s60, s28, 3')
    a('s_add_u32 s60, s60, s24')
    a('s_mul_i32 s60, s60, 40960')
    a('s_mul_i32 s61, s25, 1280')
    a('s_add_u32 s60, s60, s61')
    a('s_add_u32 s60, s60, %d' % OF)
    a('s_add_u32 s61, s60, 20480')
    a('s_waitcnt lgkmcnt(0)')
    a('s_barrier')
    stampv(a, 19)
    a('ds_read_b128 v[16:19], v6')
    a('ds_read_b128 v[20:23], v6 offset:%d' % K2_HEAD)
    a('ds_read_b128 v[24:27], v6 offset:1024')
    a('ds_read_b128 v[28:31], v6 offset:%d' % (K2_HEAD + 1024))
    a('s_waitcnt lgkmcnt(2)')
    a('buffer_store_dwordx4 v[16:19], v5, %s, s60 offen%s' % (WS, SC))
    a('buffer_store_dwordx4 v[20:23], v5, %s, s61 offen%s' % (WS, SC))
    a('s_waitcnt lgkmcnt(0)')
    a('s_mov_b64 exec, 0xffff')
    a('buffer_store_dwordx4 v[24:27], v5, %s, s60 offen offset:1024%s' % (WS, SC))
    a('buffer_store_dwordx4 v[28:31], v5, %s, s61 offen offset:1024%s' % (WS, SC))
    a('s_mov_b64 exec, -1')
    stampv(a, 20)
    stamp_move(a, 255)


def phase3(a):
    a('s_and_b32 s60, s2, 7')
    a('s_lshr_b32 s61, s2, 3')
    a('s_and_b32 s31, s60, 1')
    a('s_lshl_b32 s31, s31, 2')
    a('s_and_b32 s62, s61, 3')
    a('s_add_u32 s31, s31, s62')
    a('s_lshr_b32 s32, s60, 1')
    a('s_lshl_b32 s32, s32, 3')
    a('s_lshr_b32 s62, s61, 2')
    a('s_add_u32 s32, s32, s62')
    if not NOROT3:
        a('s_and_b32 s63, s61, 3')
        a('s_lshl_b32 s63, s63, 1')
        a('s_add_u32 s62, s62, s63')
        a('s_add_u32 s24, s24, s62')
        a('s_and_b32 s24, s24, 7')
    a('v_lshlrev_b32 v3, 4, v2')
    for i in range(1, 5):
        a('v_add_u32 v%d, %d, v3' % (3 + i, i * 40960))
    a('s_mul_i32 s33, s24, 5120')
    a('s_mul_i32 s34, s31, %d' % (200 * 1024))
    a('s_add_u32 s34, s34, s33')
    a('s_add_u32 s34, s34, %d' % WOF)
    a('s_add_u32 s35, s34, 4096')
    a('s_mul_i32 s40, s32, %d' % (160 * 1024))
    a('s_add_u32 s40, s40, s33')
    a('s_add_u32 s40, s40, %d' % OF)
    a('s_add_u32 s41, s40, 4096')
    if not FUSED:
        a('s_waitcnt lgkmcnt(0)')
        make_srd(a, 36, 22, WS_SIZE)
    ACC, WF, OFR = 16, 96, 196
    make_srd(a, 44, 18, S * D * 2)
    a('v_and_b32 v8, 15, v2')
    a('v_lshrrev_b32 v9, 4, v2')
    a('v_lshlrev_b32 v10, 2, v8')
    a('s_lshl_b32 s42, s32, 8')
    a('s_add_u32 s42, s42, %d' % GG)
    if FUSED:
        a('s_waitcnt vmcnt(0)')
        stampv(a, 21)
        a('s_barrier')
        a('s_cmp_lg_u32 s24, 0')
        a('s_cbranch_scc1 P3_W0')
        a('s_lshl_b32 s60, s28, 6')
        a('s_lshl_b32 s61, s25, 2')
        a('s_add_u32 s60, s60, s61')
        a('s_add_u32 s60, s60, %d' % FLG2)
        a('v_mov_b32 v16, 1')
        a('v_mov_b32 v17, 0')
        a('s_mov_b64 exec, 1')
        a('buffer_store_dword v16, v17, %s, s60 offen sc1' % WS)
        a('s_mov_b64 exec, -1')
        a.label('P3_W0')
    for ks in range(5):
        for ct in range(5):
            a('buffer_load_dwordx4 %s, v%d, %s, s%d offen offset:%d%s'
              % (vr(WF + (ks * 5 + ct) * 4, 4), 3 + ct, WS, 34 if ks < 4 else 35, (ks & 3) * 1024, LC))
    stampv(a, 22)
    if FUSED:
        a('s_cmp_lg_u32 s24, 0')
        a('s_cbranch_scc1 P3_W')
        a('s_lshr_b32 s60, s32, 1')
        a('s_lshl_b32 s60, s60, 6')
        a('s_add_u32 s60, s60, %d' % FLG2)

        def ok():
            a('v_cmp_ne_u32 vcc, 1, v17')
            a('s_cmp_eq_u64 vcc, 0')
        poll_loop(a, 'buffer_load_dword v17, v10, %s, s60 offen sc1' % WS, 1, 17, ok)
        a.label('P3_W')
        stampv(a, 23)
        a('s_barrier')
    stampv(a, 24)

    def oloads(ks):
        b = OFR + (ks % 3) * 16
        for rt in range(4):
            a('buffer_load_dwordx4 %s, v%d, %s, s%d offen offset:%d%s'
              % (vr(b + 4 * rt, 4), 3 + rt, WS, 40 if ks < 4 else 41, (ks & 3) * 1024, LC))

    for ks in range(3):
        oloads(ks)
    for rt in range(4):
        a('buffer_load_dword v%d, v10, %s, s42 offen offset:%d%s' % (12 + rt, WS, rt * 64, LC))
    waits = [12, 12, 12, 4, 0]
    waits = [12, 12, 12, 4, 0]
    for ks in range(5):
        a('s_waitcnt vmcnt(%d)' % waits[ks])
        b = OFR + (ks % 3) * 16
        for ct in range(5):
            for rt in range(4):
                acc = vr(ACC + (rt * 5 + ct) * 4, 4)
                a('v_mfma_f32_16x16x32_bf16 %s, %s, %s, %s' % (acc, vr(WF + (ks * 5 + ct) * 4, 4), vr(b + 4 * rt, 4),
                                                              '0' if ks == 0 else acc))
        if ks + 3 < 5:
            oloads(ks + 3)
    stampv(a, 25)
    a('s_cmp_lt_u32 s24, 4')
    a('s_cbranch_scc1 P3_NOINV')
    for rt in range(4):
        a('v_sub_f32 v%d, 1.0, v%d' % (12 + rt, 12 + rt))
    a.label('P3_NOINV')
    for rt in range(4):
        a('v_mov_b32 v%d, v%d' % (96 + 2 * rt, 12 + rt))
        a('v_mov_b32 v%d, v%d' % (97 + 2 * rt, 12 + rt))
    for rt in range(4):
        for i in range(0, 20, 2):
            r = ACC + rt * 20 + i
            a('v_pk_mul_f32 %s, %s, %s' % (vr(r, 2), vr(r, 2), vr(96 + 2 * rt, 2)))
    a('s_cmp_lt_u32 s24, 4')
    a('s_cbranch_scc1 P3_L1R')
    a('s_sub_u32 s60, s24, 4')
    a('s_mul_i32 s60, s60, 20480')
    a('v_add_u32 v11, s60, v3')
    for T in range(20):
        a('ds_write_b128 v11, %s offset:%d' % (vr(ACC + 4 * T, 4), T * 1024))
    a('s_waitcnt lgkmcnt(0)')
    a('s_barrier')
    a('s_barrier')
    a('s_branch P3_END')
    a.label('P3_L1R')
    a.barrier_hazards()
    a('s_mul_i32 s60, s24, 20480')
    a('v_add_u32 v11, s60, v3')
    a('s_barrier')
    for T in range(20):
        a('ds_read_b128 %s, v11 offset:%d' % (vr(104 + 4 * T, 4), T * 1024))
    a('s_mul_i32 s60, s24, 5120')
    a('s_add_u32 s60, s60, 81920')
    a('v_add_u32 v11, s60, v3')
    a('v_add_u32 v1, 40960, v11')
    a('s_waitcnt lgkmcnt(0)')
    for i in range(0, 80, 2):
        a('v_pk_add_f32 %s, %s, %s' % (vr(ACC + i, 2), vr(ACC + i, 2), vr(104 + i, 2)))
    for rt in range(4):
        a('s_cmp_eq_u32 s24, %d' % rt)
        a('s_cbranch_scc1 P3_SKIPW%d' % rt)
        for ct in range(5):
            a('ds_write_b128 v%d, %s offset:%d' % (11 if rt < 2 else 1, vr(ACC + (rt * 5 + ct) * 4, 4), (rt & 1) * 20480 + ct * 1024))
        a.label('P3_SKIPW%d' % rt)
    for rt in range(4):
        a('s_cmp_lg_u32 s24, %d' % rt)
        a('s_cbranch_scc1 P3_SKIPM%d' % rt)
        for i in range(20):
            a('v_mov_b32 v%d, v%d' % (96 + i, ACC + rt * 20 + i))
        a.label('P3_SKIPM%d' % rt)
    a('s_mul_i32 s60, s24, 20480')
    a('s_add_u32 s60, s60, 81920')
    a('v_add_u32 v11, s60, v3')
    a('s_waitcnt lgkmcnt(0)')
    a('s_barrier')
    stampv(a, 26)
    for k in range(1, 4):
        a('s_add_u32 s61, s24, %d' % k)
        a('s_and_b32 s61, s61, 3')
        a('s_mul_i32 s61, s61, 5120')
        a('v_add_u32 v1, s61, v11')
        for ct in range(5):
            a('ds_read_b128 %s, v1 offset:%d' % (vr(96 + 20 * k + 4 * ct, 4), ct * 1024))
    a('v_mul_u32_u24 v1, 1280, v8')
    a('v_lshl_add_u32 v1, v9, 3, v1')
    a('s_lshl_b32 s60, s32, 6')
    a('s_lshl_b32 s61, s24, 4')
    a('s_add_u32 s60, s60, s61')
    a('s_mul_i32 s60, s60, 1280')
    a('s_mul_i32 s61, s31, 160')
    a('s_add_u32 s60, s60, s61')
    a('s_waitcnt lgkmcnt(0)')
    for k in range(1, 4):
        for i in range(0, 20, 2):
            a('v_pk_add_f32 %s, %s, %s' % (vr(96 + i, 2), vr(96 + i, 2), vr(96 + 20 * k + i, 2)))
    for i in range(10):
        a('v_cvt_pk_bf16_f32 v%d, v%d, v%d' % (16 + i, 96 + 2 * i, 96 + 2 * i + 1))
    for ct in range(5):
        a('buffer_store_dwordx2 %s, v1, s[44:47], s60 offen offset:%d' % (vr(16 + 2 * ct, 2), ct * 32))
    a.label('P3_END')
    stampv(a, 27)


P3_LDS = 81920 + 81920


def main():
    a = Asm()
    hdr = open('cdna_kernels/%s.s.ref' % NAME).read().split('\n')
    head = [l for l in hdr if l.startswith(';') and '@launch' not in l and 'Override launch' not in l
            and 'grid=ceil' not in l][:12]
    lds = max(LDS_TOTAL, P3_LDS, 2 * K2_HEAD)
    assert lds <= 163840, lds
    if FUSED:
        kn = NAME + '_kernel'
        lines = head + ['; @launch grid=(256,1,1) block=(512,1,1) lds=%d' % lds]
        kernel_header(a, kn)
        stampv(a, 0)
        common_prologue(a, 'K_END')
        a('s_mov_b32 s99, %d' % FLG1)
        phase1(a)
        phase2(a)
        phase3(a)
        stampv_flush(a, 0)
        a.label('K_END')
        a('s_endpgm')
        names = [kn]
    else:
        lines = head + [
            '; @launch kernel=k1_kernel grid=(256,1,1) block=(512,1,1) lds=%d' % LDS_TOTAL,
            '; @launch kernel=k2_kernel grid=(256,1,1) block=(512,1,1) lds=%d' % (2 * K2_HEAD),
            '; @launch kernel=k3_kernel grid=(256,1,1) block=(512,1,1) lds=%d' % P3_LDS,
        ]
        names = []
        for i, ph in enumerate((phase1, phase2, phase3)):
            kn = 'k%d_kernel' % (i + 1)
            kernel_header(a, kn)
            stampv(a, 0)
            common_prologue(a, 'K%d_END' % (i + 1))
            ph(a)
            stampv_flush(a, i)
            a.label('K%d_END' % (i + 1))
            a('s_endpgm')
            names.append(kn)
    lines += ['.amdgcn_target "amdgcn-amd-amdhsa--gfx950"', '.text']
    body = a.finish()
    out = '\n'.join(lines) + '\n' + body + '.section .rodata,"a"\n' + ''.join(kernel_desc(n, 256) for n in names)
    args = [x for x in sys.argv[1:] if not x.startswith('-')]
    path = args[0] if args else 'cdna_kernels/%s.s' % NAME
    open(path, 'w').write(out)
    print('wrote', path, len(out), 'bytes; nops inserted:', len(a.nops_inserted))
    if '-v' in sys.argv:
        for t, k in a.nops_inserted:
            if 'lds' not in t:
                print('  nop %d before %s' % (k, t))


if __name__ == "__main__":
    main()
```

```python
import sys, os, struct
sys.path.insert(0, os.path.dirname(os.path.abspath(__file__)))
from asmdsl import Asm

NAME = 'gated_mix__sliding_block__linear_attn_block__prompt'
S, D, H, DH = 2048, 640, 32, 20
DIAG = '--diag' in sys.argv
NOROT = '--rot1' not in sys.argv
GSLEEP = 2
_p = [x for x in sys.argv if x.startswith('--ps=')]
PSLEEP = int(_p[0][5:]) if _p else 1
LQ = '--nolq' not in sys.argv
WOPRE = '--wopre' in sys.argv
STAG = '--nostag' not in sys.argv
LAG = 2
CODEW = '--codew' in sys.argv
PHIL = '--nophil' not in sys.argv
_t = [x for x in sys.argv if x.startswith('--tlb=')]
TLBW = int(_t[0][6:]) if _t else 0
_rot = [x for x in sys.argv if x.startswith('--rot=')]
RA, RM1, RB, RM2 = [int(v) for v in _rot[0][6:].split(',')] if _rot else (1, 7, 3, 3)
NOROT3 = '--rot3' not in sys.argv
PAIR = 4 if '--pair' in sys.argv else 0
EXP1 = '--exp1' in sys.argv
EXP2 = '--exp2' in sys.argv
EXP3 = '--exp3' in sys.argv
FUSED = '--split' not in sys.argv
SC = ' sc1' if FUSED else ''
LC = ' sc1' if (FUSED and '--lsc1' in sys.argv) else ''

QA = 0
KA = QA + H * S * 40
VTA = KA + H * S * 40
PQB = VTA + 640 * S * 2
GG = PQB + H * S * 40
OF = GG + 8192
WOF = OF + S * 1280 * 2
ZR = WOF + 1280 * 640 * 2
FLG1 = ZR
FLG2 = ZR + 1024
FLGV = ZR + 2048
KVA = ZR + 3072
WS_SIZE = 268435456
DIAG_OFF = 32 << 20
SPIN_LIMIT = 1 << 16


def f32(x):
    return '0x%08x' % struct.unpack('<I', struct.pack('<f', x))[0]


LOG2E = 1.4426950408889634
SRD3 = '0x00020000'
WS = 's[36:39]'


def vr(a, n=1):
    return 'v%d' % a if n == 1 else 'v[%d:%d]' % (a, a + n - 1)


def make_srd(a, d, ptr, size):
    a('s_mov_b32 s%d, s%d' % (d, ptr))
    a('s_and_b32 s%d, s%d, 0xffff' % (d + 1, ptr + 1))
    a('s_mov_b32 s%d, %d' % (d + 2, size))
    a('s_mov_b32 s%d, %s' % (d + 3, SRD3))


def make_srd_off(a, d, ptr, off, size):
    a('s_add_u32 s%d, s%d, %d' % (d, ptr, off))
    a('s_addc_u32 s%d, s%d, 0' % (d + 1, ptr + 1))
    a('s_and_b32 s%d, s%d, 0xffff' % (d + 1, d + 1))
    a('s_mov_b32 s%d, %d' % (d + 2, size))
    a('s_mov_b32 s%d, %s' % (d + 3, SRD3))


STV = 255


def stamp_move(a, new):
    global STV
    if DIAG:
        a('v_mov_b32 v%d, v%d' % (new, STV))
        STV = new


def stampv(a, idx, real=False):
    if DIAG:
        a('%s s[100:101]' % ('s_memrealtime' if real else 's_memtime'))
        a('s_waitcnt lgkmcnt(0)')
        a('v_writelane_b32 v%d, s100, %d' % (STV, idx))


def stampv_flush(a, kern):
    if DIAG:
        a('s_mov_b64 exec, -1')
        a('s_lshl_b32 s100, s2, 3')
        a('s_add_u32 s100, s100, s24')
        a('s_lshl_b32 s100, s100, 8')
        a('s_add_u32 s100, s100, %d' % (DIAG_OFF + kern * (1 << 20)))
        a('v_and_b32 v%d, 63, v0' % (STV - 1))
        a('v_lshlrev_b32 v%d, 2, v%d' % (STV - 1, STV - 1))
        a('buffer_store_dword v%d, v%d, %s, s100 offen' % (STV, STV - 1, WS))


def tick0(a):
    if DIAG:
        a('s_memtime s[100:101]')
        a('s_waitcnt lgkmcnt(0)')
        a('s_mov_b32 s96, s100')


def tick1(a, acc):
    if DIAG:
        a('s_memtime s[100:101]')
        a('s_waitcnt lgkmcnt(0)')
        a('s_sub_u32 s96, s100, s96')
        a('s_add_u32 s%d, s%d, s96' % (acc, acc))


def tick_out(a, acc, idx):
    if DIAG:
        a('v_writelane_b32 v%d, s%d, %d' % (STV, acc, idx))


def kernel_header(a, name):
    a.raw('.globl %s' % name)
    a.raw('.p2align 8')
    a.raw('.type %s,@function' % name)
    a.label(name)
    a.barrier_hazards()


def kernel_desc(name, vgpr, sgpr=102, accum=None):
    if accum is None:
        accum = (vgpr + 3) // 4 * 4
    return f'''.p2align 6
.amdhsa_kernel {name}
  .amdhsa_next_free_vgpr {vgpr}
  .amdhsa_next_free_sgpr {sgpr}
  .amdhsa_accum_offset {accum}
  .amdhsa_group_segment_fixed_size 0
  .amdhsa_kernarg_size 80
  .amdhsa_user_sgpr_count 2
  .amdhsa_user_sgpr_kernarg_segment_ptr 1
  .amdhsa_system_sgpr_workgroup_id_x 1
.end_amdhsa_kernel
'''


def common_prologue(a, endlabel):
    a('s_cmp_ge_u32 s2, 256')
    a('s_cbranch_scc1 %s' % endlabel)
    a('s_load_dwordx16 s[4:19], s[0:1], 0')
    a('s_load_dwordx4 s[20:23], s[0:1], 64')
    a('v_lshrrev_b32 v1, 6, v0')
    a('v_and_b32 v2, 63, v0')
    a('v_readfirstlane_b32 s24, v1')
    a('s_mov_b32 s98, 0')
    if DIAG:
        for r_ in (90, 91, 92, 93):
            a('s_mov_b32 s%d, 0' % r_)
    a('s_and_b32 s25, s2, 7')
    a('s_lshr_b32 s26, s2, 3')
    a('s_and_b32 s27, s25, 3')
    a('s_lshl_b32 s27, s27, 2')
    a('s_and_b32 s28, s26, 3')
    a('s_add_u32 s27, s27, s28')
    a('s_lshr_b32 s28, s25, 2')
    a('s_lshl_b32 s28, s28, 3')
    a('s_lshr_b32 s29, s26, 2')
    a('s_add_u32 s28, s28, s29')
    a('s_lshr_b32 s29, s27, 3')
    a('s_and_b32 s30, s27, 7')
    a('s_and_b32 s3, s26, %d' % (3 & RM2))
    a('s_mul_i32 s3, s3, %d' % RB)
    a('s_lshr_b32 s26, s26, 2')
    a('s_and_b32 s26, s26, %d' % RM1)
    a('s_mul_i32 s26, s26, %d' % RA)
    a('s_add_u32 s3, s3, s26')
    for _ in range(3):
        a('s_cmp_ge_u32 s3, 10')
        a('s_cselect_b32 s26, 10, 0')
        a('s_sub_u32 s3, s3, s26')
    if NOROT:
        a('s_mov_b32 s3, 0')


uid = [0]


def poll_loop(a, load_instr, nregs, freg, cond_regs_ok):
    uid[0] += 1
    L = 'POLL%d' % uid[0]
    a('s_mov_b32 s98, 0')
    a.label(L)
    a(load_instr)
    a('s_waitcnt vmcnt(0)')
    cond_regs_ok()
    a('s_cbranch_scc1 %s_OK' % L)
    a('s_sleep %d' % PSLEEP)
    a('s_add_u32 s98, s98, 1')
    a('s_cmp_lt_u32 s98, %d' % SPIN_LIMIT)
    a('s_cbranch_scc1 %s' % L)
    a.label(L + '_OK')


SLOT = 47104
WOFFS = 16384
L_GATE = 3 * SLOT
L_WOSCR = L_GATE + 2048
L_FLAGS = L_WOSCR + 8192
LDS_TOTAL = L_FLAGS + 64
ST_Q = 0
ST_K = 20480
ST_V = 40960
VPITCH = 272
ST_FR = 65536
ST_KV = ST_FR + 40960


def phase1(a):
    a('s_cmp_ge_u32 s24, 4')
    a('s_cbranch_scc0 P1_CONS')
    a('s_sub_u32 s31, s24, 4')
    a('v_lshrrev_b32 v3, 3, v2')
    a('v_and_b32 v4, 7, v2')
    a('v_lshrrev_b32 v5, 1, v3')
    a('v_xor_b32 v4, v4, v5')
    a('v_lshlrev_b32 v4, 4, v4')
    a('v_mul_u32_u24 v3, 1280, v3')
    a('v_add_u32 v10, v3, v4')
    a('v_xor_b32 v11, 64, v10')
    a('v_add_u32 v11, 10240, v11')
    a('v_add_u32 v12, 20480, v10')
    a('v_add_u32 v13, 20480, v11')
    a('v_cmp_lt_u32 vcc, 29, v2')
    a('s_lshl_b32 s32, s28, 7')
    a('s_lshl_b32 s33, s31, 5')
    a('v_cndmask_b32 v3, 0, 1, vcc')
    a('v_mul_u32_u24 v4, 30, v3')
    a('v_sub_u32 v4, v2, v4')
    a('v_mul_u32_u24 v5, 26, v4')
    a('v_lshrrev_b32 v5, 8, v5')
    a('v_mul_u32_u24 v6, 10, v5')
    a('v_sub_u32 v6, v4, v6')
    a('v_mul_u32_u24 v3, 3840, v3')
    a('v_mul_u32_u24 v5, 1280, v5')
    a('v_lshlrev_b32 v6, 4, v6')
    a('v_add3_u32 v14, v3, v5, v6')
    for ii in range(1, 4):
        koff = 2 * (ii & 1) + 8 * (ii >> 1)
        a('v_add_u32 v%d, %d, v14' % (14 + ii, koff * 3840))
    a('v_lshlrev_b32 v23, 4, v2')
    a('s_add_u32 s32, s32, s33')
    a('s_mul_i32 s32, s32, 1280')
    a('s_and_b32 s33, s31, 1')
    a('s_lshl_b32 s33, s33, 2')
    a('s_lshr_b32 s34, s31, 1')
    a('s_lshl_b32 s34, s34, 4')
    a('s_add_u32 s33, s33, s34')
    a('s_mul_i32 s33, s33, 3840')
    a('s_mul_i32 s34, s30, 160')
    a('s_add_u32 s33, s33, s34')
    a('s_lshl_b32 s34, s31, 12')
    a('s_mul_i32 s35, s31, 3840')
    a('s_add_u32 s35, s35, %d' % WOFFS)
    a('s_mov_b32 s48, -1')
    a('s_mov_b32 s49, 0x0fffffff')
    a('s_lshl_b32 s50, s31, 2')
    a('s_add_u32 s50, s50, %d' % L_FLAGS)
    a('v_mov_b32 v20, s50')
    a('v_mov_b32 v21, %d' % (L_FLAGS + 16))
    a('s_mov_b32 s52, 0')
    a('s_lshl_b32 s56, s3, 7')
    a('s_add_u32 s32, s32, s56')
    a('s_mul_i32 s56, s3, %d' % (64 * 3840))
    a('s_add_u32 s33, s33, s56')
    a('s_sub_u32 s54, 10, s3')
    a('s_lshl_b32 s55, s54, 1')
    a('s_waitcnt lgkmcnt(0)')
    make_srd(a, 40, 4, S * D * 2)
    a('s_cmp_eq_u32 s29, 0')
    a('s_cselect_b32 s44, s6, s12')
    a('s_cselect_b32 s45, s7, s13')
    a('s_and_b32 s45, s45, 0xffff')
    a('s_mov_b32 s46, %d' % (D * 3 * D * 2))
    a('s_mov_b32 s47, %s' % SRD3)

    def grp_x():
        a('s_add_u32 s51, s50, s34')
        for ii in range(4):
            a('s_add_u32 m0, s51, %d' % (ii * 1024))
            if not EXP2:
                a('buffer_load_dwordx4 v%d, s[40:43], s32 offen lds' % (10 + ii))
        a('s_add_u32 s32, s32, 128')
        a('s_sub_u32 s54, s54, 1')
        a('s_cmp_eq_u32 s54, 0')
        a('s_cselect_b32 s56, 1280, 0')
        a('s_sub_u32 s32, s32, s56')
        a('s_add_u32 s52, s52, 4')

    def grp_w(u):
        a('s_add_u32 s51, s50, s35')
        a('s_mov_b64 exec, s[48:49]')
        for ii in range(4):
            a('s_add_u32 m0, s51, %d' % (u * 15360 + ii * 960))
            if not EXP2:
                a('buffer_load_dwordx4 v%d, s[44:47], s33 offen lds' % (14 + ii))
        a('s_mov_b64 exec, -1')
        a('s_add_u32 s33, s33, %d' % (32 * 3840))
        a('s_sub_u32 s55, s55, 1')
        a('s_cmp_eq_u32 s55, 0')
        a('s_cselect_b32 s56, %d, 0' % (640 * 3840))
        a('s_sub_u32 s33, s33, s56')
        a('s_add_u32 s52, s52, 4')

    def publish():
        a('s_getreg_b32 s56, hwreg(HW_REG_IB_STS)')
        a('s_lshr_b32 s57, s56, 18')
        a('s_and_b32 s57, s57, 0x30')
        a('s_and_b32 s56, s56, 15')
        a('s_or_b32 s56, s56, s57')
        a('s_sub_i32 s56, s52, s56')
        a('s_max_i32 s56, s56, 0')
        a('s_lshr_b32 s56, s56, 2')
        a('v_mov_b32 v22, s56')
        a('ds_write_b32 v20, v22')

    def gate(tag, need):
        a.label(tag + '_T')
        a('ds_read_b128 v[24:27], v21')
        a('s_waitcnt lgkmcnt(0)')
        a('v_min3_u32 v24, v24, v25, v26')
        a('v_min_u32 v24, v24, v27')
        a('v_readfirstlane_b32 s58, v24')
        a('s_cmp_ge_i32 s58, %s' % need)
        a('s_cbranch_scc1 %s' % tag)
        publish()
        a('s_sleep %d' % GSLEEP)
        a('s_add_u32 s98, s98, 1')
        a('s_cmp_gt_u32 s98, %d' % (SPIN_LIMIT * 8))
        a('s_cbranch_scc0 %s_T' % tag)
        a.label(tag)

    a('s_cmp_lg_u32 s31, 0')
    a('s_cbranch_scc1 P1_L_NOGATE')
    make_srd(a, 60, 16, 1280)
    a('s_mov_b32 m0, %d' % L_GATE)
    a('s_mov_b32 s59, 1024')
    a('buffer_load_dwordx4 v23, s[60:63], 0 offen lds')
    a('s_mov_b32 m0, %d' % (L_GATE + 1024))
    a('buffer_load_dwordx4 v23, s[60:63], s59 offen lds')
    a.label('P1_L_NOGATE')
    a('s_mov_b32 s50, 0')
    grp_x()
    grp_w(0)
    make_srd(a, 36, 22, WS_SIZE)
    stampv(a, 1)
    a('s_barrier')
    grp_w(1)
    publish()
    a('s_mov_b32 s50, %d' % SLOT)
    a('s_mov_b32 s53, -3')
    a.label('P1_L_LOOP')
    gate('P1_L_G1', 's53')
    grp_w(0)
    publish()
    a('s_add_u32 s53, s53, 1')
    gate('P1_L_G2', 's53')
    grp_x()
    publish()
    grp_w(1)
    publish()
    a('s_add_u32 s53, s53, 1')
    a('s_add_u32 s50, s50, %d' % SLOT)
    a('s_cmp_eq_u32 s50, %d' % (3 * SLOT))
    a('s_cselect_b32 s50, 0, s50')
    a('s_cmp_lt_i32 s53, 15')
    a('s_cbranch_scc1 P1_L_LOOP')
    for n_ in (12, 8, 4, 0):
        a('s_waitcnt vmcnt(%d)' % n_)
        publish()
    stampv(a, 3)
    a('s_cmp_lg_u32 s31, 0')
    a('s_cbranch_scc1 P1_L_NOZ')
    make_srd(a, 52, 20, 256)
    a('v_mov_b32 v24, 0')

    def zok():
        a('v_readfirstlane_b32 s57, v25')
        a('s_cmp_ge_u32 s57, 32')
    poll_loop(a, 'buffer_load_dword v25, v24, s[52:55], 0 offen sc1', 1, 25, zok)
    a.label('P1_L_NOZ')
    stampv(a, 4)
    a('s_barrier')
    a('s_branch P1_STORE')

    a.label('P1_CONS')
    a.barrier_hazards()
    F0, F1, ACC = 16, 64, 112
    FL = 240
    a('s_lshr_b32 s31, s24, 1')
    a('s_and_b32 s32, s24, 1')
    a('v_and_b32 v3, 15, v2')
    a('v_lshrrev_b32 v4, 4, v2')
    a('v_bfe_u32 v5, v2, 2, 2')
    a('v_and_b32 v6, 3, v2')
    a('v_mov_b32 v244, %d' % L_FLAGS)
    a('v_mov_b32 v16, 0')
    a('v_mov_b32 v17, 0')
    a('v_mov_b32 v18, 0')
    a('v_mov_b32 v19, 0')
    a('ds_write_b128 v244, v[16:19]')
    a('ds_write_b128 v244, v[16:19] offset:16')
    a('v_lshlrev_b32 v246, 4, v2')
    a('s_mul_i32 s40, s2, 52429')
    a('s_lshr_b32 s40, s40, 18')
    a('s_mul_i32 s41, s40, 5')
    a('s_sub_u32 s41, s2, s41')
    a('v_lshrrev_b32 v7, 2, v2')
    a('v_mul_u32_u24 v7, 1280, v7')
    a('v_lshl_add_u32 v247, v6, 4, v7')
    a('s_lshl_b32 s42, s24, 11')
    a('s_add_u32 s42, s42, %d' % L_WOSCR)
    a('s_waitcnt lgkmcnt(0)')
    make_srd(a, 36, 22, WS_SIZE)
    a('s_cmp_ge_u32 s2, 8')
    a('s_cbranch_scc1 P1_C_NOZ')
    a('s_lshl_b32 s43, s2, 2')
    a('s_add_u32 s43, s43, s24')
    a('s_lshl_b32 s43, s43, 11')
    a('s_add_u32 s43, s43, %d' % ZR)
    a('buffer_store_dwordx4 v[16:19], v246, %s, s43 offen sc1' % WS)
    a('buffer_store_dwordx4 v[16:19], v246, %s, s43 offen offset:1024 sc1' % WS)
    a.label('P1_C_NOZ')
    a('s_cmp_ge_u32 s2, 200')
    a('s_cbranch_scc1 P1_C_NOWO')
    a('s_cmp_lt_u32 s40, 20')
    a('s_cselect_b32 s52, s8, s14')
    a('s_cselect_b32 s53, s9, s15')
    a('s_cselect_b32 s57, 0, 20')
    a('s_and_b32 s53, s53, 0xffff')
    a('s_mov_b32 s54, %d' % (D * D * 2))
    a('s_mov_b32 s55, %s' % SRD3)
    a('s_sub_u32 s57, s40, s57')
    a('s_mul_i32 s57, s57, %d' % (32 * 1280))
    a('s_lshl_b32 s56, s41, 8')
    a('s_add_u32 s57, s57, s56')
    a('s_lshl_b32 s56, s24, 6')
    a('s_add_u32 s57, s57, s56')
    a('s_mov_b32 m0, s42')
    a('s_add_u32 s56, s57, %d' % (16 * 1280))
    a('buffer_load_dwordx4 v247, s[52:55], s57 offen lds')
    a('s_add_u32 m0, s42, 1024')
    a('buffer_load_dwordx4 v247, s[52:55], s56 offen lds')
    a.label('P1_C_NOWO')
    if CODEW:
        a('s_cmp_lg_u32 s24, 2')
        a('s_cbranch_scc1 P1_C_NOCW')
        a('s_getpc_b64 s[44:45]')
        a.label('P1_C_PC')
        a('s_lshr_b32 s46, s2, 3')
        a('s_lshl_b32 s46, s46, 7')
        a('v_lshlrev_b32 v7, 12, v2')
        a('v_add_u32 v7, s46, v7')
        a('v_cmp_gt_u32 vcc, (KCODE_END - P1_C_PC - 4), v7')
        a('v_mov_b32 v9, s45')
        a('v_add_co_u32 v8, s[46:47], s44, v7')
        a('v_addc_co_u32 v9, s[46:47], 0, v9, s[46:47]')
        a('s_and_saveexec_b64 s[46:47], vcc')
        a('global_load_dword v248, v[8:9], off')
        a('s_mov_b64 exec, s[46:47]')
        a.label('P1_C_NOCW')
    if TLBW:
        a('v_lshlrev_b32 v7, %d, v2' % TLBW)
        a('s_cmp_lg_u32 s24, 3')
        a('s_cbranch_scc1 P1_C_NOTLB')
        make_srd(a, 44, 22, ZR + 65536)
        make_srd(a, 48, 18, S * D * 2)
        a('buffer_load_dword v248, v7, s[44:47], 0 offen')
        a('buffer_load_dword v249, v7, s[48:51], 0 offen')
        a.label('P1_C_NOTLB')
    a('s_barrier')
    a('v_lshrrev_b32 v7, 1, v3')
    a('v_xor_b32 v7, v4, v7')
    a('v_lshlrev_b32 v7, 4, v7')
    a('v_lshl_add_u32 v8, v3, 7, v7')
    a('s_lshl_b32 s33, s31, 13')
    a('v_add_u32 v8, s33, v8')
    a('v_xor_b32 v9, 64, v8')
    a('v_lshrrev_b32 v7, 1, v4')
    a('v_lshlrev_b32 v7, 4, v7')
    a('v_and_b32 v1, 1, v4')
    a('v_lshl_add_u32 v7, v1, 2, v7')
    a('v_add_u32 v7, v7, v5')
    a('v_mul_u32_u24 v7, 480, v7')
    a('v_add_u32 v7, %d, v7' % WOFFS)
    a('v_mul_u32_u24 v1, 40, v6')
    a('v_add_u32 v10, v7, v1')
    a('v_lshl_add_u32 v11, v6, 3, v7')
    a('v_lshlrev_b32 v7, 4, v4')
    a('v_add_u32 v7, %d, v7' % L_GATE)
    a('s_lshl_b32 s33, s3, 7')
    a('v_add_u32 v7, s33, v7')
    a('s_sub_u32 s43, 10, s3')
    a('s_mov_b32 s45, 128')
    for r in range(128):
        a('v_mov_b32 v%d, 0' % (ACC + r))
    for i in range(4):
        a('v_mov_b32 v%d, v%d' % (12 + i, 8 + i))
    a('s_lshl_b32 s33, s24, 2')
    a('s_add_u32 s33, s33, %d' % (L_FLAGS + 16))
    a('v_mov_b32 v245, s33')
    a('s_mov_b32 s34, 0')
    a('s_mov_b32 s35, 1')
    a('v_lshlrev_b32 v1, 9, v4')
    a('v_lshl_add_u32 v1, v5, 6, v1')
    a('v_lshl_add_u32 v1, v6, 3, v1')
    a('v_add_u32 v1, s42, v1')
    stampv(a, 1)
    a('s_waitcnt vmcnt(0)')
    stampv(a, 2)
    a('s_cmp_ge_u32 s2, 8')
    a('s_cbranch_scc1 P1_C_NOZ2')
    make_srd(a, 52, 20, 256)
    a('v_mov_b32 v16, 1')
    a('v_mov_b32 v17, 0')
    a('s_mov_b64 exec, 1')
    a('buffer_atomic_add v16, v17, s[52:55], 0 offen sc1')
    a('s_mov_b64 exec, -1')
    a.label('P1_C_NOZ2')
    a('s_cmp_ge_u32 s2, 200')
    a('s_cbranch_scc1 P1_C_NOWO2')
    for tt in range(2):
        for j4 in range(2):
            a('ds_read_b64_tr_b16 v[%d:%d], v1 offset:%d' % (64 + tt * 4 + j4 * 2, 65 + tt * 4 + j4 * 2, j4 * 256 + tt * 32))
    a('s_lshl_b32 s57, s41, 3')
    a('s_lshl_b32 s58, s24, 1')
    a('s_add_u32 s57, s57, s58')
    a('s_mul_i32 s57, s57, 40')
    a('s_add_u32 s57, s57, s40')
    a('s_lshl_b32 s57, s57, 10')
    a('s_add_u32 s57, s57, %d' % WOF)
    a('s_add_u32 s58, s57, %d' % (40 * 1024))
    a('s_waitcnt lgkmcnt(0)')
    a('buffer_store_dwordx4 v[64:67], v246, %s, s57 offen%s' % (WS, SC))
    a('buffer_store_dwordx4 v[68:71], v246, %s, s58 offen%s' % (WS, SC))
    a.label('P1_C_NOWO2')
    a.label('P1_C_W0')
    a('ds_read_b128 %s, v244' % vr(FL, 4))
    a('s_waitcnt lgkmcnt(0)')
    a('v_min3_u32 v1, v%d, v%d, v%d' % (FL, FL + 1, FL + 2))
    a('v_min_u32 v1, v1, v%d' % (FL + 3))
    a('v_readfirstlane_b32 s40, v1')
    a('s_add_u32 s98, s98, 1')
    a('s_cmp_gt_u32 s98, %d' % (SPIN_LIMIT * 8))
    a('s_cbranch_scc1 P1_C_W0X')
    a('s_cmp_lt_u32 s40, 2')
    a('s_cbranch_scc1 P1_C_W0')
    a.label('P1_C_W0X')
    stampv(a, 3)
    a('s_setprio 2')
    a('s_lshl_b32 s40, s29, 1')
    a('s_add_u32 s40, s40, s32')
    a('s_cmp_eq_u32 s40, 1')
    a('s_cbranch_scc1 P1_V1')
    a('s_cmp_eq_u32 s40, 2')
    a('s_cbranch_scc1 P1_V2')
    a('s_cmp_eq_u32 s40, 3')
    a('s_cbranch_scc1 P1_V3')

    def tl_p1(sec, ct):
        return ('w', sec, ct, 'A', 8 * ct, 'WX')

    def tl_p2(sec, ct):
        return ('w', sec, ct, 'B', 32 * ct, 'XW')

    def tl_p3(sec, ct):
        return ('w', sec, ct, 'B', 40 * ct, 'XW') if ct < 4 else ('w', sec, ct, 'A', 32, 'XW')

    variants = [
        [tl_p1(0, c) for c in range(5)] + [tl_p1(1, c) for c in range(3)],
        [tl_p1(1, 3), tl_p1(1, 4)] + [tl_p2(2, c) for c in range(5)] + [('gate',)],
        [tl_p1(0, c) for c in range(5)] + [tl_p3(1, c) for c in range(3)],
        [tl_p3(1, 3), tl_p3(1, 4)] + [tl_p3(2, c) for c in range(5)],
    ]

    def reads(tiles, F, u):
        L = []
        for rt in range(4):
            L.append('ds_read_b128 %s, v%d offset:%d' % (vr(F + 4 * rt, 4), 12 + u, rt * 2048))
        for t, tile in enumerate(tiles):
            b = F + 16 + 4 * t
            if tile[0] == 'gate':
                L.append('ds_read_b128 %s, v7 offset:%d' % (vr(b, 4), u * 64))
            else:
                _, sec, ct, pat, tcol, _o = tile
                for j4 in range(2):
                    off = (32 * u + 8 * j4) * 480 + sec * 160 + tcol
                    L.append('ds_read_b64_tr_b16 %s, v%d offset:%d' % (vr(b + 2 * j4, 2), 14 if pat == 'A' else 15, off))
        return L

    def mfmas(tiles, F):
        L = []
        for t, tile in enumerate(tiles):
            for rt in range(4):
                acc = vr(ACC + (t * 4 + rt) * 4, 4)
                xf = vr(F + 4 * rt, 4)
                wf = vr(F + 16 + 4 * t, 4)
                o = 'WX' if tile[0] == 'gate' else tile[5]
                if o == 'WX':
                    L.append('v_mfma_f32_16x16x32_bf16 %s, %s, %s, %s' % (acc, wf, xf, acc))
                else:
                    L.append('v_mfma_f32_16x16x32_bf16 %s, %s, %s, %s' % (acc, xf, wf, acc))
        return L

    spins = []

    def half(tiles, Fc, Fn, un, tag, pre=()):
        ms = mfmas(tiles, Fc)
        rs = reads(tiles, Fn, un)
        if EXP1:
            ms = ['s_nop 0'] * len(ms)
        if EXP1 or EXP3:
            rs = []
        rs = rs + ['ds_read_b128 %s, v244' % vr(FL, 4)]
        a(ms[0])
        a('v_min3_u32 v1, v%d, v%d, v%d' % (FL, FL + 1, FL + 2))
        a('v_min_u32 v1, v1, v%d' % (FL + 3))
        a(ms[1])
        a('v_readfirstlane_b32 s40, v1')
        for p in pre:
            a(p)
        a(ms[2])
        a('s_cmp_lt_u32 s40, s35')
        a('s_cbranch_scc1 %s_SPIN' % tag)
        a.label(tag + '_GO')
        spins.append(tag)
        i = 0
        if len(rs) > 8:
            rs = [rs[0], rs[4], rs[1], rs[5], rs[2], rs[6], rs[3], rs[7]] + rs[8:]
        for n_, m in enumerate(ms[3:]):
            for _ in range(2 if n_ < PAIR else 1):
                if i < len(rs):
                    a(rs[i])
                    i += 1
            a(m)
        while i < len(rs):
            a(rs[i])
            i += 1
        a('v_mov_b32 v1, s41')
        a('s_add_u32 s41, s41, 1')
        a('s_add_u32 s35, s35, %d' % (2 if un == 1 else 1))
        a('s_min_u32 s35, s35, 30')
        a('s_waitcnt lgkmcnt(0)')
        a('ds_write_b32 v245, v1')

    def accr(t, rt, r=0):
        return ACC + (t * 4 + rt) * 4 + r

    def phi_many(regs, tmpbase):
        for i in range(0, len(regs), 8):
            grp = regs[i:i + 8]
            for j in range(0, len(grp), 2):
                a('v_pk_mul_f32 %s, %s, s[60:61]' % (vr(tmpbase + j, 2), vr(grp[j], 2)))
            for j, r in enumerate(grp):
                a('v_exp_f32 v%d, v%d' % (tmpbase + j, tmpbase + j))
            for j in range(0, len(grp), 2):
                a('v_pk_add_f32 %s, %s, s[62:63]' % (vr(grp[j], 2), vr(grp[j], 2)))
            for j, r in enumerate(grp):
                a('v_med3_f32 v%d, v%d, v%d, 1.0' % (r, tmpbase + j, r))
            for j in range(0, len(grp), 2):
                a('v_pk_add_f32 %s, %s, s[64:65]' % (vr(grp[j], 2), vr(grp[j], 2)))

    def stage_rowmajor(tile_ids, dim0, region):
        k = 0
        for rt in range(4):
            for idx, t in enumerate(tile_ids):
                st = 16 + (k & 7) * 2
                k += 1
                a('v_cvt_pk_bf16_f32 v%d, v%d, v%d' % (st, accr(t, rt, 0), accr(t, rt, 1)))
                a('v_cvt_pk_bf16_f32 v%d, v%d, v%d' % (st + 1, accr(t, rt, 2), accr(t, rt, 3)))
                a('ds_write_b64 v1, %s offset:%d' % (vr(st, 2), region + rt * 640 + dim0 * 2 + idx * 8))

    for vi, tiles in enumerate(variants):
        br, ni = vi >> 1, vi & 1
        a.label('P1_V%d' % vi)
        a.barrier_hazards()
        for r in reads(tiles, F0, 0):
            a(r)
        a('ds_read_b128 %s, v244' % vr(FL, 4))
        a('s_mov_b32 s35, 3')
        a('s_mov_b32 s41, 2')
        a('v_mov_b32 v1, 1')
        a('s_mov_b32 s33, 0')
        a('s_waitcnt lgkmcnt(0)')
        a('ds_write_b32 v245, v1')
        a.label('P1_V%d_LOOP' % vi)
        half(tiles, F0, F1, 1, 'P1_V%d_A' % vi)
        pre = ['s_add_u32 s34, s34, %d' % SLOT, 's_cmp_eq_u32 s34, %d' % (3 * SLOT), 's_cselect_b32 s34, 0, s34']
        pre += ['v_add_u32 v%d, s34, v%d' % (12 + i, 8 + i) for i in range(4)]
        if tiles[-1][0] == 'gate':
            pre += ['s_sub_u32 s43, s43, 1', 's_cmp_eq_u32 s43, 0', 's_cselect_b32 s44, %d, s45' % (128 - 1280),
                    'v_add_u32 v7, s44, v7']
        half(tiles, F1, F0, 0, 'P1_V%d_B' % vi, pre)
        a('s_add_u32 s33, s33, 1')
        a('s_cmp_lt_u32 s33, 10')
        a('s_cbranch_scc1 P1_V%d_LOOP' % vi)
        a('s_setprio 0')
        stampv(a, 4)
        tick_out(a, 90, 40)
        tick_out(a, 98, 41)
        a('s_lshl_b32 s40, s31, 6')
        a('v_lshl_add_u32 v1, v4, 7, v3')
        a('v_add_u32 v1, s40, v1')
        a('v_mul_u32_u24 v1, 40, v1')
        if br == 1:
            a('s_mov_b32 s60, %s' % f32(LOG2E))
            a('s_mov_b32 s61, %s' % f32(LOG2E))
            a('s_mov_b32 s62, 1.0')
            a('s_mov_b32 s63, 1.0')
            a('s_mov_b32 s64, %s' % f32(1e-6))
            a('s_mov_b32 s65, %s' % f32(1e-6))
            tl = ([5, 6, 7] if PHIL else list(range(8))) if ni == 0 else [0, 1]
            phi_many([accr(t, rt, r) for t in tl for rt in range(4) for r in range(4)], 64)
        stampv(a, 5)
        a('s_waitcnt lgkmcnt(0)')
        a('s_barrier')
        stampv(a, 6)
        if vi == 0:
            stage_rowmajor([5, 6, 7], 0, ST_K)
            stage_rowmajor([0, 1, 2, 3, 4], 0, ST_Q)
        elif vi == 1:
            stage_rowmajor([0, 1], 12, ST_K)
            a('v_mul_u32_u24 v1, %d, v3' % VPITCH)
            a('v_lshl_add_u32 v1, v4, 4, v1')
            a('s_lshl_b32 s40, s31, 7')
            a('v_add_u32 v1, s40, v1')
            for ct in range(5):
                t = 2 + ct
                for rp in range(2):
                    st = 32 + ((ct * 2 + rp) & 3) * 4
                    for h2 in range(2):
                        rt = rp * 2 + h2
                        a('v_cvt_pk_bf16_f32 v%d, v%d, v%d' % (st + 2 * h2, accr(t, rt, 0), accr(t, rt, 1)))
                        a('v_cvt_pk_bf16_f32 v%d, v%d, v%d' % (st + 2 * h2 + 1, accr(t, rt, 2), accr(t, rt, 3)))
                    a('ds_write_b128 v1, %s offset:%d' % (vr(st, 4), ST_V + ct * 16 * VPITCH + rp * 64))
            a('s_cmp_lg_u32 s30, 0')
            a('s_cbranch_scc1 P1_NOGATE_ST')
            a('v_lshlrev_b32 v1, 2, v3')
            a('s_lshl_b32 s40, s28, 9')
            a('s_lshl_b32 s41, s31, 8')
            a('s_add_u32 s40, s40, s41')
            a('s_add_u32 s40, s40, %d' % GG)
            a('s_mov_b32 s60, %s' % f32(-LOG2E))
            for rt in range(4):
                a('v_mul_f32 v%d, s60, v%d' % (accr(7, rt), accr(7, rt)))
            for rt in range(4):
                a('v_exp_f32 v%d, v%d' % (accr(7, rt), accr(7, rt)))
            for rt in range(4):
                a('v_add_f32 v%d, 1.0, v%d' % (accr(7, rt), accr(7, rt)))
            for rt in range(4):
                a('v_rcp_f32 v%d, v%d' % (accr(7, rt), accr(7, rt)))
            a('s_mov_b64 exec, 0xffff')
            for rt in range(4):
                a('buffer_store_dword v%d, v1, %s, s40 offen offset:%d%s' % (accr(7, rt, 0), WS, rt * 64, SC))
            a('s_mov_b64 exec, -1')
            a.label('P1_NOGATE_ST')
        else:
            if ni == 0:
                fr = [(5, 0), (6, 1), (7, 2)]
            else:
                fr = [(0, 3), (1, 4)] + [(2 + c, 5 + c) for c in range(5)]
            a('s_lshl_b32 s40, s31, 11')
            a('s_add_u32 s40, s40, %d' % ST_FR)
            a('v_add_u32 v7, s40, v246')
            for n_, (t, T) in enumerate(fr):
                for rp in range(2):
                    st = 80 + ((n_ * 2 + rp) & 3) * 4
                    for h2 in range(2):
                        rt = rp * 2 + h2
                        a('v_cvt_pk_bf16_f32 v%d, v%d, v%d' % (st + 2 * h2, accr(t, rt, 0), accr(t, rt, 1)))
                        a('v_cvt_pk_bf16_f32 v%d, v%d, v%d' % (st + 2 * h2 + 1, accr(t, rt, 2), accr(t, rt, 3)))
                    a('ds_write_b128 v7, %s offset:%d' % (vr(st, 4), T * 4096 + rp * 1024))
            if ni == 0:
                stage_rowmajor([0, 1, 2, 3, 4], 0, ST_Q)
        a('s_branch P1_STORE')
    for tag in spins:
        a.label(tag + '_SPIN')
        a.barrier_hazards()
        tick0(a)
        a('ds_read_b128 %s, v244' % vr(FL, 4))
        a('s_waitcnt lgkmcnt(0)')
        a('v_min3_u32 v1, v%d, v%d, v%d' % (FL, FL + 1, FL + 2))
        a('v_min_u32 v1, v1, v%d' % (FL + 3))
        a('v_readfirstlane_b32 s40, v1')
        tick1(a, 90)
        a('s_add_u32 s98, s98, 1')
        a('s_cmp_gt_u32 s98, %d' % (SPIN_LIMIT * 8))
        a('s_cbranch_scc1 %s_GO' % tag)
        a('s_cmp_lt_u32 s40, s35')
        a('s_cbranch_scc1 %s_SPIN' % tag)
        a('s_branch %s_GO' % tag)

    a.label('P1_STORE')
    a.barrier_hazards()
    a('v_lshlrev_b32 v1, 4, v2')
    a('s_waitcnt lgkmcnt(0)')
    a('s_barrier')
    stampv(a, 7)
    a('s_cmp_eq_u32 s29, 1')
    a('s_cbranch_scc1 P1_ST_B')
    a('s_lshl_b32 s40, s30, 13')
    a('s_lshl_b32 s41, s28, 7')
    a('s_add_u32 s40, s40, s41')
    a('s_mul_i32 s40, s40, 40')

    def piece_rowmajor(wreg, lds_region, gregion, rbase, tag):
        for i in range(3):
            if i == 2:
                a('s_cmp_ge_u32 %s, 4' % wreg)
                a('s_cbranch_scc1 %s' % tag)
            a('s_add_u32 s41, %s, %d' % (wreg, 8 * i))
            a('s_lshl_b32 s42, s41, 10')
            a('v_add_u32 v3, s42, v1')
            a('ds_read_b128 %s, v3 offset:%d' % (vr(rbase + 4 * i, 4), lds_region))
            a('s_mul_i32 s43, s41, 52429')
            a('s_lshr_b32 s43, s43, 18')
            a('s_mul_i32 s43, s43, %d' % (2048 * 40 - 5120))
            a('s_add_u32 s43, s43, s42')
            a('s_add_u32 s43, s43, s40')
            a('s_add_u32 s%d, s43, %d' % (44 + i, gregion))
            a('s_waitcnt lgkmcnt(0)')
            a('buffer_store_dwordx4 %s, v1, %s, s%d offen%s' % (vr(rbase + 4 * i, 4), WS, 44 + i, SC))
        a.label(tag)

    def piece_q(wreg, p0, rbase, tag):
        for i in range(2):
            if i == 1:
                a('s_cmp_ge_u32 %s, 2' % wreg)
                a('s_cbranch_scc1 %s' % tag)
            a('s_add_u32 s41, %s, %d' % (wreg, p0 + 8 * i))
            a('s_lshl_b32 s42, s41, 10')
            a('v_add_u32 v3, s42, v1')
            a('ds_read_b128 %s, v3 offset:%d' % (vr(rbase + 4 * i, 4), ST_Q))
            a('s_mul_i32 s43, s41, 52429')
            a('s_lshr_b32 s43, s43, 18')
            a('s_mul_i32 s43, s43, %d' % (2048 * 40 - 5120))
            a('s_add_u32 s43, s43, s42')
            a('s_add_u32 s43, s43, s40')
            a('s_add_u32 s%d, s43, %d' % (49 + i, QA))
            a('s_waitcnt lgkmcnt(0)')
            a('buffer_store_dwordx4 %s, v1, %s, s%d offen%s' % (vr(rbase + 4 * i, 4), WS, 49 + i, SC))
        a.label(tag)

    def batch2():
        a('v_lshrrev_b32 v4, 4, v2')
        a('v_and_b32 v5, 15, v2')
        a('v_mul_u32_u24 v6, %d, v4' % VPITCH)
        a('v_lshl_add_u32 v6, v5, 4, v6')
        a('v_lshlrev_b32 v7, 12, v4')
        a('v_lshl_add_u32 v7, v5, 4, v7')
        a('s_mul_i32 s47, s30, %d' % (80 * 4096))
        a('s_lshl_b32 s41, s28, 8')
        a('s_add_u32 s47, s47, s41')
        a('s_add_u32 s47, s47, %d' % VTA)
        for i in range(3):
            if i == 2:
                a('s_cmp_ge_u32 s24, 4')
                a('s_cbranch_scc1 P1_SV')
            a('s_add_u32 s41, s24, %d' % (8 * i))
            a('s_mul_i32 s42, s41, %d' % (4 * VPITCH))
            a('v_add_u32 v3, s42, v6')
            a('ds_read_b128 %s, v3 offset:%d' % (vr(36 + 4 * i, 4), ST_V))
            a('s_lshl_b32 s43, s41, 14')
            a('s_add_u32 s%d, s43, s47' % (44 + i))
            a('s_waitcnt lgkmcnt(0)')
            a('buffer_store_dwordx4 %s, v7, %s, s%d offen%s' % (vr(36 + 4 * i, 4), WS, 44 + i, SC))
        a.label('P1_SV')
        if not (FUSED and LQ):
            piece_q('s48', 0, 48, 'P1_SQ01')

    piece_rowmajor('s24', ST_K, KA, 16, 'P1_SK')
    a('s_add_u32 s48, s24, 4')
    a('s_and_b32 s48, s48, 7')
    piece_q('s48', 10, 28, 'P1_SQ23')
    a('s_branch P1_DONE')

    a.label('P1_ST_B')
    a.barrier_hazards()
    a('s_cmp_lt_u32 s24, 4')
    a('s_cbranch_scc1 P1_KV')
    a('s_sub_u32 s41, s24, 4')
    a('s_mul_i32 s42, s41, 5120')
    a('v_add_u32 v3, s42, v1')
    for i in range(5):
        a('ds_read_b128 %s, v3 offset:%d' % (vr(16 + 4 * i, 4), ST_Q + 1024 * i))
    a('s_lshl_b32 s40, s30, 2')
    a('s_add_u32 s40, s40, s41')
    a('s_lshl_b32 s40, s40, 11')
    a('s_lshl_b32 s41, s28, 7')
    a('s_add_u32 s40, s40, s41')
    a('s_mul_i32 s40, s40, 40')
    a('s_add_u32 s40, s40, %d' % PQB)
    a('s_add_u32 s41, s40, 4096')
    if PHIL:
        a('s_mov_b32 s60, %s' % f32(LOG2E))
        a('s_mov_b32 s61, %s' % f32(LOG2E))
        a('s_mov_b32 s62, 1.0')
        a('s_mov_b32 s63, 1.0')
        a('s_mov_b32 s64, %s' % f32(1e-6))
        a('s_mov_b32 s65, %s' % f32(1e-6))
    a('s_waitcnt lgkmcnt(0)')
    for i in range(5):
        if PHIL:
            for d in range(4):
                a('v_lshlrev_b32 v%d, 16, v%d' % (40 + 2 * d, 16 + 4 * i + d))
                a('v_and_b32 v%d, 0xffff0000, v%d' % (41 + 2 * d, 16 + 4 * i + d))
            phi_many([40 + k for k in range(8)], 48)
            for d in range(4):
                a('v_cvt_pk_bf16_f32 v%d, v%d, v%d' % (16 + 4 * i + d, 40 + 2 * d, 41 + 2 * d))
        if i < 4:
            a('buffer_store_dwordx4 %s, v1, %s, s40 offen offset:%d%s' % (vr(16 + 4 * i, 4), WS, 1024 * i, SC))
        else:
            a('buffer_store_dwordx4 v[32:35], v1, %s, s41 offen%s' % (WS, SC))
    a('s_branch P1_DONE')
    a.label('P1_KV')
    a.barrier_hazards()
    a('v_add_u32 v1, %d, v1' % ST_FR)
    a('s_lshl_b32 s40, s24, 12')
    a('v_add_u32 v7, s40, v1')
    for G in range(4):
        a('ds_read_b128 %s, v7 offset:%d' % (vr(16 + 4 * G, 4), G * 1024))
        a('ds_read_b128 %s, v1 offset:%d' % (vr(32 + 4 * G, 4), 4 * 4096 + G * 1024))
        a('ds_read_b128 %s, v7 offset:%d' % (vr(48 + 4 * G, 4), 5 * 4096 + G * 1024))
        a('ds_read_b128 %s, v1 offset:%d' % (vr(64 + 4 * G, 4), 9 * 4096 + G * 1024))
    for i in range(4):
        a('v_mov_b32 v%d, 0x3f803f80' % (80 + i))
    a('s_mul_i32 s41, s24, 1792')
    a('s_add_u32 s41, s41, %d' % ST_KV)
    a('v_mul_u32_u24 v8, 80, v3')
    a('v_add_u32 v8, s41, v8')
    a('v_lshl_add_u32 v9, v4, 4, v8')
    a('s_lshl_b32 s40, s24, 2')
    a('v_subrev_u32 v10, s40, v3')
    a('v_cmp_gt_u32 s[50:51], 4, v10')
    a('v_cmp_eq_u32 s[52:53], s24, v4')
    a('v_cmp_eq_u32 s[54:55], 0, v3')
    a('v_mul_u32_u24 v10, 80, v10')
    a('v_add_u32 v10, s41, v10')
    a('v_lshl_add_u32 v11, v4, 4, v10')
    a('s_and_b64 s[56:57], s[50:51], s[52:53]')
    a('s_and_b64 s[58:59], s[54:55], s[52:53]')
    a('s_waitcnt lgkmcnt(0)')
    Dr = [112 + 4 * i for i in range(6)]
    for G in range(4):
        c = lambda i: ('0' if G == 0 else vr(Dr[i], 4))
        kw, k4, vw, v4_ = vr(16 + 4 * G, 4), vr(32 + 4 * G, 4), vr(48 + 4 * G, 4), vr(64 + 4 * G, 4)
        a('v_mfma_f32_16x16x32_bf16 %s, %s, %s, %s' % (vr(Dr[0], 4), kw, vw, c(0)))
        a('v_mfma_f32_16x16x32_bf16 %s, %s, %s, %s' % (vr(Dr[1], 4), kw, v4_, c(1)))
        a('v_mfma_f32_16x16x32_bf16 %s, %s, %s, %s' % (vr(Dr[2], 4), k4, vw, c(2)))
        a('v_mfma_f32_16x16x32_bf16 %s, %s, %s, %s' % (vr(Dr[3], 4), k4, v4_, c(3)))
        a('v_mfma_f32_16x16x32_bf16 %s, %s, v[80:83], %s' % (vr(Dr[4], 4), kw, c(4)))
        a('v_mfma_f32_16x16x32_bf16 %s, %s, v[80:83], %s' % (vr(Dr[5], 4), k4, c(5)))
    a('v_lshlrev_b32 v12, 2, v2')
    a('v_add_u32 v13, s41, v12')
    a('ds_write_b128 v9, %s' % vr(Dr[0], 4))
    a('s_mov_b64 exec, s[50:51]')
    a('ds_write_b128 v11, %s offset:1280' % vr(Dr[1], 4))
    a('s_mov_b64 exec, s[52:53]')
    a('ds_write_b128 v8, %s offset:64' % vr(Dr[2], 4))
    a('s_mov_b64 exec, s[56:57]')
    a('ds_write_b128 v10, %s offset:1344' % vr(Dr[3], 4))
    a('s_mov_b64 exec, s[54:55]')
    a('ds_write_b128 v9, %s offset:1600' % vr(Dr[4], 4))
    a('s_mov_b64 exec, s[58:59]')
    a('ds_write_b128 v8, %s offset:1664' % vr(Dr[5], 4))
    a('s_mov_b64 exec, -1')
    a('s_waitcnt lgkmcnt(0)')
    for i in range(7):
        a('ds_read_b32 v%d, v13 offset:%d' % (16 + i, 256 * i))
    a('s_lshl_b32 s40, s30, 2')
    a('s_add_u32 s40, s40, s24')
    a('s_mul_i32 s40, s40, 1680')
    a('s_add_u32 s40, s40, %d' % KVA)
    a('s_waitcnt lgkmcnt(0)')
    for i in range(6):
        a('buffer_atomic_add_f32 v%d, v12, %s, s40 offen offset:%d' % (16 + i, WS, 256 * i))
    a('s_mov_b32 exec_hi, 0xf')
    a('buffer_atomic_add_f32 v22, v12, %s, s40 offen offset:1536' % WS)
    a('s_mov_b32 exec_hi, -1')
    a.label('P1_DONE')
    a.barrier_hazards()
    stampv(a, 8)
    if FUSED:
        a('s_waitcnt vmcnt(0)')
        stampv(a, 9)
        a('s_barrier')
        a('s_cmp_lg_u32 s24, 0')
        a('s_cbranch_scc1 P1_NOFLAG')
        a('s_lshl_b32 s42, s27, 6')
        a('s_lshl_b32 s41, s28, 2')
        a('s_add_u32 s41, s42, s41')
        a('s_add_u32 s41, s41, %d' % FLG1)
        a('v_mov_b32 v16, 1')
        a('v_mov_b32 v17, 0')
        a('s_mov_b64 exec, 1')
        a('buffer_store_dword v16, v17, %s, s41 offen sc1' % WS)
        a('s_mov_b64 exec, -1')
        a.label('P1_NOFLAG')
    a('s_cmp_eq_u32 s29, 1')
    a('s_cbranch_scc1 P1_NOB2')
    batch2()
    a.label('P1_NOB2')


K2_KIMG = 15360
K2_VP = 784
K2_V0 = K2_KIMG
K2_O1 = K2_V0 + 20 * K2_VP
K2_O2 = K2_O1 + 784 + 7 * 16
K2_HEAD = (K2_O2 + 784 + 255) // 256 * 256
L2VF = K2_O2 + 784
assert L2VF + 16 <= K2_HEAD and L2VF % 16 == 0


WOL0 = 65536
P3_WF = 56


def p3_params(a):
    a('s_and_b32 s66, s2, 1')
    a('s_lshl_b32 s66, s66, 2')
    a('s_lshr_b32 s67, s2, 3')
    a('s_and_b32 s67, s67, 3')
    a('s_add_u32 s66, s66, s67')
    a('s_mul_i32 s66, s66, %d' % (200 * 1024))
    a('s_and_b32 s67, s24, 3')
    a('s_mul_i32 s69, s67, 10240')
    a('s_add_u32 s66, s66, s69')
    a('s_add_u32 s66, s66, %d' % WOF)
    a('s_mul_i32 s67, s67, 24576')
    a('s_add_u32 s67, s67, %d' % WOL0)
    a('s_lshr_b32 s68, s24, 2')


def p3_lds_frags():
    return [(5, ct) for ct in range(1, 5)] + [(ks, ct) for ks in range(6, 10) for ct in range(5)]


def p3_dma(a, tag, vl16):
    fr = p3_lds_frags()
    a('s_cmp_eq_u32 s68, 1')
    a('s_cbranch_scc1 %s_1' % tag)
    for half_ in range(2):
        if half_:
            a('s_branch %s_2' % tag)
            a.label(tag + '_1')
        for f in range(12 * half_, 12 * half_ + 12):
            ks, ct = fr[f]
            a('s_add_u32 m0, s67, %d' % (f * 1024))
            a('s_add_u32 s69, s66, %d' % (ct * 40960 + ks * 1024))
            a('buffer_load_dwordx4 v%d, %s, s69 offen lds' % (vl16, WS))
    a.label(tag + '_2')


def p3_regloads(a, vl16):
    for f in range(26):
        ks, ct = f // 5, f % 5
        if ks < 4:
            if ks == 0:
                a('s_add_u32 s%d, s66, %d' % (70 + ct, ct * 40960))
            a('buffer_load_dwordx4 %s, v%d, %s, s%d offen offset:%d' % (vr(P3_WF + 4 * f, 4), vl16, WS, 70 + ct, ks * 1024))
        else:
            a('s_add_u32 s69, s66, %d' % (ct * 40960 + ks * 1024))
            a('buffer_load_dwordx4 %s, v%d, %s, s69 offen' % (vr(P3_WF + 4 * f, 4), vl16, WS))


def phase2(a):
    stamp_move(a, 79)
    a('s_lshl_b32 s25, s30, 1')
    a('s_add_u32 s25, s25, s29')
    a('s_lshr_b32 s31, s24, 2')
    a('s_and_b32 s32, s24, 3')
    a('s_lshl_b32 s33, s25, 1')
    a('s_add_u32 s33, s33, s31')
    a('s_mul_i32 s34, s31, %d' % K2_HEAD)
    a('s_lshl_b32 s35, s28, 7')
    a('s_sub_i32 s26, s35, 256')
    a('v_and_b32 v3, 31, v2')
    a('v_lshrrev_b32 v4, 5, v2')
    a('v_lshlrev_b32 v5, 4, v2')
    a('s_mul_i32 s60, s26, 40')
    a('s_lshl_b32 s61, s32, 10')
    a('s_add_i32 s60, s60, s61')
    a('v_add_u32 v6, s60, v5')
    a('v_max_i32 v10, 0, v6')
    for i in range(1, 4):
        a('v_add_u32 v%d, %d, v6' % (10 + i, i * 4096))
        a('v_max_i32 v%d, 0, v%d' % (10 + i, 10 + i))
    a('s_mul_i32 s62, s33, %d' % (S * 40))
    a('s_lshl_b32 s60, s26, 1')
    a('v_add_u32 v14, s60, v5')
    a('v_max_i32 v14, 0, v14')
    a('s_lshl_b32 s63, s32, 5')
    a('s_add_u32 s63, s63, s35')
    a('s_mul_i32 s64, s63, 40')
    a('s_add_u32 s64, s64, s62')
    a('v_mul_u32_u24 v7, 40, v3')
    a('v_lshl_add_u32 v8, v4, 4, v7')
    if not FUSED:
        a('s_waitcnt lgkmcnt(0)')
        make_srd(a, 36, 22, WS_SIZE)
    make_srd_off(a, 40, 22, KA, H * S * 40)
    make_srd_off(a, 44, 22, VTA, 640 * S * 2)
    make_srd_off(a, 48, 22, QA, H * S * 40)
    make_srd_off(a, 52, 22, PQB, H * S * 40)
    make_srd_off(a, 56, 22, KVA, H * 1680)
    if FUSED:
        if LQ:
            a('s_cmp_lg_u32 s29, 0')
            a('s_cbranch_scc1 P2_NOLQ')
            a('s_mul_i32 s60, s24, 1280')
            a('v_add_u32 v22, s60, v8')
            a('v_add_u32 v23, s60, v7')
            a('ds_read_b64 v[16:17], v22 offset:%d' % ST_Q)
            a('ds_read_b64 v[18:19], v22 offset:%d' % (ST_Q + 8))
            a('ds_read_b64 v[20:21], v23 offset:%d' % (ST_Q + 32))
            a.label('P2_NOLQ')
        a('s_waitcnt vmcnt(0) lgkmcnt(0)')
        a('s_barrier')
        a('s_sub_i32 s60, s28, 2')
        a('v_add_u32 v56, s60, v2')
        a('v_max_i32 v56, 0, v56')
        a('v_min_u32 v56, s28, v56')
        a('v_lshlrev_b32 v15, 2, v56')
        a('s_cmp_lg_u32 s24, 1')
        a('s_cbranch_scc1 P2_NOFV')
        a('s_cmp_lg_u32 s29, 0')
        a('s_cbranch_scc1 P2_NOFV')
        a('s_lshl_b32 s60, s30, 6')
        a('s_lshl_b32 s61, s28, 2')
        a('s_add_u32 s60, s60, s61')
        a('s_add_u32 s60, s60, %d' % FLGV)
        a('v_mov_b32 v56, 1')
        a('v_mov_b32 v57, 0')
        a('s_mov_b64 exec, 1')
        a('buffer_store_dword v56, v57, %s, s60 offen sc1' % WS)
        a('s_mov_b64 exec, -1')
        a.label('P2_NOFV')
        a('s_cmp_lg_u32 s24, 0')
        a('s_cbranch_scc1 P2_W1')
        a('s_lshl_b32 s60, s30, 6')
        a('s_add_u32 s60, s60, %d' % FLG1)

        def ok():
            a('v_cmp_ne_u32 vcc, 1, v57')
            a('s_cmp_eq_u64 vcc, 0')
        poll_loop(a, 'buffer_load_dword v57, v15, %s, s60 offen sc1' % WS, 1, 57, ok)
        a.label('P2_W1')
        stampv(a, 10)
        a('s_barrier')
    stampv(a, 11)
    a('s_lshl_b32 s60, s32, 10')
    a('s_add_u32 s60, s60, s34')
    for i in range(4):
        if i == 3:
            a('s_cmp_eq_u32 s32, 3')
            a('s_cbranch_scc1 P2_SKIPK')
        a('s_add_u32 m0, s60, %d' % (i * 4096))
        a('buffer_load_dwordx4 v%d, s[40:43], s62 offen%s lds' % (10 + i, LC))
    a.label('P2_SKIPK')
    if FUSED and LQ:
        a('s_cmp_eq_u32 s29, 0')
        a('s_cbranch_scc1 P2_NOGQ')
    a('buffer_load_dwordx4 v[16:19], v8, s[48:51], s64 offen%s' % LC)
    a('buffer_load_dwordx2 v[20:21], v7, s[48:51], s64 offen offset:32%s' % LC)
    a.label('P2_NOGQ')
    if FUSED:
        a('v_mov_b32 v78, v15')
    stampv(a, 12)
    a('s_lshl_b32 s60, s32, 9')
    a('v_lshlrev_b32 v22, 3, v2')
    a('v_add_u32 v22, s60, v22')
    a('v_mov_b32 v64, 0x3f803f80')
    a('v_mov_b32 v65, 0x3f803f80')
    a('v_add_u32 v66, s34, v22')
    a('v_cmp_gt_u32 vcc, 784, v22')
    a('s_and_saveexec_b64 s[60:61], vcc')
    a('ds_write_b64 v66, v[64:65] offset:%d' % K2_O1)
    a('ds_write_b64 v66, v[64:65] offset:%d' % K2_O2)
    a('s_mov_b64 exec, s[60:61]')
    if STAG:
        a('v_mov_b32 v56, %d' % L2VF)
        a('v_mov_b32 v58, 0')
        a('v_mov_b32 v59, 0')
        a('ds_write_b64 v56, v[58:59]')
        a('ds_write_b64 v56, v[58:59] offset:8')
    a('v_lshlrev_b32 v67, 2, v4')
    a('v_sub_u32 v67, v3, v67')
    for r in range(16):
        c = 16 * ((r >> 2) & 1) + 8 * (r >> 3) + (r & 3)
        a('v_cmp_gt_i32 s[%d:%d], %d, v67' % (66 + 2 * r, 67 + 2 * r, c))
    a('v_mov_b32 v64, 0xffff')
    a('v_mov_b32 v65, 0xffff0000')
    for i in range(8):
        a('v_cndmask_b32 v%d, 0, v64, s[%d:%d]' % (68 + i, 66 + 4 * i, 67 + 4 * i))
        a('v_cndmask_b32 v76, 0, v65, s[%d:%d]' % (68 + 4 * i, 69 + 4 * i))
        a('v_or_b32 v%d, v%d, v76' % (68 + i, 68 + i))
    a('v_and_b32 v64, 7, v3')
    a('v_bfe_u32 v65, v3, 3, 1')
    a('v_lshl_add_u32 v64, v65, 4, v64')
    a('v_bfe_u32 v65, v3, 4, 1')
    a('v_lshl_add_u32 v64, v65, 3, v64')
    a('v_mul_u32_u24 v64, 40, v64')
    a('s_mul_i32 s60, s32, 1280')
    a('s_add_u32 s60, s60, s34')
    a('v_add_u32 v64, s60, v64')
    a('v_lshl_add_u32 v65, v4, 4, v64')
    a('v_mul_u32_u24 v66, %d, v3' % K2_VP)
    a('v_add_u32 v66, %d, v66' % K2_V0)
    a('v_cmp_lt_u32 vcc, 19, v3')
    a('v_mov_b32 v76, %d' % K2_O1)
    a('v_mov_b32 v77, %d' % K2_O2)
    a('v_cndmask_b32 v66, v66, v76, vcc')
    a('v_cmp_lt_u32 vcc, 27, v3')
    a('s_lshl_b32 s60, s32, 6')
    a('s_add_u32 s60, s60, s34')
    a('v_cndmask_b32 v66, v66, v77, vcc')
    a('v_lshl_add_u32 v66, v4, 4, v66')
    a('v_add_u32 v66, s60, v66')
    a('v_and_b32 v77, 15, v2')
    a('v_lshrrev_b32 v15, 4, v2')
    a('v_mul_u32_u24 v9, 40, v77')
    a('v_lshl_add_u32 v9, v15, 4, v9')
    a('v_mul_u32_u24 v10, 80, v77')
    a('v_lshl_add_u32 v10, v15, 5, v10')
    a('v_lshlrev_b32 v11, 5, v15')
    a('v_add_u32 v11, 1600, v11')
    a('v_mov_b32 v76, 0x7fffffff')
    a('v_cmp_gt_u32 vcc, 3, v15')
    a('v_cmp_gt_u32 s[60:61], 2, v15')
    a('v_cndmask_b32 v12, v76, v10, vcc')
    a('v_cndmask_b32 v13, v76, v10, s[60:61]')
    a('v_cndmask_b32 v10, v76, v11, vcc')
    a('v_cndmask_b32 v11, v76, v11, s[60:61]')
    for b_ in (24, 32, 40, 48):
        a('v_mov_b32 v%d, 0' % (b_ + 6))
        a('v_mov_b32 v%d, 0' % (b_ + 7))
    a('s_mul_i32 s65, s33, 1680')
    stampv(a, 13)
    if FUSED:
        a('s_cmp_lg_u32 s24, 0')
        a('s_cbranch_scc1 P2_W2')
        a('s_lshl_b32 s60, s30, 6')
        a('s_add_u32 s60, s60, %d' % FLGV)

        def ok2():
            a('v_cmp_ne_u32 vcc, 1, v56')
            a('s_cmp_eq_u64 vcc, 0')
        poll_loop(a, 'buffer_load_dword v56, v78, %s, s60 offen sc1' % WS, 1, 56, ok2)
        a.label('P2_W2')
    a('s_waitcnt vmcnt(0) lgkmcnt(0)')
    stampv(a, 14)
    a('s_barrier')
    stampv(a, 15)
    if STAG:
        a('s_cmp_lt_u32 s24, 4')
        a('s_cbranch_scc1 P2_OLD')
        a('s_mul_i32 s60, s25, 40')
        a('s_mul_i32 s61, s32, 5')
        a('s_add_u32 s60, s60, s61')
        a('s_lshl_b32 s60, s60, 12')
        a('s_mul_i32 s61, s32, %d' % (5 * K2_VP))
        a('s_add_u32 s61, s61, %d' % K2_V0)
        a('s_mov_b32 exec_hi, 0xffff')
        for hh_ in range(2):
            for i in range(5):
                a('s_add_u32 m0, s61, %d' % (hh_ * K2_HEAD + i * K2_VP))
                a('buffer_load_dwordx4 v14, s[44:47], s60 offen%s lds' % LC)
                a('s_add_u32 s60, s60, %d' % (4096 if i < 4 else 16 * 4096))
        a('s_mov_b32 exec_hi, -1')
        a('s_lshl_b32 s60, s32, 2')
        a('s_add_u32 s60, s60, %d' % L2VF)
        a('v_mov_b32 v56, s60')
        a('v_mov_b32 v57, 1')
        a('s_waitcnt vmcnt(0)')
        a('ds_write_b32 v56, v57')
        a('s_branch P2_QK')
        a.label('P2_OLD')
        a('s_setprio 2')
        a.label('P2_QK')
    else:
        a('s_mul_i32 s60, s33, 20')
        a('s_mul_i32 s61, s32, 5')
        a('s_add_u32 s60, s60, s61')
        a('s_lshl_b32 s60, s60, 12')
        a('s_mul_i32 s61, s32, %d' % (5 * K2_VP))
        a('s_add_u32 s61, s61, s34')
        a('s_add_u32 s61, s61, %d' % K2_V0)
        a('s_mov_b32 exec_hi, 0xffff')
        for i in range(5):
            a('s_add_u32 m0, s61, %d' % (i * K2_VP))
            a('buffer_load_dwordx4 v14, s[44:47], s60 offen%s lds' % LC)
            if i < 4:
                a('s_add_u32 s60, s60, 4096')
        a('s_mov_b32 exec_hi, -1')
    a('v_cmp_eq_u32 vcc, 0, v4')
    a('v_mov_b32 v22, 0')
    a('v_mov_b32 v23, 0')
    a('v_cndmask_b32 v20, 0, v20, vcc')
    a('v_cndmask_b32 v21, 0, v21, vcc')
    SCR = 112
    KF = [24, 32, 40, 48]

    def kreads(t):
        b = KF[t & 1]
        a('ds_read_b64 v[%d:%d], v65 offset:%d' % (b, b + 1, t * 1280))
        a('ds_read_b64 v[%d:%d], v65 offset:%d' % (b + 2, b + 3, t * 1280 + 8))
        a('ds_read_b64 v[%d:%d], v64 offset:%d' % (b + 4, b + 5, t * 1280 + 32))

    def issue_b_loads():
        a('buffer_load_dwordx4 v[24:27], v9, s[52:55], s64 offen%s' % LC)
        a('buffer_load_dwordx4 v[28:31], v9, s[52:55], s64 offen offset:640%s' % LC)
        a('buffer_load_dwordx4 v[32:35], v12, s[56:59], s65 offen%s' % LC)
        a('buffer_load_dwordx4 v[36:39], v13, s[56:59], s65 offen offset:16%s' % LC)
        a('buffer_load_dwordx4 v[40:43], v12, s[56:59], s65 offen offset:1280%s' % LC)
        a('buffer_load_dwordx4 v[44:47], v13, s[56:59], s65 offen offset:1296%s' % LC)
        a('buffer_load_dwordx4 v[48:51], v10, s[56:59], s65 offen%s' % LC)
        a('buffer_load_dwordx4 v[52:55], v11, s[56:59], s65 offen offset:16%s' % LC)

    a('s_lshl_b32 s60, s28, 2')
    a('s_add_u32 s60, s60, s32')
    order = [8, 0, 1, 2, 3, 4, 5, 6, 7]
    MX = [60, 61, 62, 63]

    def post(t, first):
        b = SCR + 16 * t
        if t == 8:
            return
        lab = 'P2_V%d' % t
        a('v_mov_b32 v1, v%d' % (b + 15))
        a('s_cmp_ge_u32 s60, %d' % (8 - t))
        a('s_cbranch_scc1 %s' % lab)
        for r in range(16):
            a('v_mov_b32 v%d, 0xff800000' % (b + r))
        a.label(lab)
        if t == 0:
            for r in range(16):
                a('v_cndmask_b32 v%d, v%d, v%d, s[%d:%d]' % (b + r, SCR + 128 + r, b + r, 66 + 2 * r, 67 + 2 * r))
            for k in range(4):
                a('v_max3_f32 v%d, v%d, v%d, v%d' % (MX[k], b + 4 * k, b + 4 * k + 1, b + 4 * k + 2))
            for k in range(4):
                a('v_max_f32 v%d, v%d, v%d' % (MX[k], MX[k], b + 4 * k + 3))
        else:
            for k in range(8):
                a('v_max3_f32 v%d, v%d, v%d, v%d' % (MX[k & 3], MX[k & 3], b + 2 * k, b + 2 * k + 1))

    def kreads_n(n):
        t = order[n]
        b = KF[n & 3]
        a('ds_read_b64 v[%d:%d], v65 offset:%d' % (b, b + 1, t * 1280))
        a('ds_read_b64 v[%d:%d], v65 offset:%d' % (b + 2, b + 3, t * 1280 + 8))
        a('ds_read_b64 v[%d:%d], v64 offset:%d' % (b + 4, b + 5, t * 1280 + 32))

    kreads_n(0)
    kreads_n(1)
    kreads_n(2)
    for n, t in enumerate(order):
        if n + 3 < 9:
            kreads_n(n + 3)
        a('s_waitcnt lgkmcnt(%d)' % (3 * min(3, 8 - n)))
        b = KF[n & 3]
        d = vr(SCR + 16 * t, 16)
        a('v_mfma_f32_32x32x16_bf16 %s, %s, v[16:19], 0' % (d, vr(b, 4)))
        a('v_mfma_f32_32x32x16_bf16 %s, %s, v[20:23], %s' % (d, vr(b + 4, 4), d))
        if n >= 2:
            post(order[n - 2], n == 2)
    post(6, False)
    if not FUSED:
        issue_b_loads()
    else:
        a('buffer_load_dwordx4 v[56:59], v5, %s, s99 offen sc1' % WS)
    post(7, False)
    a('v_max3_f32 v60, v60, v61, v62')
    a('v_max_f32 v60, v60, v63')
    a('v_mov_b32 v61, v60')
    a('v_permlane32_swap_b32 v60, v61')
    a('v_max_f32 v60, v60, v61')
    CS = (DH ** -0.5) * LOG2E
    a('s_mov_b32 s60, %s' % f32(CS))
    a('s_mov_b32 s61, %s' % f32(CS))
    a('v_mul_f32 v60, %s, v60' % f32(-CS))
    a('v_mov_b32 v61, v60')
    stampv(a, 16)
    if STAG:
        a('s_setprio 0')
    else:
        a('s_waitcnt vmcnt(%d)' % (1 if FUSED else 8))
        a('s_barrier')
    stampv(a, 17)
    OA = 96
    VF = [80, 84, 88, 92]

    def vread(idx):
        t, j = idx >> 1, idx & 1
        a('ds_read_b128 %s, v66 offset:%d' % (vr(VF[idx & 3], 4), t * 64 + j * 32))

    def softmax_tile(t):
        b = SCR + 16 * t
        for r in range(0, 16, 2):
            a('v_pk_fma_f32 %s, %s, s[60:61], v[60:61]' % (vr(b + r, 2), vr(b + r, 2)))
        for r in range(16):
            a('v_exp_f32 v%d, v%d' % (b + r, b + r))
        for i in range(8):
            a('v_cvt_pk_bf16_f32 v%d, v%d, v%d' % (b + i, b + 2 * i, b + 2 * i + 1))

    def flagcheck(tag, last):
        a('s_cmp_eq_u32 s98, 1')
        a('s_cbranch_scc1 %s' % tag)
        if last:
            a.label(tag + '_R')
        a('s_waitcnt vmcnt(0)')
        a('v_and_b32 v56, v56, v57')
        a('v_and_b32 v58, v58, v59')
        a('v_and_b32 v56, v56, v58')
        a('v_cmp_ne_u32 vcc, 1, v56')
        a('s_cmp_eq_u64 vcc, 0')
        a('s_cbranch_scc1 %s_Y' % tag)
        a('buffer_load_dwordx4 v[56:59], v5, %s, s99 offen sc1' % WS)
        if last:
            a('s_add_u32 s97, s97, 1')
            a('s_cmp_lt_u32 s97, %d' % SPIN_LIMIT)
            a('s_cbranch_scc1 %s_R' % tag)
        else:
            a('s_branch %s' % tag)
        a.label(tag + '_Y')
        issue_b_loads()
        if WOPRE:
            p3_dma(a, tag + '_D', 5)
        a('s_mov_b32 s98, 1')
        a.label(tag)

    order2 = [0, 8, 1, 2, 3, 4, 5, 6, 7]
    first = True
    nv = 0
    a('s_mov_b32 s70, 0')
    if FUSED:
        a('s_mov_b32 s98, 0')
        if WOPRE:
            p3_params(a)
    if not STAG:
      for n_, t in enumerate(order2):
        i0 = nv
        for j in range(2):
            a('ds_read_b128 %s, v66 offset:%d' % (vr(VF[nv & 3], 4), t * 64 + j * 32))
            nv += 1
        if t == 0:
            softmax_tile(0)
            for i in range(8):
                a('v_bfi_b32 v%d, v%d, 0, v%d' % (SCR + 128 + i, 68 + i, SCR + i))
                a('v_and_b32 v%d, v%d, v%d' % (SCR + i, 68 + i, SCR + i))
        elif t != 8:
            softmax_tile(t)
        a('s_waitcnt lgkmcnt(0)')
        for j in range(2):
            c = '0' if first else vr(OA, 16)
            a('v_mfma_f32_32x32x16_bf16 %s, %s, %s, %s' % (vr(OA, 16), vr(VF[(i0 + j) & 3], 4), vr(SCR + 16 * t + 4 * j, 4), c))
            first = False
        if FUSED and t in (8, 3, 5):
            flagcheck('P2_FC%d' % t, False)
    else:
        M = [(t, j) for t in order2 for j in range(2)]
        st = {'m': 0, 'r': 0, 'ready': 0}

        def vrd():
            if st['r'] < 18:
                t, j = M[st['r']]
                a('ds_read_b128 %s, v66 offset:%d' % (vr(VF[st['r'] & 3], 4), t * 64 + j * 32))
                st['r'] += 1

        def pv():
            if st['m'] < st['ready']:
                m = st['m']
                t, j = M[m]
                a('s_waitcnt lgkmcnt(%d)' % (st['r'] - m - 1))
                a('v_mfma_f32_32x32x16_bf16 %s, %s, %s, %s' % (vr(OA, 16), vr(VF[m & 3], 4), vr(SCR + 16 * t + 4 * j, 4),
                                                              '0' if m == 0 else vr(OA, 16)))
                st['m'] += 1
                vrd()

        for n_, t in enumerate([0, 1, 2, 3, 4, 5, 6, 7]):
            b = SCR + 16 * t
            on = n_ >= LAG
            if n_ == LAG:
                a('v_mov_b32 v62, %d' % L2VF)
                a.label('P2_VW')
                a('ds_read_b128 v[80:83], v62')
                a('s_waitcnt lgkmcnt(0)')
                a('v_and_b32 v80, v80, v81')
                a('v_and_b32 v82, v82, v83')
                a('v_and_b32 v80, v80, v82')
                a('v_readfirstlane_b32 s69, v80')
                a('s_add_u32 s70, s70, 1')
                a('s_cmp_gt_u32 s70, %d' % (SPIN_LIMIT * 8))
                a('s_cbranch_scc1 P2_VWX')
                a('s_cmp_lg_u32 s69, 1')
                a('s_cbranch_scc1 P2_VW')
                a.label('P2_VWX')
                vrd()
                vrd()
                vrd()
            for r in range(0, 16, 2):
                a('v_pk_fma_f32 %s, %s, s[60:61], v[60:61]' % (vr(b + r, 2), vr(b + r, 2)))
            if on:
                pv()
            for r in range(8):
                a('v_exp_f32 v%d, v%d' % (b + r, b + r))
            if on:
                pv()
            for r in range(8, 16):
                a('v_exp_f32 v%d, v%d' % (b + r, b + r))
            if on:
                pv()
            for i in range(8):
                a('v_cvt_pk_bf16_f32 v%d, v%d, v%d' % (b + i, b + 2 * i, b + 2 * i + 1))
            if t == 0:
                for i in range(8):
                    a('v_bfi_b32 v%d, v%d, 0, v%d' % (SCR + 128 + i, 68 + i, SCR + i))
                    a('v_and_b32 v%d, v%d, v%d' % (SCR + i, 68 + i, SCR + i))
                st['ready'] = 4
            else:
                st['ready'] += 2
            if FUSED and t in (1, 3, 5):
                flagcheck('P2_FC%d' % t, False)
        while st['m'] < 18:
            pv()
    if FUSED:
        a('s_mov_b32 s97, 0')
        flagcheck('P2_FCL', True)
    stampv(a, 18)
    a('s_waitcnt vmcnt(0)')
    for i in range(12):
        a('v_cvt_pk_bf16_f32 v%d, v%d, v%d' % (80 + i, 32 + 2 * i, 33 + 2 * i))
    a('v_rcp_f32 v62, v%d' % (OA + 12))
    for rt in range(2):
        pq = vr(24 + 4 * rt, 4)
        a('v_mfma_f32_16x16x32_bf16 %s, v[80:83], %s, 0' % (vr(SCR + 12 * rt, 4), pq))
        a('v_mfma_f32_16x16x32_bf16 %s, v[84:87], %s, 0' % (vr(SCR + 12 * rt + 4, 4), pq))
        a('v_mfma_f32_16x16x32_bf16 %s, v[88:91], %s, 0' % (vr(SCR + 12 * rt + 8, 4), pq))
    for r in range(12):
        a('v_mul_f32 v%d, v%d, v62' % (OA + r, OA + r))
    for i in range(6):
        a('v_cvt_pk_bf16_f32 v%d, v%d, v%d' % (32 + i, OA + 2 * i, OA + 2 * i + 1))
    a('s_mul_i32 s60, s32, 2560')
    a('v_bfe_u32 v6, v3, 4, 1')
    a('v_mul_u32_u24 v6, 1280, v6')
    a('v_lshl_add_u32 v6, v77, 4, v6')
    a('v_add_u32 v6, s60, v6')
    a('s_mul_i32 s61, s31, 20')
    a('v_lshlrev_b32 v7, 2, v4')
    a('v_add_u32 v7, s61, v7')

    def oaddr(dst, kk, base):
        a('v_lshrrev_b32 v%d, 3, v%d' % (dst, kk))
        a('v_lshl_add_u32 v%d, v%d, 8, v%d' % (dst, dst, base))
        a('v_and_b32 v63, 4, v%d' % kk)
        a('v_lshl_add_u32 v%d, v63, 1, v%d' % (dst, dst))

    oaddr(8, 7, 6)
    a('ds_write_b64 v8, v[32:33]')
    a('ds_write_b64 v8, v[34:35] offset:256')
    a('s_mov_b32 exec_hi, 0')
    a('ds_write_b64 v8, v[36:37] offset:512')
    a('s_mov_b32 exec_hi, -1')
    a('v_lshlrev_b32 v7, 2, v15')
    a('v_add_u32 v7, s61, v7')
    a('v_lshlrev_b32 v6, 4, v77')
    a('v_add_u32 v6, s60, v6')
    oaddr(8, 7, 6)
    a('s_mov_b32 s61, %s' % f32(1e-6))
    for rt in range(2):
        b = SCR + 12 * rt
        a('v_add_f32 v%d, s61, v%d' % (62 + rt, b + 8))
    for rt in range(2):
        a('v_rcp_f32 v%d, v%d' % (62 + rt, 62 + rt))
    for rt in range(2):
        b = SCR + 12 * rt
        for r in range(8):
            a('v_mul_f32 v%d, v%d, v%d' % (b + r, b + r, 62 + rt))
        for i in range(4):
            a('v_cvt_pk_bf16_f32 v%d, v%d, v%d' % (40 + 4 * rt + i, b + 2 * i, b + 2 * i + 1))
    a('ds_write_b64 v8, v[40:41] offset:%d' % K2_HEAD)
    a('ds_write_b64 v8, v[44:45] offset:%d' % (K2_HEAD + 1280))
    a('s_mov_b64 exec, 0xffff')
    a('ds_write_b64 v8, v[42:43] offset:%d' % (K2_HEAD + 512))
    a('ds_write_b64 v8, v[46:47] offset:%d' % (K2_HEAD + 1280 + 512))
    a('s_mov_b64 exec, -1')
    a('s_mul_i32 s60, s24, 1280')
    a('v_add_u32 v6, s60, v5')
    a('s_lshl_b32 s60, s28, 3')
    a('s_add_u32 s60, s60, s24')
    a('s_mul_i32 s60, s60, 40960')
    a('s_mul_i32 s61, s25, 1280')
    a('s_add_u32 s60, s60, s61')
    a('s_add_u32 s60, s60, %d' % OF)
    a('s_add_u32 s61, s60, 20480')
    stamp_move(a, 255)
    if FUSED and WOPRE:
        a('s_cmp_ge_u32 s24, 4')
        a('s_cbranch_scc1 P2_NOPRE')
        p3_regloads(a, 5)
        a.label('P2_NOPRE')
    a('s_waitcnt lgkmcnt(0)')
    a('s_barrier')
    stampv(a, 19)
    a('ds_read_b128 v[16:19], v6')
    a('ds_read_b128 v[20:23], v6 offset:%d' % K2_HEAD)
    a('ds_read_b128 v[24:27], v6 offset:1024')
    a('ds_read_b128 v[28:31], v6 offset:%d' % (K2_HEAD + 1024))
    a('s_waitcnt lgkmcnt(2)')
    a('buffer_store_dwordx4 v[16:19], v5, %s, s60 offen%s' % (WS, SC))
    a('buffer_store_dwordx4 v[20:23], v5, %s, s61 offen%s' % (WS, SC))
    a('s_waitcnt lgkmcnt(0)')
    a('s_mov_b64 exec, 0xffff')
    a('buffer_store_dwordx4 v[24:27], v5, %s, s60 offen offset:1024%s' % (WS, SC))
    a('buffer_store_dwordx4 v[28:31], v5, %s, s61 offen offset:1024%s' % (WS, SC))
    a('s_mov_b64 exec, -1')
    stampv(a, 20)
    stamp_move(a, 255)


def phase3(a):
    a('s_and_b32 s60, s2, 7')
    a('s_lshr_b32 s61, s2, 3')
    if '--map8' in sys.argv:
        a('s_and_b32 s31, s61, 7')
        a('s_lshl_b32 s32, s60, 2')
        a('s_lshr_b32 s62, s61, 3')
        a('s_add_u32 s32, s32, s62')
    else:
        a('s_and_b32 s31, s60, 1')
        a('s_lshl_b32 s31, s31, 2')
        a('s_and_b32 s62, s61, 3')
        a('s_add_u32 s31, s31, s62')
        a('s_lshr_b32 s32, s60, 1')
        a('s_lshl_b32 s32, s32, 3')
        a('s_lshr_b32 s62, s61, 2')
        a('s_add_u32 s32, s32, s62')
    a('s_and_b32 s26, s24, 3')
    a('s_lshr_b32 s33, s24, 2')
    a('v_lshlrev_b32 v3, 4, v2')
    for i in range(1, 5):
        a('v_add_u32 v%d, %d, v3' % (3 + i, i * 40960))
    a('s_mul_i32 s43, s26, 10240')
    a('s_mul_i32 s34, s31, %d' % (200 * 1024))
    a('s_add_u32 s34, s34, s43')
    a('s_add_u32 s34, s34, %d' % WOF)
    a('s_add_u32 s35, s34, 4096')
    a('s_lshl_b32 s40, s32, 2')
    a('s_lshl_b32 s41, s33, 1')
    a('s_add_u32 s40, s40, s41')
    a('s_lshl_b32 s42, s40, 6')
    a('s_add_u32 s42, s42, %d' % GG)
    a('s_mul_i32 s40, s40, 40960')
    a('s_add_u32 s40, s40, s43')
    a('s_add_u32 s40, s40, %d' % OF)
    a('s_mul_i32 s43, s26, 24576')
    a('s_add_u32 s43, s43, %d' % WOL0)
    if not FUSED:
        a('s_waitcnt lgkmcnt(0)')
        make_srd(a, 36, 22, WS_SIZE)
    ACC, WF, OFR, LF = 16, 56, 160, 224
    make_srd(a, 44, 18, S * D * 2)
    a('v_and_b32 v8, 15, v2')
    a('v_lshrrev_b32 v9, 4, v2')
    a('v_lshlrev_b32 v10, 2, v8')
    a('v_add_u32 v11, s43, v3')
    if FUSED:
        a('s_waitcnt vmcnt(0)')
        stampv(a, 21)
        a('s_barrier')
        a('s_cmp_lg_u32 s24, 0')
        a('s_cbranch_scc1 P3_W0')
        a('s_lshl_b32 s60, s28, 6')
        a('s_lshl_b32 s61, s25, 2')
        a('s_add_u32 s60, s60, s61')
        a('s_add_u32 s60, s60, %d' % FLG2)
        a('v_mov_b32 v16, 1')
        a('v_mov_b32 v17, 0')
        a('s_mov_b64 exec, 1')
        a('buffer_store_dword v16, v17, %s, s60 offen sc1' % WS)
        a('s_mov_b64 exec, -1')
        a.label('P3_W0')
    if not (FUSED and WOPRE):
        p3_params(a)
        p3_dma(a, 'P3_D', 3)
        p3_regloads(a, 3)
    else:
        a('s_cmp_lt_u32 s24, 4')
        a('s_cbranch_scc1 P3_NOPRE')
        p3_regloads(a, 3)
        a.label('P3_NOPRE')
    stampv(a, 22)
    if FUSED:
        a('s_cmp_lg_u32 s24, 0')
        a('s_cbranch_scc1 P3_W')
        a('s_lshr_b32 s60, s32, 1')
        a('s_lshl_b32 s60, s60, 6')
        a('s_add_u32 s60, s60, %d' % FLG2)

        def ok():
            a('v_cmp_ne_u32 vcc, 1, v17')
            a('s_cmp_eq_u64 vcc, 0')
        poll_loop(a, 'buffer_load_dword v17, v10, %s, s60 offen sc1' % WS, 1, 17, ok)
        a.label('P3_W')
    a('s_waitcnt vmcnt(26)')
    stampv(a, 23)
    a('s_barrier')
    stampv(a, 24)
    a('s_add_u32 s41, s40, 4096')
    a('s_add_u32 s60, s40, 8192')

    def oloads(ks):
        b = OFR + (ks % 8) * 8
        for rt in range(2):
            a('buffer_load_dwordx4 %s, v%d, %s, s%d offen offset:%d'
              % (vr(b + 4 * rt, 4), 3 + rt, WS, (40, 41, 60)[ks >> 2], (ks & 3) * 1024))

    for ks in range(8):
        oloads(ks)
    for rt in range(2):
        a('buffer_load_dword v%d, v10, %s, s42 offen offset:%d' % (12 + rt, WS, rt * 64))
    fr = p3_lds_frags()

    def wreg(ks, ct):
        if ks < 5 or (ks, ct) == (5, 0):
            return WF + (ks * 5 + ct) * 4
        return WF + ((ks - 5) * 5 + ct) * 4

    def lreads(ks):
        n = 0
        for ct in range(5):
            if (ks, ct) in fr:
                a('ds_read_b128 %s, v11 offset:%d' % (vr(wreg(ks, ct), 4), fr.index((ks, ct)) * 1024))
                n += 1
        return n
    waits = [16, 16, 16, 14, 12, 10, 8, 6, 2, 0]
    for ks in range(10):
        a('s_waitcnt vmcnt(%d)' % waits[ks])
        if ks >= 5:
            a('s_waitcnt lgkmcnt(%d)' % (5 if ks < 9 else 0))
        b = OFR + (ks % 8) * 8
        for ct in range(5):
            for rt in range(2):
                acc = vr(ACC + (rt * 5 + ct) * 4, 4)
                a('v_mfma_f32_16x16x32_bf16 %s, %s, %s, %s' % (acc, vr(wreg(ks, ct), 4), vr(b + 4 * rt, 4),
                                                              '0' if ks == 0 else acc))
        if ks + 8 < 10:
            oloads(ks + 8)
        if 3 <= ks < 8:
            lreads(ks + 2)
    stampv(a, 25)
    a('s_cmp_lt_u32 s26, 2')
    a('s_cbranch_scc1 P3_NOINV')
    for rt in range(2):
        a('v_sub_f32 v%d, 1.0, v%d' % (12 + rt, 12 + rt))
    a.label('P3_NOINV')
    for rt in range(2):
        a('v_mov_b32 v%d, v%d' % (224 + 2 * rt, 12 + rt))
        a('v_mov_b32 v%d, v%d' % (225 + 2 * rt, 12 + rt))
    RED = 0
    a('s_mul_i32 s60, s33, 30720')
    a('s_add_u32 s60, s60, %d' % RED)
    a('v_add_u32 v11, s60, v3')
    for rt in range(2):
        for i in range(0, 20, 2):
            r = ACC + rt * 20 + i
            a('v_pk_mul_f32 %s, %s, %s' % (vr(r, 2), vr(r, 2), vr(224 + 2 * rt, 2)))
    for kq in range(4):
        a('s_cmp_lg_u32 s26, %d' % kq)
        a('s_cbranch_scc1 P3_Q%d' % kq)
        for T in range(10):
            if (T & 3) != kq:
                a('ds_write_b128 v11, %s offset:%d' % (vr(ACC + 4 * T, 4), (T * 3 + ((kq - (T & 3) - 1) & 3)) * 1024))
        own = [T for T in range(10) if (T & 3) == kq]
        a('s_waitcnt lgkmcnt(0)')
        a('s_barrier')
        stampv(a, 26)
        for n_, T in enumerate(own):
            for k in range(3):
                a('ds_read_b128 %s, v11 offset:%d' % (vr(60 + (n_ * 3 + k) * 4, 4), (T * 3 + k) * 1024))
        a('v_mul_u32_u24 v1, 1280, v8')
        a('v_lshl_add_u32 v1, v9, 3, v1')
        a('s_lshl_b32 s60, s32, 6')
        a('s_lshl_b32 s61, s33, 5')
        a('s_add_u32 s60, s60, s61')
        a('s_mul_i32 s60, s60, 1280')
        a('s_mul_i32 s61, s31, 160')
        a('s_add_u32 s60, s60, s61')
        a('s_add_u32 s61, s60, %d' % (16 * 1280))
        a('s_waitcnt lgkmcnt(0)')
        for n_, T in enumerate(own):
            for k in range(3):
                for i in (0, 2):
                    a('v_pk_add_f32 %s, %s, %s' % (vr(ACC + 4 * T + i, 2), vr(ACC + 4 * T + i, 2), vr(60 + (n_ * 3 + k) * 4 + i, 2)))
            a('v_cvt_pk_bf16_f32 v%d, v%d, v%d' % (100 + 2 * n_, ACC + 4 * T, ACC + 4 * T + 1))
            a('v_cvt_pk_bf16_f32 v%d, v%d, v%d' % (101 + 2 * n_, ACC + 4 * T + 2, ACC + 4 * T + 3))
            a('buffer_store_dwordx2 %s, v1, s[44:47], s%d offen offset:%d' % (vr(100 + 2 * n_, 2), 60 + T // 5, (T % 5) * 32))
        a('s_branch P3_END')
        a.label('P3_Q%d' % kq)
        a.barrier_hazards()
    a.label('P3_END')
    stampv(a, 27)


P3_LDS = 163840


def main():
    a = Asm()
    hdr = open('cdna_kernels/%s.s.ref' % NAME).read().split('\n')
    head = [l for l in hdr if l.startswith(';') and '@launch' not in l and 'Override launch' not in l
            and 'grid=ceil' not in l][:12]
    lds = max(LDS_TOTAL, P3_LDS, 2 * K2_HEAD)
    assert lds <= 163840, lds
    if FUSED:
        kn = NAME + '_kernel'
        lines = head + ['; @launch grid=(256,1,1) block=(512,1,1) lds=%d' % lds]
        kernel_header(a, kn)
        stampv(a, 0)
        common_prologue(a, 'K_END')
        a('s_mov_b32 s99, %d' % FLG1)
        phase1(a)
        phase2(a)
        phase3(a)
        stampv_flush(a, 0)
        a.label('K_END')
        a('s_endpgm')
        a.label('KCODE_END')
        names = [kn]
    else:
        lines = head + [
            '; @launch kernel=k1_kernel grid=(256,1,1) block=(512,1,1) lds=%d' % LDS_TOTAL,
            '; @launch kernel=k2_kernel grid=(256,1,1) block=(512,1,1) lds=%d' % (2 * K2_HEAD),
            '; @launch kernel=k3_kernel grid=(256,1,1) block=(512,1,1) lds=%d' % P3_LDS,
        ]
        names = []
        for i, ph in enumerate((phase1, phase2, phase3)):
            kn = 'k%d_kernel' % (i + 1)
            kernel_header(a, kn)
            stampv(a, 0)
            common_prologue(a, 'K%d_END' % (i + 1))
            ph(a)
            stampv_flush(a, i)
            a.label('K%d_END' % (i + 1))
            a('s_endpgm')
            names.append(kn)
    lines += ['.amdgcn_target "amdgcn-amd-amdhsa--gfx950"', '.text']
    body = a.finish()
    out = '\n'.join(lines) + '\n' + body + '.section .rodata,"a"\n' + ''.join(kernel_desc(n, 256) for n in names)
    args = [x for x in sys.argv[1:] if not x.startswith('-')]
    path = args[0] if args else 'cdna_kernels/%s.s' % NAME
    open(path, 'w').write(out)
    print('wrote', path, len(out), 'bytes; nops inserted:', len(a.nops_inserted))
    if '-v' in sys.argv:
        for t, k in a.nops_inserted:
            if 'lds' not in t:
                print('  nop %d before %s' % (k, t))


if __name__ == "__main__":
    main()
```

```python
import sys, os, struct
sys.path.insert(0, os.path.dirname(os.path.abspath(__file__)))
from asmdsl import Asm

uid = [0]
NAME = 'gated_mix__sliding_block__linear_attn_block__prompt'
S, D, H, DH = 2048, 640, 32, 20
DIAG = '--diag' in sys.argv
NOROT = '--rot1' not in sys.argv
GSLEEP = 2
_p = [x for x in sys.argv if x.startswith('--ps=')]
PSLEEP = int(_p[0][5:]) if _p else 1
LQ = '--nolq' not in sys.argv
WOPRE = '--wopre' in sys.argv
STAG = '--nostag' not in sys.argv
LAG = 2
CODEW = '--codew' in sys.argv
PHIL = '--nophil' not in sys.argv
_t = [x for x in sys.argv if x.startswith('--tlb=')]
TLBW = int(_t[0][6:]) if _t else 0
_rot = [x for x in sys.argv if x.startswith('--rot=')]
RA, RM1, RB, RM2 = [int(v) for v in _rot[0][6:].split(',')] if _rot else (1, 7, 3, 3)
NOROT3 = '--rot3' not in sys.argv
PAIR = 4 if '--pair' in sys.argv else 0
EXP1 = '--exp1' in sys.argv
EXP2 = '--exp2' in sys.argv
EXP3 = '--exp3' in sys.argv
FUSED = '--split' not in sys.argv
SC = ' sc1' if FUSED else ''
LC = ' sc1' if (FUSED and '--lsc1' in sys.argv) else ''

QA = 0
KA = QA + H * S * 40
VTA = KA + H * S * 40
PQB = VTA + 640 * S * 2
GG = PQB + H * S * 40
OF = GG + 8192
WOF = OF + S * 1280 * 2
ZR = WOF + 1280 * 640 * 2
FLG1 = ZR
FLG2 = ZR + 1024
FLGV = ZR + 2048
KVA = ZR + 3072
WS_SIZE = 268435456
DIAG_OFF = 32 << 20
SPIN_LIMIT = 1 << 16


def f32(x):
    return '0x%08x' % struct.unpack('<I', struct.pack('<f', x))[0]


LOG2E = 1.4426950408889634
SRD3 = '0x00020000'
WS = 's[36:39]'


def vr(a, n=1):
    return 'v%d' % a if n == 1 else 'v[%d:%d]' % (a, a + n - 1)


def make_srd(a, d, ptr, size):
    a('s_mov_b32 s%d, s%d' % (d, ptr))
    a('s_and_b32 s%d, s%d, 0xffff' % (d + 1, ptr + 1))
    a('s_mov_b32 s%d, %d' % (d + 2, size))
    a('s_mov_b32 s%d, %s' % (d + 3, SRD3))


def make_srd_off(a, d, ptr, off, size):
    a('s_add_u32 s%d, s%d, %d' % (d, ptr, off))
    a('s_addc_u32 s%d, s%d, 0' % (d + 1, ptr + 1))
    a('s_and_b32 s%d, s%d, 0xffff' % (d + 1, d + 1))
    a('s_mov_b32 s%d, %d' % (d + 2, size))
    a('s_mov_b32 s%d, %s' % (d + 3, SRD3))


STV = 255


def stamp_move(a, new):
    global STV
    if DIAG:
        a('v_mov_b32 v%d, v%d' % (new, STV))
        STV = new


def stampv(a, idx, real=False):
    if DIAG:
        a('%s s[100:101]' % ('s_memrealtime' if real else 's_memtime'))
        a('s_waitcnt lgkmcnt(0)')
        a('v_writelane_b32 v%d, s100, %d' % (STV, idx))


def stampv_flush(a, kern):
    if DIAG:
        a('s_mov_b64 exec, -1')
        a('s_lshl_b32 s100, s2, 3')
        a('s_add_u32 s100, s100, s24')
        a('s_lshl_b32 s100, s100, 8')
        a('s_add_u32 s100, s100, %d' % (DIAG_OFF + kern * (1 << 20)))
        a('v_and_b32 v%d, 63, v0' % (STV - 1))
        a('v_lshlrev_b32 v%d, 2, v%d' % (STV - 1, STV - 1))
        a('buffer_store_dword v%d, v%d, %s, s100 offen' % (STV, STV - 1, WS))


def tick0(a):
    if DIAG:
        a('s_memtime s[100:101]')
        a('s_waitcnt lgkmcnt(0)')
        a('s_mov_b32 s96, s100')


def tick1(a, acc):
    if DIAG:
        a('s_memtime s[100:101]')
        a('s_waitcnt lgkmcnt(0)')
        a('s_sub_u32 s96, s100, s96')
        a('s_add_u32 s%d, s%d, s96' % (acc, acc))


def tick_out(a, acc, idx):
    if DIAG:
        a('v_writelane_b32 v%d, s%d, %d' % (STV, acc, idx))


RT = '--rt' in sys.argv


def rtmark(a, idx, neg=False, tv=252):
    if RT:
        uid[0] += 1
        L = 'RT%d' % uid[0]
        a('s_cmp_lg_u32 s24, 0')
        a('s_cbranch_scc1 %s' % L)
        a('s_memrealtime s[100:101]')
        a('s_waitcnt lgkmcnt(0)')
        if neg:
            a('s_not_b32 s100, s100')
        a('v_mov_b32 v%d, s100' % tv)
        a('v_mov_b32 v%d, %d' % (tv + 1, idx * 4))
        a('s_mov_b64 exec, 1')
        a('global_atomic_umax v%d, v%d, s[20:21] sc1' % (tv + 1, tv))
        a('s_mov_b64 exec, -1')
        a.label(L)


def kernel_header(a, name):
    a.raw('.globl %s' % name)
    a.raw('.p2align 8')
    a.raw('.type %s,@function' % name)
    a.label(name)
    a.barrier_hazards()


def kernel_desc(name, vgpr, sgpr=102, accum=None):
    if accum is None:
        accum = (vgpr + 3) // 4 * 4
    return f'''.p2align 6
.amdhsa_kernel {name}
  .amdhsa_next_free_vgpr {vgpr}
  .amdhsa_next_free_sgpr {sgpr}
  .amdhsa_accum_offset {accum}
  .amdhsa_group_segment_fixed_size 0
  .amdhsa_kernarg_size 80
  .amdhsa_user_sgpr_count 2
  .amdhsa_user_sgpr_kernarg_segment_ptr 1
  .amdhsa_system_sgpr_workgroup_id_x 1
.end_amdhsa_kernel
'''


def common_prologue(a, endlabel):
    a('s_cmp_ge_u32 s2, 256')
    a('s_cbranch_scc1 %s' % endlabel)
    a('s_load_dwordx16 s[4:19], s[0:1], 0')
    a('s_load_dwordx4 s[20:23], s[0:1], 64')
    a('v_lshrrev_b32 v1, 6, v0')
    a('v_and_b32 v2, 63, v0')
    a('v_readfirstlane_b32 s24, v1')
    a('s_mov_b32 s98, 0')
    if DIAG:
        for r_ in (90, 91, 92, 93):
            a('s_mov_b32 s%d, 0' % r_)
    a('s_and_b32 s25, s2, 7')
    a('s_lshr_b32 s26, s2, 3')
    a('s_and_b32 s27, s25, 3')
    a('s_lshl_b32 s27, s27, 2')
    a('s_and_b32 s28, s26, 3')
    a('s_add_u32 s27, s27, s28')
    a('s_lshr_b32 s28, s25, 2')
    a('s_lshl_b32 s28, s28, 3')
    a('s_lshr_b32 s29, s26, 2')
    a('s_add_u32 s28, s28, s29')
    a('s_lshr_b32 s29, s27, 3')
    a('s_and_b32 s30, s27, 7')
    a('s_and_b32 s3, s26, %d' % (3 & RM2))
    a('s_mul_i32 s3, s3, %d' % RB)
    a('s_lshr_b32 s26, s26, 2')
    a('s_and_b32 s26, s26, %d' % RM1)
    a('s_mul_i32 s26, s26, %d' % RA)
    a('s_add_u32 s3, s3, s26')
    for _ in range(3):
        a('s_cmp_ge_u32 s3, 10')
        a('s_cselect_b32 s26, 10, 0')
        a('s_sub_u32 s3, s3, s26')
    if NOROT:
        a('s_mov_b32 s3, 0')


def poll_loop(a, load_instr, nregs, freg, cond_regs_ok):
    uid[0] += 1
    L = 'POLL%d' % uid[0]
    a('s_mov_b32 s98, 0')
    a.label(L)
    a(load_instr)
    a('s_waitcnt vmcnt(0)')
    cond_regs_ok()
    a('s_cbranch_scc1 %s_OK' % L)
    a('s_sleep %d' % PSLEEP)
    a('s_add_u32 s98, s98, 1')
    a('s_cmp_lt_u32 s98, %d' % SPIN_LIMIT)
    a('s_cbranch_scc1 %s' % L)
    a.label(L + '_OK')


SLOT = 47104
WOFFS = 16384
L_GATE = 3 * SLOT
L_WOSCR = L_GATE + 2048
L_FLAGS = L_WOSCR + 8192
LDS_TOTAL = L_FLAGS + 64
ST_Q = 0
ST_K = 20480
ST_V = 40960
VPITCH = 272
ST_FR = 65536
ST_KV = ST_FR + 40960


def phase1(a):
    a('s_cmp_ge_u32 s24, 4')
    a('s_cbranch_scc0 P1_CONS')
    a('s_sub_u32 s31, s24, 4')
    a('v_lshrrev_b32 v3, 3, v2')
    a('v_and_b32 v4, 7, v2')
    a('v_lshrrev_b32 v5, 1, v3')
    a('v_xor_b32 v4, v4, v5')
    a('v_lshlrev_b32 v4, 4, v4')
    a('v_mul_u32_u24 v3, 1280, v3')
    a('v_add_u32 v10, v3, v4')
    a('v_xor_b32 v11, 64, v10')
    a('v_add_u32 v11, 10240, v11')
    a('v_add_u32 v12, 20480, v10')
    a('v_add_u32 v13, 20480, v11')
    a('v_cmp_lt_u32 vcc, 29, v2')
    a('s_lshl_b32 s32, s28, 7')
    a('s_lshl_b32 s33, s31, 5')
    a('v_cndmask_b32 v3, 0, 1, vcc')
    a('v_mul_u32_u24 v4, 30, v3')
    a('v_sub_u32 v4, v2, v4')
    a('v_mul_u32_u24 v5, 26, v4')
    a('v_lshrrev_b32 v5, 8, v5')
    a('v_mul_u32_u24 v6, 10, v5')
    a('v_sub_u32 v6, v4, v6')
    a('v_mul_u32_u24 v3, 3840, v3')
    a('v_mul_u32_u24 v5, 1280, v5')
    a('v_lshlrev_b32 v6, 4, v6')
    a('v_add3_u32 v14, v3, v5, v6')
    for ii in range(1, 4):
        koff = 2 * (ii & 1) + 8 * (ii >> 1)
        a('v_add_u32 v%d, %d, v14' % (14 + ii, koff * 3840))
    a('v_lshlrev_b32 v23, 4, v2')
    a('s_add_u32 s32, s32, s33')
    a('s_mul_i32 s32, s32, 1280')
    a('s_and_b32 s33, s31, 1')
    a('s_lshl_b32 s33, s33, 2')
    a('s_lshr_b32 s34, s31, 1')
    a('s_lshl_b32 s34, s34, 4')
    a('s_add_u32 s33, s33, s34')
    a('s_mul_i32 s33, s33, 3840')
    a('s_mul_i32 s34, s30, 160')
    a('s_add_u32 s33, s33, s34')
    a('s_lshl_b32 s34, s31, 12')
    a('s_mul_i32 s35, s31, 3840')
    a('s_add_u32 s35, s35, %d' % WOFFS)
    a('s_mov_b32 s48, -1')
    a('s_mov_b32 s49, 0x0fffffff')
    a('s_lshl_b32 s50, s31, 2')
    a('s_add_u32 s50, s50, %d' % L_FLAGS)
    a('v_mov_b32 v20, s50')
    a('v_mov_b32 v21, %d' % (L_FLAGS + 16))
    a('s_mov_b32 s52, 0')
    a('s_lshl_b32 s56, s3, 7')
    a('s_add_u32 s32, s32, s56')
    a('s_mul_i32 s56, s3, %d' % (64 * 3840))
    a('s_add_u32 s33, s33, s56')
    a('s_sub_u32 s54, 10, s3')
    a('s_lshl_b32 s55, s54, 1')
    a('s_waitcnt lgkmcnt(0)')
    make_srd(a, 40, 4, S * D * 2)
    a('s_cmp_eq_u32 s29, 0')
    a('s_cselect_b32 s44, s6, s12')
    a('s_cselect_b32 s45, s7, s13')
    a('s_and_b32 s45, s45, 0xffff')
    a('s_mov_b32 s46, %d' % (D * 3 * D * 2))
    a('s_mov_b32 s47, %s' % SRD3)

    def grp_x():
        a('s_add_u32 s51, s50, s34')
        for ii in range(4):
            a('s_add_u32 m0, s51, %d' % (ii * 1024))
            if not EXP2:
                a('buffer_load_dwordx4 v%d, s[40:43], s32 offen lds' % (10 + ii))
        a('s_add_u32 s32, s32, 128')
        a('s_sub_u32 s54, s54, 1')
        a('s_cmp_eq_u32 s54, 0')
        a('s_cselect_b32 s56, 1280, 0')
        a('s_sub_u32 s32, s32, s56')
        a('s_add_u32 s52, s52, 4')

    def grp_w(u):
        a('s_add_u32 s51, s50, s35')
        a('s_mov_b64 exec, s[48:49]')
        for ii in range(4):
            a('s_add_u32 m0, s51, %d' % (u * 15360 + ii * 960))
            if not EXP2:
                a('buffer_load_dwordx4 v%d, s[44:47], s33 offen lds' % (14 + ii))
        a('s_mov_b64 exec, -1')
        a('s_add_u32 s33, s33, %d' % (32 * 3840))
        a('s_sub_u32 s55, s55, 1')
        a('s_cmp_eq_u32 s55, 0')
        a('s_cselect_b32 s56, %d, 0' % (640 * 3840))
        a('s_sub_u32 s33, s33, s56')
        a('s_add_u32 s52, s52, 4')

    def publish():
        a('s_getreg_b32 s56, hwreg(HW_REG_IB_STS)')
        a('s_lshr_b32 s57, s56, 18')
        a('s_and_b32 s57, s57, 0x30')
        a('s_and_b32 s56, s56, 15')
        a('s_or_b32 s56, s56, s57')
        a('s_sub_i32 s56, s52, s56')
        a('s_max_i32 s56, s56, 0')
        a('s_lshr_b32 s56, s56, 2')
        a('v_mov_b32 v22, s56')
        a('ds_write_b32 v20, v22')

    def gate(tag, need):
        a.label(tag + '_T')
        a('ds_read_b128 v[24:27], v21')
        a('s_waitcnt lgkmcnt(0)')
        a('v_min3_u32 v24, v24, v25, v26')
        a('v_min_u32 v24, v24, v27')
        a('v_readfirstlane_b32 s58, v24')
        a('s_cmp_ge_i32 s58, %s' % need)
        a('s_cbranch_scc1 %s' % tag)
        publish()
        a('s_sleep %d' % GSLEEP)
        a('s_add_u32 s98, s98, 1')
        a('s_cmp_gt_u32 s98, %d' % (SPIN_LIMIT * 8))
        a('s_cbranch_scc0 %s_T' % tag)
        a.label(tag)

    a('s_cmp_lg_u32 s31, 0')
    a('s_cbranch_scc1 P1_L_NOGATE')
    make_srd(a, 60, 16, 1280)
    a('s_mov_b32 m0, %d' % L_GATE)
    a('s_mov_b32 s59, 1024')
    a('buffer_load_dwordx4 v23, s[60:63], 0 offen lds')
    a('s_mov_b32 m0, %d' % (L_GATE + 1024))
    a('buffer_load_dwordx4 v23, s[60:63], s59 offen lds')
    a.label('P1_L_NOGATE')
    a('s_mov_b32 s50, 0')
    grp_x()
    grp_w(0)
    make_srd(a, 36, 22, WS_SIZE)
    stampv(a, 1)
    a('s_barrier')
    grp_w(1)
    publish()
    a('s_mov_b32 s50, %d' % SLOT)
    a('s_mov_b32 s53, -3')
    a.label('P1_L_LOOP')
    gate('P1_L_G1', 's53')
    grp_w(0)
    publish()
    a('s_add_u32 s53, s53, 1')
    gate('P1_L_G2', 's53')
    grp_x()
    publish()
    grp_w(1)
    publish()
    a('s_add_u32 s53, s53, 1')
    a('s_add_u32 s50, s50, %d' % SLOT)
    a('s_cmp_eq_u32 s50, %d' % (3 * SLOT))
    a('s_cselect_b32 s50, 0, s50')
    a('s_cmp_lt_i32 s53, 15')
    a('s_cbranch_scc1 P1_L_LOOP')
    for n_ in (12, 8, 4, 0):
        a('s_waitcnt vmcnt(%d)' % n_)
        publish()
    stampv(a, 3)
    a('s_cmp_lg_u32 s31, 0')
    a('s_cbranch_scc1 P1_L_NOZ')
    make_srd(a, 52, 20, 256)
    a('v_mov_b32 v24, 0')

    def zok():
        a('v_readfirstlane_b32 s57, v25')
        a('s_cmp_ge_u32 s57, 32')
    poll_loop(a, 'buffer_load_dword v25, v24, s[52:55], 0 offen sc1', 1, 25, zok)
    a.label('P1_L_NOZ')
    stampv(a, 4)
    a('s_barrier')
    a('s_branch P1_STORE')

    a.label('P1_CONS')
    a.barrier_hazards()
    F0, F1, ACC = 16, 64, 112
    FL = 240
    a('s_lshr_b32 s31, s24, 1')
    a('s_and_b32 s32, s24, 1')
    a('v_and_b32 v3, 15, v2')
    a('v_lshrrev_b32 v4, 4, v2')
    a('v_bfe_u32 v5, v2, 2, 2')
    a('v_and_b32 v6, 3, v2')
    a('v_mov_b32 v244, %d' % L_FLAGS)
    a('v_mov_b32 v16, 0')
    a('v_mov_b32 v17, 0')
    a('v_mov_b32 v18, 0')
    a('v_mov_b32 v19, 0')
    a('ds_write_b128 v244, v[16:19]')
    a('ds_write_b128 v244, v[16:19] offset:16')
    a('v_lshlrev_b32 v246, 4, v2')
    a('s_mul_i32 s40, s2, 52429')
    a('s_lshr_b32 s40, s40, 18')
    a('s_mul_i32 s41, s40, 5')
    a('s_sub_u32 s41, s2, s41')
    a('v_lshrrev_b32 v7, 2, v2')
    a('v_mul_u32_u24 v7, 1280, v7')
    a('v_lshl_add_u32 v247, v6, 4, v7')
    a('s_lshl_b32 s42, s24, 11')
    a('s_add_u32 s42, s42, %d' % L_WOSCR)
    a('s_waitcnt lgkmcnt(0)')
    make_srd(a, 36, 22, WS_SIZE)
    rtmark(a, 1, True)
    rtmark(a, 2)
    a('s_cmp_ge_u32 s2, 8')
    a('s_cbranch_scc1 P1_C_NOZ')
    a('s_lshl_b32 s43, s2, 2')
    a('s_add_u32 s43, s43, s24')
    a('s_lshl_b32 s43, s43, 11')
    a('s_add_u32 s43, s43, %d' % ZR)
    a('buffer_store_dwordx4 v[16:19], v246, %s, s43 offen sc1' % WS)
    a('buffer_store_dwordx4 v[16:19], v246, %s, s43 offen offset:1024 sc1' % WS)
    a.label('P1_C_NOZ')
    a('s_cmp_ge_u32 s2, 200')
    a('s_cbranch_scc1 P1_C_NOWO')
    a('s_cmp_lt_u32 s40, 20')
    a('s_cselect_b32 s52, s8, s14')
    a('s_cselect_b32 s53, s9, s15')
    a('s_cselect_b32 s57, 0, 20')
    a('s_and_b32 s53, s53, 0xffff')
    a('s_mov_b32 s54, %d' % (D * D * 2))
    a('s_mov_b32 s55, %s' % SRD3)
    a('s_sub_u32 s57, s40, s57')
    a('s_mul_i32 s57, s57, %d' % (32 * 1280))
    a('s_lshl_b32 s56, s41, 8')
    a('s_add_u32 s57, s57, s56')
    a('s_lshl_b32 s56, s24, 6')
    a('s_add_u32 s57, s57, s56')
    a('s_mov_b32 m0, s42')
    a('s_add_u32 s56, s57, %d' % (16 * 1280))
    a('buffer_load_dwordx4 v247, s[52:55], s57 offen lds')
    a('s_add_u32 m0, s42, 1024')
    a('buffer_load_dwordx4 v247, s[52:55], s56 offen lds')
    a.label('P1_C_NOWO')
    if CODEW:
        a('s_cmp_lg_u32 s24, 2')
        a('s_cbranch_scc1 P1_C_NOCW')
        a('s_getpc_b64 s[44:45]')
        a.label('P1_C_PC')
        a('s_lshr_b32 s46, s2, 3')
        a('s_lshl_b32 s46, s46, 7')
        a('v_lshlrev_b32 v7, 12, v2')
        a('v_add_u32 v7, s46, v7')
        a('v_cmp_gt_u32 vcc, (KCODE_END - P1_C_PC - 4), v7')
        a('v_mov_b32 v9, s45')
        a('v_add_co_u32 v8, s[46:47], s44, v7')
        a('v_addc_co_u32 v9, s[46:47], 0, v9, s[46:47]')
        a('s_and_saveexec_b64 s[46:47], vcc')
        a('global_load_dword v248, v[8:9], off')
        a('s_mov_b64 exec, s[46:47]')
        a.label('P1_C_NOCW')
    if TLBW:
        a('v_lshlrev_b32 v7, %d, v2' % TLBW)
        a('s_cmp_lg_u32 s24, 3')
        a('s_cbranch_scc1 P1_C_NOTLB')
        make_srd(a, 44, 22, ZR + 65536)
        make_srd(a, 48, 18, S * D * 2)
        a('buffer_load_dword v248, v7, s[44:47], 0 offen')
        a('buffer_load_dword v249, v7, s[48:51], 0 offen')
        a.label('P1_C_NOTLB')
    a('s_barrier')
    a('v_lshrrev_b32 v7, 1, v3')
    a('v_xor_b32 v7, v4, v7')
    a('v_lshlrev_b32 v7, 4, v7')
    a('v_lshl_add_u32 v8, v3, 7, v7')
    a('s_lshl_b32 s33, s31, 13')
    a('v_add_u32 v8, s33, v8')
    a('v_xor_b32 v9, 64, v8')
    a('v_lshrrev_b32 v7, 1, v4')
    a('v_lshlrev_b32 v7, 4, v7')
    a('v_and_b32 v1, 1, v4')
    a('v_lshl_add_u32 v7, v1, 2, v7')
    a('v_add_u32 v7, v7, v5')
    a('v_mul_u32_u24 v7, 480, v7')
    a('v_add_u32 v7, %d, v7' % WOFFS)
    a('v_mul_u32_u24 v1, 40, v6')
    a('v_add_u32 v10, v7, v1')
    a('v_lshl_add_u32 v11, v6, 3, v7')
    a('v_lshlrev_b32 v7, 4, v4')
    a('v_add_u32 v7, %d, v7' % L_GATE)
    a('s_lshl_b32 s33, s3, 7')
    a('v_add_u32 v7, s33, v7')
    a('s_sub_u32 s43, 10, s3')
    a('s_mov_b32 s45, 128')
    for r in range(128):
        a('v_mov_b32 v%d, 0' % (ACC + r))
    for i in range(4):
        a('v_mov_b32 v%d, v%d' % (12 + i, 8 + i))
    a('s_lshl_b32 s33, s24, 2')
    a('s_add_u32 s33, s33, %d' % (L_FLAGS + 16))
    a('v_mov_b32 v245, s33')
    a('s_mov_b32 s34, 0')
    a('s_mov_b32 s35, 1')
    a('v_lshlrev_b32 v1, 9, v4')
    a('v_lshl_add_u32 v1, v5, 6, v1')
    a('v_lshl_add_u32 v1, v6, 3, v1')
    a('v_add_u32 v1, s42, v1')
    stampv(a, 1)
    a('s_waitcnt vmcnt(0)')
    stampv(a, 2)
    a('s_cmp_ge_u32 s2, 8')
    a('s_cbranch_scc1 P1_C_NOZ2')
    make_srd(a, 52, 20, 256)
    a('v_mov_b32 v16, 1')
    a('v_mov_b32 v17, 0')
    a('s_mov_b64 exec, 1')
    a('buffer_atomic_add v16, v17, s[52:55], 0 offen sc1')
    a('s_mov_b64 exec, -1')
    a.label('P1_C_NOZ2')
    a('s_cmp_ge_u32 s2, 200')
    a('s_cbranch_scc1 P1_C_NOWO2')
    for tt in range(2):
        for j4 in range(2):
            a('ds_read_b64_tr_b16 v[%d:%d], v1 offset:%d' % (64 + tt * 4 + j4 * 2, 65 + tt * 4 + j4 * 2, j4 * 256 + tt * 32))
    a('s_lshl_b32 s57, s41, 3')
    a('s_lshl_b32 s58, s24, 1')
    a('s_add_u32 s57, s57, s58')
    a('s_mul_i32 s57, s57, 40')
    a('s_add_u32 s57, s57, s40')
    a('s_lshl_b32 s57, s57, 10')
    a('s_add_u32 s57, s57, %d' % WOF)
    a('s_add_u32 s58, s57, %d' % (40 * 1024))
    a('s_waitcnt lgkmcnt(0)')
    a('buffer_store_dwordx4 v[64:67], v246, %s, s57 offen%s' % (WS, SC))
    a('buffer_store_dwordx4 v[68:71], v246, %s, s58 offen%s' % (WS, SC))
    a.label('P1_C_NOWO2')
    a.label('P1_C_W0')
    a('ds_read_b128 %s, v244' % vr(FL, 4))
    a('s_waitcnt lgkmcnt(0)')
    a('v_min3_u32 v1, v%d, v%d, v%d' % (FL, FL + 1, FL + 2))
    a('v_min_u32 v1, v1, v%d' % (FL + 3))
    a('v_readfirstlane_b32 s40, v1')
    a('s_add_u32 s98, s98, 1')
    a('s_cmp_gt_u32 s98, %d' % (SPIN_LIMIT * 8))
    a('s_cbranch_scc1 P1_C_W0X')
    a('s_cmp_lt_u32 s40, 2')
    a('s_cbranch_scc1 P1_C_W0')
    a.label('P1_C_W0X')
    stampv(a, 3)
    rtmark(a, 3)
    a('s_setprio 2')
    a('s_lshl_b32 s40, s29, 1')
    a('s_add_u32 s40, s40, s32')
    a('s_cmp_eq_u32 s40, 1')
    a('s_cbranch_scc1 P1_V1')
    a('s_cmp_eq_u32 s40, 2')
    a('s_cbranch_scc1 P1_V2')
    a('s_cmp_eq_u32 s40, 3')
    a('s_cbranch_scc1 P1_V3')

    def tl_p1(sec, ct):
        return ('w', sec, ct, 'A', 8 * ct, 'WX')

    def tl_p2(sec, ct):
        return ('w', sec, ct, 'B', 32 * ct, 'XW')

    def tl_p3(sec, ct):
        return ('w', sec, ct, 'B', 40 * ct, 'XW') if ct < 4 else ('w', sec, ct, 'A', 32, 'XW')

    variants = [
        [tl_p1(0, c) for c in range(5)] + [tl_p1(1, c) for c in range(3)],
        [tl_p1(1, 3), tl_p1(1, 4)] + [tl_p2(2, c) for c in range(5)] + [('gate',)],
        [tl_p1(0, c) for c in range(5)] + [tl_p3(1, c) for c in range(3)],
        [tl_p3(1, 3), tl_p3(1, 4)] + [tl_p3(2, c) for c in range(5)],
    ]

    def reads(tiles, F, u):
        L = []
        for rt in range(4):
            L.append('ds_read_b128 %s, v%d offset:%d' % (vr(F + 4 * rt, 4), 12 + u, rt * 2048))
        for t, tile in enumerate(tiles):
            b = F + 16 + 4 * t
            if tile[0] == 'gate':
                L.append('ds_read_b128 %s, v7 offset:%d' % (vr(b, 4), u * 64))
            else:
                _, sec, ct, pat, tcol, _o = tile
                for j4 in range(2):
                    off = (32 * u + 8 * j4) * 480 + sec * 160 + tcol
                    L.append('ds_read_b64_tr_b16 %s, v%d offset:%d' % (vr(b + 2 * j4, 2), 14 if pat == 'A' else 15, off))
        return L

    def mfmas(tiles, F):
        L = []
        for t, tile in enumerate(tiles):
            for rt in range(4):
                acc = vr(ACC + (t * 4 + rt) * 4, 4)
                xf = vr(F + 4 * rt, 4)
                wf = vr(F + 16 + 4 * t, 4)
                o = 'WX' if tile[0] == 'gate' else tile[5]
                if o == 'WX':
                    L.append('v_mfma_f32_16x16x32_bf16 %s, %s, %s, %s' % (acc, wf, xf, acc))
                else:
                    L.append('v_mfma_f32_16x16x32_bf16 %s, %s, %s, %s' % (acc, xf, wf, acc))
        return L

    spins = []

    def half(tiles, Fc, Fn, un, tag, pre=()):
        ms = mfmas(tiles, Fc)
        rs = reads(tiles, Fn, un)
        if EXP1:
            ms = ['s_nop 0'] * len(ms)
        if EXP1 or EXP3:
            rs = []
        rs = rs + ['ds_read_b128 %s, v244' % vr(FL, 4)]
        a(ms[0])
        a('v_min3_u32 v1, v%d, v%d, v%d' % (FL, FL + 1, FL + 2))
        a('v_min_u32 v1, v1, v%d' % (FL + 3))
        a(ms[1])
        a('v_readfirstlane_b32 s40, v1')
        for p in pre:
            a(p)
        a(ms[2])
        a('s_cmp_lt_u32 s40, s35')
        a('s_cbranch_scc1 %s_SPIN' % tag)
        a.label(tag + '_GO')
        spins.append(tag)
        i = 0
        if len(rs) > 8:
            rs = [rs[0], rs[4], rs[1], rs[5], rs[2], rs[6], rs[3], rs[7]] + rs[8:]
        for n_, m in enumerate(ms[3:]):
            for _ in range(2 if n_ < PAIR else 1):
                if i < len(rs):
                    a(rs[i])
                    i += 1
            a(m)
        while i < len(rs):
            a(rs[i])
            i += 1
        a('v_mov_b32 v1, s41')
        a('s_add_u32 s41, s41, 1')
        a('s_add_u32 s35, s35, %d' % (2 if un == 1 else 1))
        a('s_min_u32 s35, s35, 30')
        a('s_waitcnt lgkmcnt(0)')
        a('ds_write_b32 v245, v1')

    def accr(t, rt, r=0):
        return ACC + (t * 4 + rt) * 4 + r

    def phi_many(regs, tmpbase):
        for i in range(0, len(regs), 8):
            grp = regs[i:i + 8]
            for j in range(0, len(grp), 2):
                a('v_pk_mul_f32 %s, %s, s[60:61]' % (vr(tmpbase + j, 2), vr(grp[j], 2)))
            for j, r in enumerate(grp):
                a('v_exp_f32 v%d, v%d' % (tmpbase + j, tmpbase + j))
            for j in range(0, len(grp), 2):
                a('v_pk_add_f32 %s, %s, s[62:63]' % (vr(grp[j], 2), vr(grp[j], 2)))
            for j, r in enumerate(grp):
                a('v_med3_f32 v%d, v%d, v%d, 1.0' % (r, tmpbase + j, r))
            for j in range(0, len(grp), 2):
                a('v_pk_add_f32 %s, %s, s[64:65]' % (vr(grp[j], 2), vr(grp[j], 2)))

    def stage_rowmajor(tile_ids, dim0, region):
        k = 0
        for rt in range(4):
            for idx, t in enumerate(tile_ids):
                st = 16 + (k & 7) * 2
                k += 1
                a('v_cvt_pk_bf16_f32 v%d, v%d, v%d' % (st, accr(t, rt, 0), accr(t, rt, 1)))
                a('v_cvt_pk_bf16_f32 v%d, v%d, v%d' % (st + 1, accr(t, rt, 2), accr(t, rt, 3)))
                a('ds_write_b64 v1, %s offset:%d' % (vr(st, 2), region + rt * 640 + dim0 * 2 + idx * 8))

    for vi, tiles in enumerate(variants):
        br, ni = vi >> 1, vi & 1
        a.label('P1_V%d' % vi)
        a.barrier_hazards()
        for r in reads(tiles, F0, 0):
            a(r)
        a('ds_read_b128 %s, v244' % vr(FL, 4))
        a('s_mov_b32 s35, 3')
        a('s_mov_b32 s41, 2')
        a('v_mov_b32 v1, 1')
        a('s_mov_b32 s33, 0')
        a('s_waitcnt lgkmcnt(0)')
        a('ds_write_b32 v245, v1')
        a.label('P1_V%d_LOOP' % vi)
        half(tiles, F0, F1, 1, 'P1_V%d_A' % vi)
        pre = ['s_add_u32 s34, s34, %d' % SLOT, 's_cmp_eq_u32 s34, %d' % (3 * SLOT), 's_cselect_b32 s34, 0, s34']
        pre += ['v_add_u32 v%d, s34, v%d' % (12 + i, 8 + i) for i in range(4)]
        if tiles[-1][0] == 'gate':
            pre += ['s_sub_u32 s43, s43, 1', 's_cmp_eq_u32 s43, 0', 's_cselect_b32 s44, %d, s45' % (128 - 1280),
                    'v_add_u32 v7, s44, v7']
        half(tiles, F1, F0, 0, 'P1_V%d_B' % vi, pre)
        a('s_add_u32 s33, s33, 1')
        a('s_cmp_lt_u32 s33, 10')
        a('s_cbranch_scc1 P1_V%d_LOOP' % vi)
        a('s_setprio 0')
        rtmark(a, 4)
        stampv(a, 4)
        tick_out(a, 90, 40)
        tick_out(a, 98, 41)
        a('s_lshl_b32 s40, s31, 6')
        a('v_lshl_add_u32 v1, v4, 7, v3')
        a('v_add_u32 v1, s40, v1')
        a('v_mul_u32_u24 v1, 40, v1')
        if br == 1:
            a('s_mov_b32 s60, %s' % f32(LOG2E))
            a('s_mov_b32 s61, %s' % f32(LOG2E))
            a('s_mov_b32 s62, 1.0')
            a('s_mov_b32 s63, 1.0')
            a('s_mov_b32 s64, %s' % f32(1e-6))
            a('s_mov_b32 s65, %s' % f32(1e-6))
            tl = ([5, 6, 7] if PHIL else list(range(8))) if ni == 0 else [0, 1]
            phi_many([accr(t, rt, r) for t in tl for rt in range(4) for r in range(4)], 64)
        stampv(a, 5)
        a('s_waitcnt lgkmcnt(0)')
        a('s_barrier')
        stampv(a, 6)
        if vi == 0:
            stage_rowmajor([5, 6, 7], 0, ST_K)
            stage_rowmajor([0, 1, 2, 3, 4], 0, ST_Q)
        elif vi == 1:
            stage_rowmajor([0, 1], 12, ST_K)
            a('v_mul_u32_u24 v1, %d, v3' % VPITCH)
            a('v_lshl_add_u32 v1, v4, 4, v1')
            a('s_lshl_b32 s40, s31, 7')
            a('v_add_u32 v1, s40, v1')
            for ct in range(5):
                t = 2 + ct
                for rp in range(2):
                    st = 32 + ((ct * 2 + rp) & 3) * 4
                    for h2 in range(2):
                        rt = rp * 2 + h2
                        a('v_cvt_pk_bf16_f32 v%d, v%d, v%d' % (st + 2 * h2, accr(t, rt, 0), accr(t, rt, 1)))
                        a('v_cvt_pk_bf16_f32 v%d, v%d, v%d' % (st + 2 * h2 + 1, accr(t, rt, 2), accr(t, rt, 3)))
                    a('ds_write_b128 v1, %s offset:%d' % (vr(st, 4), ST_V + ct * 16 * VPITCH + rp * 64))
            a('s_cmp_lg_u32 s30, 0')
            a('s_cbranch_scc1 P1_NOGATE_ST')
            a('v_lshlrev_b32 v1, 2, v3')
            a('s_lshl_b32 s40, s28, 9')
            a('s_lshl_b32 s41, s31, 8')
            a('s_add_u32 s40, s40, s41')
            a('s_add_u32 s40, s40, %d' % GG)
            a('s_mov_b32 s60, %s' % f32(-LOG2E))
            for rt in range(4):
                a('v_mul_f32 v%d, s60, v%d' % (accr(7, rt), accr(7, rt)))
            for rt in range(4):
                a('v_exp_f32 v%d, v%d' % (accr(7, rt), accr(7, rt)))
            for rt in range(4):
                a('v_add_f32 v%d, 1.0, v%d' % (accr(7, rt), accr(7, rt)))
            for rt in range(4):
                a('v_rcp_f32 v%d, v%d' % (accr(7, rt), accr(7, rt)))
            a('s_mov_b64 exec, 0xffff')
            for rt in range(4):
                a('buffer_store_dword v%d, v1, %s, s40 offen offset:%d%s' % (accr(7, rt, 0), WS, rt * 64, SC))
            a('s_mov_b64 exec, -1')
            a.label('P1_NOGATE_ST')
        else:
            if ni == 0:
                fr = [(5, 0), (6, 1), (7, 2)]
            else:
                fr = [(0, 3), (1, 4)] + [(2 + c, 5 + c) for c in range(5)]
            a('s_lshl_b32 s40, s31, 11')
            a('s_add_u32 s40, s40, %d' % ST_FR)
            a('v_add_u32 v7, s40, v246')
            for n_, (t, T) in enumerate(fr):
                for rp in range(2):
                    st = 80 + ((n_ * 2 + rp) & 3) * 4
                    for h2 in range(2):
                        rt = rp * 2 + h2
                        a('v_cvt_pk_bf16_f32 v%d, v%d, v%d' % (st + 2 * h2, accr(t, rt, 0), accr(t, rt, 1)))
                        a('v_cvt_pk_bf16_f32 v%d, v%d, v%d' % (st + 2 * h2 + 1, accr(t, rt, 2), accr(t, rt, 3)))
                    a('ds_write_b128 v7, %s offset:%d' % (vr(st, 4), T * 4096 + rp * 1024))
            if ni == 0:
                stage_rowmajor([0, 1, 2, 3, 4], 0, ST_Q)
        a('s_branch P1_STORE')
    for tag in spins:
        a.label(tag + '_SPIN')
        a.barrier_hazards()
        tick0(a)
        a('ds_read_b128 %s, v244' % vr(FL, 4))
        a('s_waitcnt lgkmcnt(0)')
        a('v_min3_u32 v1, v%d, v%d, v%d' % (FL, FL + 1, FL + 2))
        a('v_min_u32 v1, v1, v%d' % (FL + 3))
        a('v_readfirstlane_b32 s40, v1')
        tick1(a, 90)
        a('s_add_u32 s98, s98, 1')
        a('s_cmp_gt_u32 s98, %d' % (SPIN_LIMIT * 8))
        a('s_cbranch_scc1 %s_GO' % tag)
        a('s_cmp_lt_u32 s40, s35')
        a('s_cbranch_scc1 %s_SPIN' % tag)
        a('s_branch %s_GO' % tag)

    a.label('P1_STORE')
    a.barrier_hazards()
    a('v_lshlrev_b32 v1, 4, v2')
    a('s_waitcnt lgkmcnt(0)')
    a('s_barrier')
    stampv(a, 7)
    a('s_cmp_eq_u32 s29, 1')
    a('s_cbranch_scc1 P1_ST_B')
    a('s_lshl_b32 s40, s30, 13')
    a('s_lshl_b32 s41, s28, 7')
    a('s_add_u32 s40, s40, s41')
    a('s_mul_i32 s40, s40, 40')

    def piece_rowmajor(wreg, lds_region, gregion, rbase, tag):
        for i in range(3):
            if i == 2:
                a('s_cmp_ge_u32 %s, 4' % wreg)
                a('s_cbranch_scc1 %s' % tag)
            a('s_add_u32 s41, %s, %d' % (wreg, 8 * i))
            a('s_lshl_b32 s42, s41, 10')
            a('v_add_u32 v3, s42, v1')
            a('ds_read_b128 %s, v3 offset:%d' % (vr(rbase + 4 * i, 4), lds_region))
            a('s_mul_i32 s43, s41, 52429')
            a('s_lshr_b32 s43, s43, 18')
            a('s_mul_i32 s43, s43, %d' % (2048 * 40 - 5120))
            a('s_add_u32 s43, s43, s42')
            a('s_add_u32 s43, s43, s40')
            a('s_add_u32 s%d, s43, %d' % (44 + i, gregion))
            a('s_waitcnt lgkmcnt(0)')
            a('buffer_store_dwordx4 %s, v1, %s, s%d offen%s' % (vr(rbase + 4 * i, 4), WS, 44 + i, SC))
        a.label(tag)

    def piece_q(wreg, p0, rbase, tag):
        for i in range(2):
            if i == 1:
                a('s_cmp_ge_u32 %s, 2' % wreg)
                a('s_cbranch_scc1 %s' % tag)
            a('s_add_u32 s41, %s, %d' % (wreg, p0 + 8 * i))
            a('s_lshl_b32 s42, s41, 10')
            a('v_add_u32 v3, s42, v1')
            a('ds_read_b128 %s, v3 offset:%d' % (vr(rbase + 4 * i, 4), ST_Q))
            a('s_mul_i32 s43, s41, 52429')
            a('s_lshr_b32 s43, s43, 18')
            a('s_mul_i32 s43, s43, %d' % (2048 * 40 - 5120))
            a('s_add_u32 s43, s43, s42')
            a('s_add_u32 s43, s43, s40')
            a('s_add_u32 s%d, s43, %d' % (49 + i, QA))
            a('s_waitcnt lgkmcnt(0)')
            a('buffer_store_dwordx4 %s, v1, %s, s%d offen%s' % (vr(rbase + 4 * i, 4), WS, 49 + i, SC))
        a.label(tag)

    def batch2():
        a('v_lshrrev_b32 v4, 4, v2')
        a('v_and_b32 v5, 15, v2')
        a('v_mul_u32_u24 v6, %d, v4' % VPITCH)
        a('v_lshl_add_u32 v6, v5, 4, v6')
        a('v_lshlrev_b32 v7, 12, v4')
        a('v_lshl_add_u32 v7, v5, 4, v7')
        a('s_mul_i32 s47, s30, %d' % (80 * 4096))
        a('s_lshl_b32 s41, s28, 8')
        a('s_add_u32 s47, s47, s41')
        a('s_add_u32 s47, s47, %d' % VTA)
        for i in range(3):
            if i == 2:
                a('s_cmp_ge_u32 s24, 4')
                a('s_cbranch_scc1 P1_SV')
            a('s_add_u32 s41, s24, %d' % (8 * i))
            a('s_mul_i32 s42, s41, %d' % (4 * VPITCH))
            a('v_add_u32 v3, s42, v6')
            a('ds_read_b128 %s, v3 offset:%d' % (vr(36 + 4 * i, 4), ST_V))
            a('s_lshl_b32 s43, s41, 14')
            a('s_add_u32 s%d, s43, s47' % (44 + i))
            a('s_waitcnt lgkmcnt(0)')
            a('buffer_store_dwordx4 %s, v7, %s, s%d offen%s' % (vr(36 + 4 * i, 4), WS, 44 + i, SC))
        a.label('P1_SV')
        if not (FUSED and LQ):
            piece_q('s48', 0, 48, 'P1_SQ01')

    piece_rowmajor('s24', ST_K, KA, 16, 'P1_SK')
    a('s_add_u32 s48, s24, 4')
    a('s_and_b32 s48, s48, 7')
    piece_q('s48', 10, 28, 'P1_SQ23')
    a('s_branch P1_DONE')

    a.label('P1_ST_B')
    a.barrier_hazards()
    a('s_cmp_lt_u32 s24, 4')
    a('s_cbranch_scc1 P1_KV')
    a('s_sub_u32 s41, s24, 4')
    a('s_mul_i32 s42, s41, 5120')
    a('v_add_u32 v3, s42, v1')
    for i in range(5):
        a('ds_read_b128 %s, v3 offset:%d' % (vr(16 + 4 * i, 4), ST_Q + 1024 * i))
    a('s_lshl_b32 s40, s30, 2')
    a('s_add_u32 s40, s40, s41')
    a('s_lshl_b32 s40, s40, 11')
    a('s_lshl_b32 s41, s28, 7')
    a('s_add_u32 s40, s40, s41')
    a('s_mul_i32 s40, s40, 40')
    a('s_add_u32 s40, s40, %d' % PQB)
    a('s_add_u32 s41, s40, 4096')
    if PHIL:
        a('s_mov_b32 s60, %s' % f32(LOG2E))
        a('s_mov_b32 s61, %s' % f32(LOG2E))
        a('s_mov_b32 s62, 1.0')
        a('s_mov_b32 s63, 1.0')
        a('s_mov_b32 s64, %s' % f32(1e-6))
        a('s_mov_b32 s65, %s' % f32(1e-6))
    a('s_waitcnt lgkmcnt(0)')
    for i in range(5):
        if PHIL:
            for d in range(4):
                a('v_lshlrev_b32 v%d, 16, v%d' % (40 + 2 * d, 16 + 4 * i + d))
                a('v_and_b32 v%d, 0xffff0000, v%d' % (41 + 2 * d, 16 + 4 * i + d))
            phi_many([40 + k for k in range(8)], 48)
            for d in range(4):
                a('v_cvt_pk_bf16_f32 v%d, v%d, v%d' % (16 + 4 * i + d, 40 + 2 * d, 41 + 2 * d))
        if i < 4:
            a('buffer_store_dwordx4 %s, v1, %s, s40 offen offset:%d%s' % (vr(16 + 4 * i, 4), WS, 1024 * i, SC))
        else:
            a('buffer_store_dwordx4 v[32:35], v1, %s, s41 offen%s' % (WS, SC))
    a('s_branch P1_DONE')
    a.label('P1_KV')
    a.barrier_hazards()
    a('v_add_u32 v1, %d, v1' % ST_FR)
    a('s_lshl_b32 s40, s24, 12')
    a('v_add_u32 v7, s40, v1')
    for G in range(4):
        a('ds_read_b128 %s, v7 offset:%d' % (vr(16 + 4 * G, 4), G * 1024))
        a('ds_read_b128 %s, v1 offset:%d' % (vr(32 + 4 * G, 4), 4 * 4096 + G * 1024))
        a('ds_read_b128 %s, v7 offset:%d' % (vr(48 + 4 * G, 4), 5 * 4096 + G * 1024))
        a('ds_read_b128 %s, v1 offset:%d' % (vr(64 + 4 * G, 4), 9 * 4096 + G * 1024))
    for i in range(4):
        a('v_mov_b32 v%d, 0x3f803f80' % (80 + i))
    a('s_mul_i32 s41, s24, 1792')
    a('s_add_u32 s41, s41, %d' % ST_KV)
    a('v_mul_u32_u24 v8, 80, v3')
    a('v_add_u32 v8, s41, v8')
    a('v_lshl_add_u32 v9, v4, 4, v8')
    a('s_lshl_b32 s40, s24, 2')
    a('v_subrev_u32 v10, s40, v3')
    a('v_cmp_gt_u32 s[50:51], 4, v10')
    a('v_cmp_eq_u32 s[52:53], s24, v4')
    a('v_cmp_eq_u32 s[54:55], 0, v3')
    a('v_mul_u32_u24 v10, 80, v10')
    a('v_add_u32 v10, s41, v10')
    a('v_lshl_add_u32 v11, v4, 4, v10')
    a('s_and_b64 s[56:57], s[50:51], s[52:53]')
    a('s_and_b64 s[58:59], s[54:55], s[52:53]')
    a('s_waitcnt lgkmcnt(0)')
    Dr = [112 + 4 * i for i in range(6)]
    for G in range(4):
        c = lambda i: ('0' if G == 0 else vr(Dr[i], 4))
        kw, k4, vw, v4_ = vr(16 + 4 * G, 4), vr(32 + 4 * G, 4), vr(48 + 4 * G, 4), vr(64 + 4 * G, 4)
        a('v_mfma_f32_16x16x32_bf16 %s, %s, %s, %s' % (vr(Dr[0], 4), kw, vw, c(0)))
        a('v_mfma_f32_16x16x32_bf16 %s, %s, %s, %s' % (vr(Dr[1], 4), kw, v4_, c(1)))
        a('v_mfma_f32_16x16x32_bf16 %s, %s, %s, %s' % (vr(Dr[2], 4), k4, vw, c(2)))
        a('v_mfma_f32_16x16x32_bf16 %s, %s, %s, %s' % (vr(Dr[3], 4), k4, v4_, c(3)))
        a('v_mfma_f32_16x16x32_bf16 %s, %s, v[80:83], %s' % (vr(Dr[4], 4), kw, c(4)))
        a('v_mfma_f32_16x16x32_bf16 %s, %s, v[80:83], %s' % (vr(Dr[5], 4), k4, c(5)))
    a('v_lshlrev_b32 v12, 2, v2')
    a('v_add_u32 v13, s41, v12')
    a('ds_write_b128 v9, %s' % vr(Dr[0], 4))
    a('s_mov_b64 exec, s[50:51]')
    a('ds_write_b128 v11, %s offset:1280' % vr(Dr[1], 4))
    a('s_mov_b64 exec, s[52:53]')
    a('ds_write_b128 v8, %s offset:64' % vr(Dr[2], 4))
    a('s_mov_b64 exec, s[56:57]')
    a('ds_write_b128 v10, %s offset:1344' % vr(Dr[3], 4))
    a('s_mov_b64 exec, s[54:55]')
    a('ds_write_b128 v9, %s offset:1600' % vr(Dr[4], 4))
    a('s_mov_b64 exec, s[58:59]')
    a('ds_write_b128 v8, %s offset:1664' % vr(Dr[5], 4))
    a('s_mov_b64 exec, -1')
    a('s_waitcnt lgkmcnt(0)')
    for i in range(7):
        a('ds_read_b32 v%d, v13 offset:%d' % (16 + i, 256 * i))
    a('s_lshl_b32 s40, s30, 2')
    a('s_add_u32 s40, s40, s24')
    a('s_mul_i32 s40, s40, 1680')
    a('s_add_u32 s40, s40, %d' % KVA)
    a('s_waitcnt lgkmcnt(0)')
    for i in range(6):
        a('buffer_atomic_add_f32 v%d, v12, %s, s40 offen offset:%d' % (16 + i, WS, 256 * i))
    a('s_mov_b32 exec_hi, 0xf')
    a('buffer_atomic_add_f32 v22, v12, %s, s40 offen offset:1536' % WS)
    a('s_mov_b32 exec_hi, -1')
    a.label('P1_DONE')
    a.barrier_hazards()
    stampv(a, 8)
    if FUSED:
        a('s_waitcnt vmcnt(0)')
        stampv(a, 9)
        a('s_barrier')
        rtmark(a, 5)
        a('s_cmp_lg_u32 s24, 0')
        a('s_cbranch_scc1 P1_NOFLAG')
        a('s_lshl_b32 s42, s27, 6')
        a('s_lshl_b32 s41, s28, 2')
        a('s_add_u32 s41, s42, s41')
        a('s_add_u32 s41, s41, %d' % FLG1)
        a('v_mov_b32 v16, 1')
        a('v_mov_b32 v17, 0')
        a('s_mov_b64 exec, 1')
        a('buffer_store_dword v16, v17, %s, s41 offen sc1' % WS)
        a('s_mov_b64 exec, -1')
        a.label('P1_NOFLAG')
    a('s_cmp_eq_u32 s29, 1')
    a('s_cbranch_scc1 P1_NOB2')
    batch2()
    a.label('P1_NOB2')


K2_KIMG = 15360
K2_VP = 784
K2_V0 = K2_KIMG
K2_O1 = K2_V0 + 20 * K2_VP
K2_O2 = K2_O1 + 784 + 7 * 16
K2_HEAD = (K2_O2 + 784 + 255) // 256 * 256
L2VF = K2_O2 + 784
assert L2VF + 16 <= K2_HEAD and L2VF % 16 == 0


WOL0 = 65536
P3_WF = 56


def p3_params(a):
    a('s_and_b32 s66, s2, 1')
    a('s_lshl_b32 s66, s66, 2')
    a('s_lshr_b32 s67, s2, 3')
    a('s_and_b32 s67, s67, 3')
    a('s_add_u32 s66, s66, s67')
    a('s_mul_i32 s66, s66, %d' % (200 * 1024))
    a('s_and_b32 s67, s24, 3')
    a('s_mul_i32 s69, s67, 10240')
    a('s_add_u32 s66, s66, s69')
    a('s_add_u32 s66, s66, %d' % WOF)
    a('s_mul_i32 s67, s67, 24576')
    a('s_add_u32 s67, s67, %d' % WOL0)
    a('s_lshr_b32 s68, s24, 2')


def p3_lds_frags():
    return [(5, ct) for ct in range(1, 5)] + [(ks, ct) for ks in range(6, 10) for ct in range(5)]


def p3_dma(a, tag, vl16):
    fr = p3_lds_frags()
    a('s_cmp_eq_u32 s68, 1')
    a('s_cbranch_scc1 %s_1' % tag)
    for half_ in range(2):
        if half_:
            a('s_branch %s_2' % tag)
            a.label(tag + '_1')
        for f in range(12 * half_, 12 * half_ + 12):
            ks, ct = fr[f]
            a('s_add_u32 m0, s67, %d' % (f * 1024))
            a('s_add_u32 s69, s66, %d' % (ct * 40960 + ks * 1024))
            a('buffer_load_dwordx4 v%d, %s, s69 offen lds' % (vl16, WS))
    a.label(tag + '_2')


def p3_regloads(a, vl16):
    for f in range(26):
        ks, ct = f // 5, f % 5
        if ks < 4:
            if ks == 0:
                a('s_add_u32 s%d, s66, %d' % (70 + ct, ct * 40960))
            a('buffer_load_dwordx4 %s, v%d, %s, s%d offen offset:%d' % (vr(P3_WF + 4 * f, 4), vl16, WS, 70 + ct, ks * 1024))
        else:
            a('s_add_u32 s69, s66, %d' % (ct * 40960 + ks * 1024))
            a('buffer_load_dwordx4 %s, v%d, %s, s69 offen' % (vr(P3_WF + 4 * f, 4), vl16, WS))


def phase2(a):
    stamp_move(a, 79)
    a('s_lshl_b32 s25, s30, 1')
    a('s_add_u32 s25, s25, s29')
    a('s_lshr_b32 s31, s24, 2')
    a('s_and_b32 s32, s24, 3')
    a('s_lshl_b32 s33, s25, 1')
    a('s_add_u32 s33, s33, s31')
    a('s_mul_i32 s34, s31, %d' % K2_HEAD)
    a('s_lshl_b32 s35, s28, 7')
    a('s_sub_i32 s26, s35, 256')
    a('v_and_b32 v3, 31, v2')
    a('v_lshrrev_b32 v4, 5, v2')
    a('v_lshlrev_b32 v5, 4, v2')
    a('s_mul_i32 s60, s26, 40')
    a('s_lshl_b32 s61, s32, 10')
    a('s_add_i32 s60, s60, s61')
    a('v_add_u32 v6, s60, v5')
    a('v_max_i32 v10, 0, v6')
    for i in range(1, 4):
        a('v_add_u32 v%d, %d, v6' % (10 + i, i * 4096))
        a('v_max_i32 v%d, 0, v%d' % (10 + i, 10 + i))
    a('s_mul_i32 s62, s33, %d' % (S * 40))
    a('s_lshl_b32 s60, s26, 1')
    a('v_add_u32 v14, s60, v5')
    a('v_max_i32 v14, 0, v14')
    a('s_lshl_b32 s63, s32, 5')
    a('s_add_u32 s63, s63, s35')
    a('s_mul_i32 s64, s63, 40')
    a('s_add_u32 s64, s64, s62')
    a('v_mul_u32_u24 v7, 40, v3')
    a('v_lshl_add_u32 v8, v4, 4, v7')
    if not FUSED:
        a('s_waitcnt lgkmcnt(0)')
        make_srd(a, 36, 22, WS_SIZE)
    make_srd_off(a, 40, 22, KA, H * S * 40)
    make_srd_off(a, 44, 22, VTA, 640 * S * 2)
    make_srd_off(a, 48, 22, QA, H * S * 40)
    make_srd_off(a, 52, 22, PQB, H * S * 40)
    make_srd_off(a, 56, 22, KVA, H * 1680)
    if FUSED:
        if LQ:
            a('s_cmp_lg_u32 s29, 0')
            a('s_cbranch_scc1 P2_NOLQ')
            a('s_mul_i32 s60, s24, 1280')
            a('v_add_u32 v22, s60, v8')
            a('v_add_u32 v23, s60, v7')
            a('ds_read_b64 v[16:17], v22 offset:%d' % ST_Q)
            a('ds_read_b64 v[18:19], v22 offset:%d' % (ST_Q + 8))
            a('ds_read_b64 v[20:21], v23 offset:%d' % (ST_Q + 32))
            a.label('P2_NOLQ')
        a('s_waitcnt vmcnt(0) lgkmcnt(0)')
        a('s_barrier')
        a('s_sub_i32 s60, s28, 2')
        a('v_add_u32 v56, s60, v2')
        a('v_max_i32 v56, 0, v56')
        a('v_min_u32 v56, s28, v56')
        a('v_lshlrev_b32 v15, 2, v56')
        a('s_cmp_lg_u32 s24, 1')
        a('s_cbranch_scc1 P2_NOFV')
        a('s_cmp_lg_u32 s29, 0')
        a('s_cbranch_scc1 P2_NOFV')
        a('s_lshl_b32 s60, s30, 6')
        a('s_lshl_b32 s61, s28, 2')
        a('s_add_u32 s60, s60, s61')
        a('s_add_u32 s60, s60, %d' % FLGV)
        a('v_mov_b32 v56, 1')
        a('v_mov_b32 v57, 0')
        a('s_mov_b64 exec, 1')
        a('buffer_store_dword v56, v57, %s, s60 offen sc1' % WS)
        a('s_mov_b64 exec, -1')
        a.label('P2_NOFV')
        a('s_cmp_lg_u32 s24, 0')
        a('s_cbranch_scc1 P2_W1')
        a('s_lshl_b32 s60, s30, 6')
        a('s_add_u32 s60, s60, %d' % FLG1)

        def ok():
            a('v_cmp_ne_u32 vcc, 1, v57')
            a('s_cmp_eq_u64 vcc, 0')
        poll_loop(a, 'buffer_load_dword v57, v15, %s, s60 offen sc1' % WS, 1, 57, ok)
        a.label('P2_W1')
        stampv(a, 10)
        a('s_barrier')
    stampv(a, 11)
    rtmark(a, 6, tv=58)
    a('s_lshl_b32 s60, s32, 10')
    a('s_add_u32 s60, s60, s34')
    for i in range(4):
        if i == 3:
            a('s_cmp_eq_u32 s32, 3')
            a('s_cbranch_scc1 P2_SKIPK')
        a('s_add_u32 m0, s60, %d' % (i * 4096))
        a('buffer_load_dwordx4 v%d, s[40:43], s62 offen%s lds' % (10 + i, LC))
    a.label('P2_SKIPK')
    if FUSED and LQ:
        a('s_cmp_eq_u32 s29, 0')
        a('s_cbranch_scc1 P2_NOGQ')
    a('buffer_load_dwordx4 v[16:19], v8, s[48:51], s64 offen%s' % LC)
    a('buffer_load_dwordx2 v[20:21], v7, s[48:51], s64 offen offset:32%s' % LC)
    a.label('P2_NOGQ')
    if FUSED:
        a('v_mov_b32 v78, v15')
    stampv(a, 12)
    a('s_lshl_b32 s60, s32, 9')
    a('v_lshlrev_b32 v22, 3, v2')
    a('v_add_u32 v22, s60, v22')
    a('v_mov_b32 v64, 0x3f803f80')
    a('v_mov_b32 v65, 0x3f803f80')
    a('v_add_u32 v66, s34, v22')
    a('v_cmp_gt_u32 vcc, 784, v22')
    a('s_and_saveexec_b64 s[60:61], vcc')
    a('ds_write_b64 v66, v[64:65] offset:%d' % K2_O1)
    a('ds_write_b64 v66, v[64:65] offset:%d' % K2_O2)
    a('s_mov_b64 exec, s[60:61]')
    if STAG:
        a('v_mov_b32 v56, %d' % L2VF)
        a('v_mov_b32 v58, 0')
        a('v_mov_b32 v59, 0')
        a('ds_write_b64 v56, v[58:59]')
        a('ds_write_b64 v56, v[58:59] offset:8')
    a('v_lshlrev_b32 v67, 2, v4')
    a('v_sub_u32 v67, v3, v67')
    for r in range(16):
        c = 16 * ((r >> 2) & 1) + 8 * (r >> 3) + (r & 3)
        a('v_cmp_gt_i32 s[%d:%d], %d, v67' % (66 + 2 * r, 67 + 2 * r, c))
    a('v_mov_b32 v64, 0xffff')
    a('v_mov_b32 v65, 0xffff0000')
    for i in range(8):
        a('v_cndmask_b32 v%d, 0, v64, s[%d:%d]' % (68 + i, 66 + 4 * i, 67 + 4 * i))
        a('v_cndmask_b32 v76, 0, v65, s[%d:%d]' % (68 + 4 * i, 69 + 4 * i))
        a('v_or_b32 v%d, v%d, v76' % (68 + i, 68 + i))
    a('v_and_b32 v64, 7, v3')
    a('v_bfe_u32 v65, v3, 3, 1')
    a('v_lshl_add_u32 v64, v65, 4, v64')
    a('v_bfe_u32 v65, v3, 4, 1')
    a('v_lshl_add_u32 v64, v65, 3, v64')
    a('v_mul_u32_u24 v64, 40, v64')
    a('s_mul_i32 s60, s32, 1280')
    a('s_add_u32 s60, s60, s34')
    a('v_add_u32 v64, s60, v64')
    a('v_lshl_add_u32 v65, v4, 4, v64')
    a('v_mul_u32_u24 v66, %d, v3' % K2_VP)
    a('v_add_u32 v66, %d, v66' % K2_V0)
    a('v_cmp_lt_u32 vcc, 19, v3')
    a('v_mov_b32 v76, %d' % K2_O1)
    a('v_mov_b32 v77, %d' % K2_O2)
    a('v_cndmask_b32 v66, v66, v76, vcc')
    a('v_cmp_lt_u32 vcc, 27, v3')
    a('s_lshl_b32 s60, s32, 6')
    a('s_add_u32 s60, s60, s34')
    a('v_cndmask_b32 v66, v66, v77, vcc')
    a('v_lshl_add_u32 v66, v4, 4, v66')
    a('v_add_u32 v66, s60, v66')
    a('v_and_b32 v77, 15, v2')
    a('v_lshrrev_b32 v15, 4, v2')
    a('v_mul_u32_u24 v9, 40, v77')
    a('v_lshl_add_u32 v9, v15, 4, v9')
    a('v_mul_u32_u24 v10, 80, v77')
    a('v_lshl_add_u32 v10, v15, 5, v10')
    a('v_lshlrev_b32 v11, 5, v15')
    a('v_add_u32 v11, 1600, v11')
    a('v_mov_b32 v76, 0x7fffffff')
    a('v_cmp_gt_u32 vcc, 3, v15')
    a('v_cmp_gt_u32 s[60:61], 2, v15')
    a('v_cndmask_b32 v12, v76, v10, vcc')
    a('v_cndmask_b32 v13, v76, v10, s[60:61]')
    a('v_cndmask_b32 v10, v76, v11, vcc')
    a('v_cndmask_b32 v11, v76, v11, s[60:61]')
    for b_ in (24, 32, 40, 48):
        a('v_mov_b32 v%d, 0' % (b_ + 6))
        a('v_mov_b32 v%d, 0' % (b_ + 7))
    a('s_mul_i32 s65, s33, 1680')
    stampv(a, 13)
    if FUSED:
        a('s_cmp_lg_u32 s24, 0')
        a('s_cbranch_scc1 P2_W2')
        a('s_lshl_b32 s60, s30, 6')
        a('s_add_u32 s60, s60, %d' % FLGV)

        def ok2():
            a('v_cmp_ne_u32 vcc, 1, v56')
            a('s_cmp_eq_u64 vcc, 0')
        poll_loop(a, 'buffer_load_dword v56, v78, %s, s60 offen sc1' % WS, 1, 56, ok2)
        a.label('P2_W2')
    a('s_waitcnt vmcnt(0) lgkmcnt(0)')
    stampv(a, 14)
    a('s_barrier')
    stampv(a, 15)
    rtmark(a, 7, tv=58)
    if STAG:
        a('s_cmp_lt_u32 s24, 4')
        a('s_cbranch_scc1 P2_OLD')
        a('s_mul_i32 s60, s25, 40')
        a('s_mul_i32 s61, s32, 5')
        a('s_add_u32 s60, s60, s61')
        a('s_lshl_b32 s60, s60, 12')
        a('s_mul_i32 s61, s32, %d' % (5 * K2_VP))
        a('s_add_u32 s61, s61, %d' % K2_V0)
        a('s_mov_b32 exec_hi, 0xffff')
        for hh_ in range(2):
            for i in range(5):
                a('s_add_u32 m0, s61, %d' % (hh_ * K2_HEAD + i * K2_VP))
                a('buffer_load_dwordx4 v14, s[44:47], s60 offen%s lds' % LC)
                a('s_add_u32 s60, s60, %d' % (4096 if i < 4 else 16 * 4096))
        a('s_mov_b32 exec_hi, -1')
        a('s_lshl_b32 s60, s32, 2')
        a('s_add_u32 s60, s60, %d' % L2VF)
        a('v_mov_b32 v56, s60')
        a('v_mov_b32 v57, 1')
        a('s_waitcnt vmcnt(0)')
        a('ds_write_b32 v56, v57')
        a('s_branch P2_QK')
        a.label('P2_OLD')
        a('s_setprio 2')
        a.label('P2_QK')
    else:
        a('s_mul_i32 s60, s33, 20')
        a('s_mul_i32 s61, s32, 5')
        a('s_add_u32 s60, s60, s61')
        a('s_lshl_b32 s60, s60, 12')
        a('s_mul_i32 s61, s32, %d' % (5 * K2_VP))
        a('s_add_u32 s61, s61, s34')
        a('s_add_u32 s61, s61, %d' % K2_V0)
        a('s_mov_b32 exec_hi, 0xffff')
        for i in range(5):
            a('s_add_u32 m0, s61, %d' % (i * K2_VP))
            a('buffer_load_dwordx4 v14, s[44:47], s60 offen%s lds' % LC)
            if i < 4:
                a('s_add_u32 s60, s60, 4096')
        a('s_mov_b32 exec_hi, -1')
    a('v_cmp_eq_u32 vcc, 0, v4')
    a('v_mov_b32 v22, 0')
    a('v_mov_b32 v23, 0')
    a('v_cndmask_b32 v20, 0, v20, vcc')
    a('v_cndmask_b32 v21, 0, v21, vcc')
    SCR = 112
    KF = [24, 32, 40, 48]

    def kreads(t):
        b = KF[t & 1]
        a('ds_read_b64 v[%d:%d], v65 offset:%d' % (b, b + 1, t * 1280))
        a('ds_read_b64 v[%d:%d], v65 offset:%d' % (b + 2, b + 3, t * 1280 + 8))
        a('ds_read_b64 v[%d:%d], v64 offset:%d' % (b + 4, b + 5, t * 1280 + 32))

    def issue_b_loads():
        a('buffer_load_dwordx4 v[24:27], v9, s[52:55], s64 offen%s' % LC)
        a('buffer_load_dwordx4 v[28:31], v9, s[52:55], s64 offen offset:640%s' % LC)
        a('buffer_load_dwordx4 v[32:35], v12, s[56:59], s65 offen%s' % LC)
        a('buffer_load_dwordx4 v[36:39], v13, s[56:59], s65 offen offset:16%s' % LC)
        a('buffer_load_dwordx4 v[40:43], v12, s[56:59], s65 offen offset:1280%s' % LC)
        a('buffer_load_dwordx4 v[44:47], v13, s[56:59], s65 offen offset:1296%s' % LC)
        a('buffer_load_dwordx4 v[48:51], v10, s[56:59], s65 offen%s' % LC)
        a('buffer_load_dwordx4 v[52:55], v11, s[56:59], s65 offen offset:16%s' % LC)

    a('s_lshl_b32 s60, s28, 2')
    a('s_add_u32 s60, s60, s32')
    order = [8, 0, 1, 2, 3, 4, 5, 6, 7]
    MX = [60, 61, 62, 63]

    def post(t, first):
        b = SCR + 16 * t
        if t == 8:
            return
        lab = 'P2_V%d' % t
        a('v_mov_b32 v1, v%d' % (b + 15))
        a('s_cmp_ge_u32 s60, %d' % (8 - t))
        a('s_cbranch_scc1 %s' % lab)
        for r in range(16):
            a('v_mov_b32 v%d, 0xff800000' % (b + r))
        a.label(lab)
        if t == 0:
            for r in range(16):
                a('v_cndmask_b32 v%d, v%d, v%d, s[%d:%d]' % (b + r, SCR + 128 + r, b + r, 66 + 2 * r, 67 + 2 * r))
            for k in range(4):
                a('v_max3_f32 v%d, v%d, v%d, v%d' % (MX[k], b + 4 * k, b + 4 * k + 1, b + 4 * k + 2))
            for k in range(4):
                a('v_max_f32 v%d, v%d, v%d' % (MX[k], MX[k], b + 4 * k + 3))
        else:
            for k in range(8):
                a('v_max3_f32 v%d, v%d, v%d, v%d' % (MX[k & 3], MX[k & 3], b + 2 * k, b + 2 * k + 1))

    def kreads_n(n):
        t = order[n]
        b = KF[n & 3]
        a('ds_read_b64 v[%d:%d], v65 offset:%d' % (b, b + 1, t * 1280))
        a('ds_read_b64 v[%d:%d], v65 offset:%d' % (b + 2, b + 3, t * 1280 + 8))
        a('ds_read_b64 v[%d:%d], v64 offset:%d' % (b + 4, b + 5, t * 1280 + 32))

    kreads_n(0)
    kreads_n(1)
    kreads_n(2)
    for n, t in enumerate(order):
        if n + 3 < 9:
            kreads_n(n + 3)
        a('s_waitcnt lgkmcnt(%d)' % (3 * min(3, 8 - n)))
        b = KF[n & 3]
        d = vr(SCR + 16 * t, 16)
        a('v_mfma_f32_32x32x16_bf16 %s, %s, v[16:19], 0' % (d, vr(b, 4)))
        a('v_mfma_f32_32x32x16_bf16 %s, %s, v[20:23], %s' % (d, vr(b + 4, 4), d))
        if n >= 2:
            post(order[n - 2], n == 2)
    post(6, False)
    if not FUSED:
        issue_b_loads()
    else:
        a('buffer_load_dwordx4 v[56:59], v5, %s, s99 offen sc1' % WS)
    post(7, False)
    a('v_max3_f32 v60, v60, v61, v62')
    a('v_max_f32 v60, v60, v63')
    a('v_mov_b32 v61, v60')
    a('v_permlane32_swap_b32 v60, v61')
    a('v_max_f32 v60, v60, v61')
    CS = (DH ** -0.5) * LOG2E
    a('s_mov_b32 s60, %s' % f32(CS))
    a('s_mov_b32 s61, %s' % f32(CS))
    a('v_mul_f32 v60, %s, v60' % f32(-CS))
    a('v_mov_b32 v61, v60')
    stampv(a, 16)
    if STAG:
        a('s_setprio 0')
    else:
        a('s_waitcnt vmcnt(%d)' % (1 if FUSED else 8))
        a('s_barrier')
    stampv(a, 17)
    OA = 96
    VF = [80, 84, 88, 92]

    def vread(idx):
        t, j = idx >> 1, idx & 1
        a('ds_read_b128 %s, v66 offset:%d' % (vr(VF[idx & 3], 4), t * 64 + j * 32))

    def softmax_tile(t):
        b = SCR + 16 * t
        for r in range(0, 16, 2):
            a('v_pk_fma_f32 %s, %s, s[60:61], v[60:61]' % (vr(b + r, 2), vr(b + r, 2)))
        for r in range(16):
            a('v_exp_f32 v%d, v%d' % (b + r, b + r))
        for i in range(8):
            a('v_cvt_pk_bf16_f32 v%d, v%d, v%d' % (b + i, b + 2 * i, b + 2 * i + 1))

    def flagcheck(tag, last):
        a('s_cmp_eq_u32 s98, 1')
        a('s_cbranch_scc1 %s' % tag)
        if last:
            a.label(tag + '_R')
        a('s_waitcnt vmcnt(0)')
        a('v_and_b32 v56, v56, v57')
        a('v_and_b32 v58, v58, v59')
        a('v_and_b32 v56, v56, v58')
        a('v_cmp_ne_u32 vcc, 1, v56')
        a('s_cmp_eq_u64 vcc, 0')
        a('s_cbranch_scc1 %s_Y' % tag)
        a('buffer_load_dwordx4 v[56:59], v5, %s, s99 offen sc1' % WS)
        if last:
            a('s_add_u32 s97, s97, 1')
            a('s_cmp_lt_u32 s97, %d' % SPIN_LIMIT)
            a('s_cbranch_scc1 %s_R' % tag)
        else:
            a('s_branch %s' % tag)
        a.label(tag + '_Y')
        issue_b_loads()
        if WOPRE:
            p3_dma(a, tag + '_D', 5)
        a('s_mov_b32 s98, 1')
        a.label(tag)

    order2 = [0, 8, 1, 2, 3, 4, 5, 6, 7]
    first = True
    nv = 0
    a('s_mov_b32 s70, 0')
    if FUSED:
        a('s_mov_b32 s98, 0')
        if WOPRE:
            p3_params(a)
    if not STAG:
      for n_, t in enumerate(order2):
        i0 = nv
        for j in range(2):
            a('ds_read_b128 %s, v66 offset:%d' % (vr(VF[nv & 3], 4), t * 64 + j * 32))
            nv += 1
        if t == 0:
            softmax_tile(0)
            for i in range(8):
                a('v_bfi_b32 v%d, v%d, 0, v%d' % (SCR + 128 + i, 68 + i, SCR + i))
                a('v_and_b32 v%d, v%d, v%d' % (SCR + i, 68 + i, SCR + i))
        elif t != 8:
            softmax_tile(t)
        a('s_waitcnt lgkmcnt(0)')
        for j in range(2):
            c = '0' if first else vr(OA, 16)
            a('v_mfma_f32_32x32x16_bf16 %s, %s, %s, %s' % (vr(OA, 16), vr(VF[(i0 + j) & 3], 4), vr(SCR + 16 * t + 4 * j, 4), c))
            first = False
        if FUSED and t in (8, 3, 5):
            flagcheck('P2_FC%d' % t, False)
    else:
        M = [(t, j) for t in order2 for j in range(2)]
        st = {'m': 0, 'r': 0, 'ready': 0}

        def vrd():
            if st['r'] < 18:
                t, j = M[st['r']]
                a('ds_read_b128 %s, v66 offset:%d' % (vr(VF[st['r'] & 3], 4), t * 64 + j * 32))
                st['r'] += 1

        def pv():
            if st['m'] < st['ready']:
                m = st['m']
                t, j = M[m]
                a('s_waitcnt lgkmcnt(%d)' % (st['r'] - m - 1))
                a('v_mfma_f32_32x32x16_bf16 %s, %s, %s, %s' % (vr(OA, 16), vr(VF[m & 3], 4), vr(SCR + 16 * t + 4 * j, 4),
                                                              '0' if m == 0 else vr(OA, 16)))
                st['m'] += 1
                vrd()

        for n_, t in enumerate([0, 1, 2, 3, 4, 5, 6, 7]):
            b = SCR + 16 * t
            on = n_ >= LAG
            if n_ == LAG:
                a('v_mov_b32 v62, %d' % L2VF)
                a.label('P2_VW')
                a('ds_read_b128 v[80:83], v62')
                a('s_waitcnt lgkmcnt(0)')
                a('v_and_b32 v80, v80, v81')
                a('v_and_b32 v82, v82, v83')
                a('v_and_b32 v80, v80, v82')
                a('v_readfirstlane_b32 s69, v80')
                a('s_add_u32 s70, s70, 1')
                a('s_cmp_gt_u32 s70, %d' % (SPIN_LIMIT * 8))
                a('s_cbranch_scc1 P2_VWX')
                a('s_cmp_lg_u32 s69, 1')
                a('s_cbranch_scc1 P2_VW')
                a.label('P2_VWX')
                vrd()
                vrd()
                vrd()
            for r in range(0, 16, 2):
                a('v_pk_fma_f32 %s, %s, s[60:61], v[60:61]' % (vr(b + r, 2), vr(b + r, 2)))
            if on:
                pv()
            for r in range(8):
                a('v_exp_f32 v%d, v%d' % (b + r, b + r))
            if on:
                pv()
            for r in range(8, 16):
                a('v_exp_f32 v%d, v%d' % (b + r, b + r))
            if on:
                pv()
            for i in range(8):
                a('v_cvt_pk_bf16_f32 v%d, v%d, v%d' % (b + i, b + 2 * i, b + 2 * i + 1))
            if t == 0:
                for i in range(8):
                    a('v_bfi_b32 v%d, v%d, 0, v%d' % (SCR + 128 + i, 68 + i, SCR + i))
                    a('v_and_b32 v%d, v%d, v%d' % (SCR + i, 68 + i, SCR + i))
                st['ready'] = 4
            else:
                st['ready'] += 2
            if FUSED and t in (1, 3, 5):
                flagcheck('P2_FC%d' % t, False)
        while st['m'] < 18:
            pv()
    if FUSED:
        a('s_mov_b32 s97, 0')
        flagcheck('P2_FCL', True)
    stampv(a, 18)
    a('s_waitcnt vmcnt(0)')
    for i in range(12):
        a('v_cvt_pk_bf16_f32 v%d, v%d, v%d' % (80 + i, 32 + 2 * i, 33 + 2 * i))
    a('v_rcp_f32 v62, v%d' % (OA + 12))
    for rt in range(2):
        pq = vr(24 + 4 * rt, 4)
        a('v_mfma_f32_16x16x32_bf16 %s, v[80:83], %s, 0' % (vr(SCR + 12 * rt, 4), pq))
        a('v_mfma_f32_16x16x32_bf16 %s, v[84:87], %s, 0' % (vr(SCR + 12 * rt + 4, 4), pq))
        a('v_mfma_f32_16x16x32_bf16 %s, v[88:91], %s, 0' % (vr(SCR + 12 * rt + 8, 4), pq))
    for r in range(12):
        a('v_mul_f32 v%d, v%d, v62' % (OA + r, OA + r))
    for i in range(6):
        a('v_cvt_pk_bf16_f32 v%d, v%d, v%d' % (32 + i, OA + 2 * i, OA + 2 * i + 1))
    a('s_mul_i32 s60, s32, 2560')
    a('v_bfe_u32 v6, v3, 4, 1')
    a('v_mul_u32_u24 v6, 1280, v6')
    a('v_lshl_add_u32 v6, v77, 4, v6')
    a('v_add_u32 v6, s60, v6')
    a('s_mul_i32 s61, s31, 20')
    a('v_lshlrev_b32 v7, 2, v4')
    a('v_add_u32 v7, s61, v7')

    def oaddr(dst, kk, base):
        a('v_lshrrev_b32 v%d, 3, v%d' % (dst, kk))
        a('v_lshl_add_u32 v%d, v%d, 8, v%d' % (dst, dst, base))
        a('v_and_b32 v63, 4, v%d' % kk)
        a('v_lshl_add_u32 v%d, v63, 1, v%d' % (dst, dst))

    oaddr(8, 7, 6)
    a('ds_write_b64 v8, v[32:33]')
    a('ds_write_b64 v8, v[34:35] offset:256')
    a('s_mov_b32 exec_hi, 0')
    a('ds_write_b64 v8, v[36:37] offset:512')
    a('s_mov_b32 exec_hi, -1')
    a('v_lshlrev_b32 v7, 2, v15')
    a('v_add_u32 v7, s61, v7')
    a('v_lshlrev_b32 v6, 4, v77')
    a('v_add_u32 v6, s60, v6')
    oaddr(8, 7, 6)
    a('s_mov_b32 s61, %s' % f32(1e-6))
    for rt in range(2):
        b = SCR + 12 * rt
        a('v_add_f32 v%d, s61, v%d' % (62 + rt, b + 8))
    for rt in range(2):
        a('v_rcp_f32 v%d, v%d' % (62 + rt, 62 + rt))
    for rt in range(2):
        b = SCR + 12 * rt
        for r in range(8):
            a('v_mul_f32 v%d, v%d, v%d' % (b + r, b + r, 62 + rt))
        for i in range(4):
            a('v_cvt_pk_bf16_f32 v%d, v%d, v%d' % (40 + 4 * rt + i, b + 2 * i, b + 2 * i + 1))
    a('ds_write_b64 v8, v[40:41] offset:%d' % K2_HEAD)
    a('ds_write_b64 v8, v[44:45] offset:%d' % (K2_HEAD + 1280))
    a('s_mov_b64 exec, 0xffff')
    a('ds_write_b64 v8, v[42:43] offset:%d' % (K2_HEAD + 512))
    a('ds_write_b64 v8, v[46:47] offset:%d' % (K2_HEAD + 1280 + 512))
    a('s_mov_b64 exec, -1')
    a('s_mul_i32 s60, s24, 1280')
    a('v_add_u32 v6, s60, v5')
    a('s_lshl_b32 s60, s28, 3')
    a('s_add_u32 s60, s60, s24')
    a('s_mul_i32 s60, s60, 40960')
    a('s_mul_i32 s61, s25, 1280')
    a('s_add_u32 s60, s60, s61')
    a('s_add_u32 s60, s60, %d' % OF)
    a('s_add_u32 s61, s60, 20480')
    stamp_move(a, 255)
    if FUSED and WOPRE:
        a('s_cmp_ge_u32 s24, 4')
        a('s_cbranch_scc1 P2_NOPRE')
        p3_regloads(a, 5)
        a.label('P2_NOPRE')
    a('s_waitcnt lgkmcnt(0)')
    a('s_barrier')
    stampv(a, 19)
    rtmark(a, 8)
    a('ds_read_b128 v[16:19], v6')
    a('ds_read_b128 v[20:23], v6 offset:%d' % K2_HEAD)
    a('ds_read_b128 v[24:27], v6 offset:1024')
    a('ds_read_b128 v[28:31], v6 offset:%d' % (K2_HEAD + 1024))
    a('s_waitcnt lgkmcnt(2)')
    a('buffer_store_dwordx4 v[16:19], v5, %s, s60 offen%s' % (WS, SC))
    a('buffer_store_dwordx4 v[20:23], v5, %s, s61 offen%s' % (WS, SC))
    a('s_waitcnt lgkmcnt(0)')
    a('s_mov_b64 exec, 0xffff')
    a('buffer_store_dwordx4 v[24:27], v5, %s, s60 offen offset:1024%s' % (WS, SC))
    a('buffer_store_dwordx4 v[28:31], v5, %s, s61 offen offset:1024%s' % (WS, SC))
    a('s_mov_b64 exec, -1')
    stampv(a, 20)
    stamp_move(a, 255)


def phase3(a):
    a('s_and_b32 s60, s2, 7')
    a('s_lshr_b32 s61, s2, 3')
    if '--map8' in sys.argv:
        a('s_and_b32 s31, s61, 7')
        a('s_lshl_b32 s32, s60, 2')
        a('s_lshr_b32 s62, s61, 3')
        a('s_add_u32 s32, s32, s62')
    else:
        a('s_and_b32 s31, s60, 1')
        a('s_lshl_b32 s31, s31, 2')
        a('s_and_b32 s62, s61, 3')
        a('s_add_u32 s31, s31, s62')
        a('s_lshr_b32 s32, s60, 1')
        a('s_lshl_b32 s32, s32, 3')
        a('s_lshr_b32 s62, s61, 2')
        a('s_add_u32 s32, s32, s62')
    a('s_and_b32 s26, s24, 3')
    a('s_lshr_b32 s33, s24, 2')
    a('v_lshlrev_b32 v3, 4, v2')
    for i in range(1, 5):
        a('v_add_u32 v%d, %d, v3' % (3 + i, i * 40960))
    a('s_mul_i32 s43, s26, 10240')
    a('s_mul_i32 s34, s31, %d' % (200 * 1024))
    a('s_add_u32 s34, s34, s43')
    a('s_add_u32 s34, s34, %d' % WOF)
    a('s_add_u32 s35, s34, 4096')
    a('s_lshl_b32 s40, s32, 2')
    a('s_lshl_b32 s41, s33, 1')
    a('s_add_u32 s40, s40, s41')
    a('s_lshl_b32 s42, s40, 6')
    a('s_add_u32 s42, s42, %d' % GG)
    a('s_mul_i32 s40, s40, 40960')
    a('s_add_u32 s40, s40, s43')
    a('s_add_u32 s40, s40, %d' % OF)
    a('s_mul_i32 s43, s26, 24576')
    a('s_add_u32 s43, s43, %d' % WOL0)
    if not FUSED:
        a('s_waitcnt lgkmcnt(0)')
        make_srd(a, 36, 22, WS_SIZE)
    ACC, WF, OFR, LF = 16, 56, 160, 224
    make_srd(a, 44, 18, S * D * 2)
    a('v_and_b32 v8, 15, v2')
    a('v_lshrrev_b32 v9, 4, v2')
    a('v_lshlrev_b32 v10, 2, v8')
    a('v_add_u32 v11, s43, v3')
    if FUSED:
        a('s_waitcnt vmcnt(0)')
        stampv(a, 21)
        a('s_barrier')
        a('s_cmp_lg_u32 s24, 0')
        a('s_cbranch_scc1 P3_W0')
        a('s_lshl_b32 s60, s28, 6')
        a('s_lshl_b32 s61, s25, 2')
        a('s_add_u32 s60, s60, s61')
        a('s_add_u32 s60, s60, %d' % FLG2)
        a('v_mov_b32 v16, 1')
        a('v_mov_b32 v17, 0')
        a('s_mov_b64 exec, 1')
        a('buffer_store_dword v16, v17, %s, s60 offen sc1' % WS)
        a('s_mov_b64 exec, -1')
        a.label('P3_W0')
    if not (FUSED and WOPRE):
        p3_params(a)
        p3_dma(a, 'P3_D', 3)
        p3_regloads(a, 3)
    else:
        a('s_cmp_lt_u32 s24, 4')
        a('s_cbranch_scc1 P3_NOPRE')
        p3_regloads(a, 3)
        a.label('P3_NOPRE')
    stampv(a, 22)
    if FUSED:
        a('s_cmp_lg_u32 s24, 0')
        a('s_cbranch_scc1 P3_W')
        a('s_lshr_b32 s60, s32, 1')
        a('s_lshl_b32 s60, s60, 6')
        a('s_add_u32 s60, s60, %d' % FLG2)

        def ok():
            a('v_cmp_ne_u32 vcc, 1, v17')
            a('s_cmp_eq_u64 vcc, 0')
        poll_loop(a, 'buffer_load_dword v17, v10, %s, s60 offen sc1' % WS, 1, 17, ok)
        a.label('P3_W')
    a('s_waitcnt vmcnt(26)')
    stampv(a, 23)
    a('s_barrier')
    stampv(a, 24)
    rtmark(a, 9)
    a('s_add_u32 s41, s40, 4096')
    a('s_add_u32 s60, s40, 8192')

    def oloads(ks):
        b = OFR + (ks % 8) * 8
        for rt in range(2):
            a('buffer_load_dwordx4 %s, v%d, %s, s%d offen offset:%d'
              % (vr(b + 4 * rt, 4), 3 + rt, WS, (40, 41, 60)[ks >> 2], (ks & 3) * 1024))

    for ks in range(8):
        oloads(ks)
    for rt in range(2):
        a('buffer_load_dword v%d, v10, %s, s42 offen offset:%d' % (12 + rt, WS, rt * 64))
    fr = p3_lds_frags()

    def wreg(ks, ct):
        if ks < 5 or (ks, ct) == (5, 0):
            return WF + (ks * 5 + ct) * 4
        return WF + ((ks - 5) * 5 + ct) * 4

    def lreads(ks):
        n = 0
        for ct in range(5):
            if (ks, ct) in fr:
                a('ds_read_b128 %s, v11 offset:%d' % (vr(wreg(ks, ct), 4), fr.index((ks, ct)) * 1024))
                n += 1
        return n
    waits = [16, 16, 16, 14, 12, 10, 8, 6, 2, 0]
    for ks in range(10):
        a('s_waitcnt vmcnt(%d)' % waits[ks])
        if ks >= 5:
            a('s_waitcnt lgkmcnt(%d)' % (5 if ks < 9 else 0))
        b = OFR + (ks % 8) * 8
        for ct in range(5):
            for rt in range(2):
                acc = vr(ACC + (rt * 5 + ct) * 4, 4)
                a('v_mfma_f32_16x16x32_bf16 %s, %s, %s, %s' % (acc, vr(wreg(ks, ct), 4), vr(b + 4 * rt, 4),
                                                              '0' if ks == 0 else acc))
        if ks + 8 < 10:
            oloads(ks + 8)
        if 3 <= ks < 8:
            lreads(ks + 2)
    stampv(a, 25)
    a('s_cmp_lt_u32 s26, 2')
    a('s_cbranch_scc1 P3_NOINV')
    for rt in range(2):
        a('v_sub_f32 v%d, 1.0, v%d' % (12 + rt, 12 + rt))
    a.label('P3_NOINV')
    for rt in range(2):
        a('v_mov_b32 v%d, v%d' % (224 + 2 * rt, 12 + rt))
        a('v_mov_b32 v%d, v%d' % (225 + 2 * rt, 12 + rt))
    RED = 0
    a('s_mul_i32 s60, s33, 30720')
    a('s_add_u32 s60, s60, %d' % RED)
    a('v_add_u32 v11, s60, v3')
    for rt in range(2):
        for i in range(0, 20, 2):
            r = ACC + rt * 20 + i
            a('v_pk_mul_f32 %s, %s, %s' % (vr(r, 2), vr(r, 2), vr(224 + 2 * rt, 2)))
    for kq in range(4):
        a('s_cmp_lg_u32 s26, %d' % kq)
        a('s_cbranch_scc1 P3_Q%d' % kq)
        for T in range(10):
            if (T & 3) != kq:
                a('ds_write_b128 v11, %s offset:%d' % (vr(ACC + 4 * T, 4), (T * 3 + ((kq - (T & 3) - 1) & 3)) * 1024))
        own = [T for T in range(10) if (T & 3) == kq]
        a('s_waitcnt lgkmcnt(0)')
        a('s_barrier')
        stampv(a, 26)
        for n_, T in enumerate(own):
            for k in range(3):
                a('ds_read_b128 %s, v11 offset:%d' % (vr(60 + (n_ * 3 + k) * 4, 4), (T * 3 + k) * 1024))
        a('v_mul_u32_u24 v1, 1280, v8')
        a('v_lshl_add_u32 v1, v9, 3, v1')
        a('s_lshl_b32 s60, s32, 6')
        a('s_lshl_b32 s61, s33, 5')
        a('s_add_u32 s60, s60, s61')
        a('s_mul_i32 s60, s60, 1280')
        a('s_mul_i32 s61, s31, 160')
        a('s_add_u32 s60, s60, s61')
        a('s_add_u32 s61, s60, %d' % (16 * 1280))
        a('s_waitcnt lgkmcnt(0)')
        for n_, T in enumerate(own):
            for k in range(3):
                for i in (0, 2):
                    a('v_pk_add_f32 %s, %s, %s' % (vr(ACC + 4 * T + i, 2), vr(ACC + 4 * T + i, 2), vr(60 + (n_ * 3 + k) * 4 + i, 2)))
            a('v_cvt_pk_bf16_f32 v%d, v%d, v%d' % (100 + 2 * n_, ACC + 4 * T, ACC + 4 * T + 1))
            a('v_cvt_pk_bf16_f32 v%d, v%d, v%d' % (101 + 2 * n_, ACC + 4 * T + 2, ACC + 4 * T + 3))
            a('buffer_store_dwordx2 %s, v1, s[44:47], s%d offen offset:%d' % (vr(100 + 2 * n_, 2), 60 + T // 5, (T % 5) * 32))
        a('s_branch P3_END')
        a.label('P3_Q%d' % kq)
        a.barrier_hazards()
    a.label('P3_END')
    rtmark(a, 10)
    stampv(a, 27)


P3_LDS = 163840


def main():
    a = Asm()
    hdr = open('cdna_kernels/%s.s.ref' % NAME).read().split('\n')
    head = [l for l in hdr if l.startswith(';') and '@launch' not in l and 'Override launch' not in l
            and 'grid=ceil' not in l][:12]
    lds = max(LDS_TOTAL, P3_LDS, 2 * K2_HEAD)
    assert lds <= 163840, lds
    if FUSED:
        kn = NAME + '_kernel'
        lines = head + ['; @launch grid=(256,1,1) block=(512,1,1) lds=%d' % lds]
        kernel_header(a, kn)
        stampv(a, 0)
        common_prologue(a, 'K_END')
        a('s_mov_b32 s99, %d' % FLG1)
        phase1(a)
        phase2(a)
        phase3(a)
        stampv_flush(a, 0)
        a.label('K_END')
        a('s_endpgm')
        a.label('KCODE_END')
        names = [kn]
    else:
        lines = head + [
            '; @launch kernel=k1_kernel grid=(256,1,1) block=(512,1,1) lds=%d' % LDS_TOTAL,
            '; @launch kernel=k2_kernel grid=(256,1,1) block=(512,1,1) lds=%d' % (2 * K2_HEAD),
            '; @launch kernel=k3_kernel grid=(256,1,1) block=(512,1,1) lds=%d' % P3_LDS,
        ]
        names = []
        for i, ph in enumerate((phase1, phase2, phase3)):
            kn = 'k%d_kernel' % (i + 1)
            kernel_header(a, kn)
            stampv(a, 0)
            common_prologue(a, 'K%d_END' % (i + 1))
            ph(a)
            stampv_flush(a, i)
            a.label('K%d_END' % (i + 1))
            a('s_endpgm')
            names.append(kn)
    lines += ['.amdgcn_target "amdgcn-amd-amdhsa--gfx950"', '.text']
    body = a.finish()
    out = '\n'.join(lines) + '\n' + body + '.section .rodata,"a"\n' + ''.join(kernel_desc(n, 256) for n in names)
    args = [x for x in sys.argv[1:] if not x.startswith('-')]
    path = args[0] if args else 'cdna_kernels/%s.s' % NAME
    open(path, 'w').write(out)
    print('wrote', path, len(out), 'bytes; nops inserted:', len(a.nops_inserted))
    if '-v' in sys.argv:
        for t, k in a.nops_inserted:
            if 'lds' not in t:
                print('  nop %d before %s' % (k, t))


if __name__ == "__main__":
    main()
```
